```python
import torch

def _softmax(x, axis=-1):
    return torch.softmax(x, dim=axis)

def _gelu(x):
    return torch.nn.functional.gelu(x, approximate='tanh')

def _silu(x):
    return torch.nn.functional.silu(x)

def _sigmoid(x):
    return torch.sigmoid(x)

def _layernorm(x, axis=-1, eps=1e-05):
    m = x.mean(dim=axis, keepdim=True)
    v = x.var(dim=axis, keepdim=True, unbiased=False)
    return (x - m) / torch.sqrt(v + eps)

def _scatter_add(tgt, idx, src, axis=0):
    return tgt.clone().index_add_(axis, idx, src)

def _segment_sum(src, seg, n):
    out = torch.zeros((n,) + src.shape[1:], dtype=src.dtype)
    return out.index_add_(0, seg, src)

def _pad(x, pw):
    flat = tuple((v for pair in reversed(pw) for v in pair))
    return torch.nn.functional.pad(x, flat)
kernel_name = 'gated_mix__mha_block__mixer_gmlp__prompt'

def setup_inputs():

    _w = lambda a: (lambda t: t.to(torch.bfloat16) if t.is_floating_point() else t)(torch.as_tensor(a))

    def _A_setup():
        B, S, D, H = (1, 2048, 1024, 32)
        return {'x': _w((lambda *s: torch.randn(*s, dtype=torch.bfloat16) * 0.05)(B, S, D)), 'wqkv': _w((lambda *s: torch.randn(*s, dtype=torch.bfloat16) * 0.8)(D, 3 * D)), 'wo': _w((lambda *s: torch.randn(*s, dtype=torch.bfloat16) * 0.1)(D, D))}
    _A_in = _A_setup()

    def _B_setup():
        B, S, D, F = (1, 2048, 1024, 3584)
        Fh = F // 2
        return {'x': _w((lambda *s: torch.randn(*s, dtype=torch.bfloat16) * 0.05)(B, S, D)), 'w_in': _w((lambda *s: torch.randn(*s, dtype=torch.bfloat16) * 0.4)(D, 2 * Fh)), 'w_sp': _w(0.01 * (lambda *s: torch.randn(*s, dtype=torch.bfloat16) * 0.4)(S, S)), 'b_sp': _w(1.0 + 0.01 * (lambda *s: torch.randn(*s, dtype=torch.bfloat16) * 0.05)(S)), 'w_out': _w((lambda *s: torch.randn(*s, dtype=torch.bfloat16) * 0.05)(Fh, D))}
    _B_in = _B_setup()
    return {'A_x': _A_in['x'], 'A_wqkv': _A_in['wqkv'], 'A_wo': _A_in['wo'], 'B_x': _B_in['x'], 'B_w_in': _B_in['w_in'], 'B_w_sp': _B_in['w_sp'], 'B_b_sp': _B_in['b_sp'], 'B_w_out': _B_in['w_out'], 'gate_w': _w((lambda *s: torch.randn(*s, dtype=torch.bfloat16) * 0.05)(1024) * 16.0)}

def reference(A_x, A_wqkv, A_wo, B_x, B_w_in, B_w_sp, B_b_sp, B_w_out, gate_w):

    def _A_ref(x, wqkv, wo):
        B, S, D = x.shape
        H = 32
        Dh = D // H
        qkv = (lambda x, *d: x.permute(*d))((x @ wqkv).reshape(B, S, 3, H, Dh), 2, 0, 3, 1, 4)
        q, k, v = (qkv[0], qkv[1], qkv[2])
        scores = torch.einsum('bhqd,bhkd->bhqk', q, k) * Dh ** (-0.5)
        p = _softmax(scores, axis=-1)
        o = torch.einsum('bhqk,bhkd->bhqd', p, v)
        return (lambda x, *d: x.permute(*d))(o, 0, 2, 1, 3).reshape(B, S, D) @ wo

    def _B_ref(x, w_in, w_sp, b_sp, w_out):
        B, S, D = x.shape
        F = w_in.shape[-1]
        Fh = F // 2
        z = _gelu(torch.einsum('bsd,df->bsf', x, w_in))
        z1 = z[..., :Fh].clone()
        z2 = _layernorm(z[..., Fh:], axis=-1)
        g = torch.einsum('ts,bsf->btf', w_sp, z2) + b_sp[None, :, None]
        return torch.einsum('bsf,fd->bsd', z1 * g, w_out)
    x = A_x
    g = _sigmoid((x * gate_w).sum(-1, keepdims=True))
    a = _A_ref(x, A_wqkv, A_wo)
    b = _B_ref(x, B_w_in, B_w_sp, B_b_sp, B_w_out)
    return g * a + (1 - g) * b
```

```python
import re

REG_RE = re.compile(r'^(-|\|)?(abs\()?([vas])(\d+)\)?\|?$')
RNG_RE = re.compile(r'^(-)?([vas])\[(\d+):(\d+)\]$')

def regs_of(op):
    op = op.strip()
    m = RNG_RE.match(op)
    if m:
        return [f"{m.group(2)}{i}" for i in range(int(m.group(3)), int(m.group(4)) + 1)]
    m = REG_RE.match(op)
    if m:
        return [f"{m.group(3)}{m.group(4)}"]
    if op in ('vcc', 'exec'):
        return [op + '_lo', op + '_hi']
    if op in ('vcc_lo', 'vcc_hi', 'exec_lo', 'exec_hi', 'm0', 'scc'):
        return [op]
    return []

TRANS = ('v_exp_f32', 'v_log_f32', 'v_rcp_f32', 'v_rsq_f32', 'v_sqrt_f32', 'v_sin_f32', 'v_cos_f32', 'v_exp_f16', 'v_rcp_iflag_f32')

class Ins:
    __slots__ = ('text', 'mn', 'kind', 'wr', 'rd', 'srcc', 'srcab', 'passes', 'states', 'wide_store_data', 'dpp', 'marker')
    def __init__(self, text):
        self.text = text
        self.marker = None
        t = text.split(';')[0].strip()
        self.wr = set(); self.rd = set(); self.srcc = set(); self.srcab = set()
        self.passes = 0; self.states = 1; self.wide_store_data = set(); self.dpp = False
        if not t or t.endswith(':') or t.startswith('.'):
            self.mn = ''; self.kind = 'label' if t.endswith(':') else 'none'; self.states = 0
            return
        parts = t.split(None, 1)
        mn = parts[0]; self.mn = mn
        rest = parts[1] if len(parts) > 1 else ''
        ops = []; cur = ''; depth = 0
        for ch in rest:
            if ch == '[': depth += 1
            if ch == ']': depth -= 1
            if ch == ',' and depth == 0:
                ops.append(cur.strip()); cur = ''
            else:
                cur += ch
        if cur.strip(): ops.append(cur.strip())
        mods = []
        if ops:
            sp = ops[-1].split()
            ops[-1] = sp[0]; mods = sp[1:]
        R = [regs_of(o) for o in ops]
        allr = lambda idx: set(x for i in idx if i < len(R) for x in R[i])
        n = len(ops)
        if any(m.startswith(('row_', 'quad_perm', 'wave_', 'bank_mask', 'row_mask')) for m in mods): self.dpp = True
        if mn.startswith('v_mfma'):
            self.kind = 'mfma'
            self.passes = 8 if '32x32x16' in mn else 4
            self.wr = allr([0]); self.srcab = allr([1, 2]); self.srcc = allr([3]); self.rd = self.srcab | self.srcc
        elif mn.startswith('v_cmp'):
            self.kind = 'valu'; self.wr = allr([0]); self.rd = allr(range(1, n))
            if mn.startswith('v_cmpx'): self.wr |= {'exec_lo', 'exec_hi'}
        elif mn.startswith(('v_readfirstlane', 'v_readlane')):
            self.kind = 'readlane'; self.wr = allr([0]); self.rd = allr(range(1, n))
        elif mn.startswith('v_permlane') and 'swap' in mn:
            self.kind = 'permlane'; self.wr = allr([0, 1]); self.rd = allr([0, 1])
        elif mn.startswith('v_'):
            self.kind = 'trans' if mn.split('_e32')[0].split('_e64')[0] in TRANS else 'valu'
            self.wr = allr([0]); self.rd = allr(range(1, n))
            if mn.startswith(('v_fmac', 'v_pk_fmac', 'v_dot2c', 'v_writelane')) or 'UNUSED_PRESERVE' in t or self.dpp:
                self.rd |= self.wr
            if mn.startswith(('v_add_co', 'v_sub_co', 'v_addc_co', 'v_subb_co')):
                self.wr |= allr([1]); self.rd = allr(range(2, n))
            if mn.startswith('v_cndmask') and n == 3: self.rd |= {'vcc_lo', 'vcc_hi'}
            if mn.startswith('v_dot'): self.kind = 'dot'
        elif mn.startswith('buffer_load') or mn.startswith('global_load'):
            if 'lds' in mods:
                self.kind = 'dma'; self.rd = allr(range(0, n)) | {'m0'}
            else:
                self.kind = 'vload'; self.wr = allr([0]); self.rd = allr(range(1, n))
        elif mn.startswith('buffer_store') or mn.startswith('global_store'):
            self.kind = 'vstore'; self.rd = allr(range(0, n))
            if 'x3' in mn or 'x4' in mn:
                self.wide_store_data = allr([0]) if mn.startswith('buffer') else allr([1])
        elif mn.startswith(('buffer_atomic', 'global_atomic')):
            self.kind = 'vstore'; self.rd = allr(range(0, n))
            if 'sc0' in mods: self.wr = allr([0])
        elif mn.startswith(('buffer_inv', 'buffer_wbl2')):
            self.kind = 'vstore'
        elif mn.startswith('ds_read') or mn.startswith(('ds_bpermute', 'ds_permute', 'ds_swizzle')):
            self.kind = 'ds'; self.wr = allr([0]); self.rd = allr(range(1, n))
        elif mn.startswith('ds_'):
            self.kind = 'ds'; self.rd = allr(range(0, n))
        elif mn == 's_nop':
            self.kind = 'nop'; self.states = int(ops[0], 0) + 1
        elif mn in ('s_waitcnt', 's_barrier', 's_setprio', 's_sleep', 's_endpgm'):
            self.kind = 'ctl'
        elif mn.startswith(('s_branch', 's_cbranch')):
            self.kind = 'branch'
        elif mn.startswith('s_cmp') or mn.startswith('s_bitcmp'):
            self.kind = 'salu'; self.rd = allr(range(0, n)); self.wr = {'scc'}
        elif mn.startswith(('s_load', 's_memtime', 's_memrealtime')):
            self.kind = 'smem'; self.wr = allr([0]); self.rd = allr(range(1, n))
        elif mn.startswith('s_'):
            self.kind = 'salu'; self.wr = allr([0]); self.rd = allr(range(1, n))
            if 'saveexec' in mn: self.wr |= {'exec_lo', 'exec_hi'}
        else:
            raise ValueError("unknown instruction: " + text)

VALUK = ('valu', 'trans', 'readlane', 'permlane', 'dot')
MEMK = ('vload', 'vstore', 'dma', 'ds')
XDL_RAW = {4: 8, 8: 12}
XDL_OVL = {4: 6, 8: 10}
XDL_WAR = {4: 3, 8: 7}

def need(p, c):
    n = 0
    isv = lambda s: set(x for x in s if x[0] in 'va' and not x.startswith('vcc'))
    iss = lambda s: set(x for x in s if x[0] == 's' and x != 'scc' or x.startswith('vcc'))
    if p.kind in VALUK:
        pv = isv(p.wr); ps = iss(p.wr)
        if c.kind == 'mfma' and pv & c.rd: n = max(n, 3 if p.kind == 'dot' else 2)
        if c.kind == 'mfma' and ('exec_lo' in p.wr): n = max(n, 4)
        if c.kind == 'readlane' and pv & c.rd: n = max(n, 1)
        if c.kind == 'permlane' and pv & c.rd: n = max(n, 2)
        if c.dpp and pv & c.rd: n = max(n, 2)
        if c.dpp and 'exec_lo' in p.wr: n = max(n, 5)
        if p.kind == 'trans' and c.kind in VALUK and c.kind != 'trans' and pv & c.rd: n = max(n, 1)
        if p.kind == 'trans' and c.kind in MEMK and pv & c.rd: n = max(n, 1)
        if p.kind == 'dot' and (pv & (c.rd | c.wr)) and not (c.mn == p.mn and not (pv & (c.rd - c.wr))): n = max(n, 3)
        if ps:
            if c.kind in ('vload', 'vstore', 'dma') and ps & c.rd: n = max(n, 5)
            if c.kind in VALUK and ps & c.rd: n = max(n, 4 if c.kind == 'readlane' else 2)
            if c.kind in ('salu', 'branch', 'smem') and (ps & c.rd or (c.kind == 'branch' and 'vcc' in c.mn and 'vcc_lo' in ps)): n = max(n, 4 if c.kind != 'branch' else 5)
        if 'exec_lo' in p.wr and c.kind in ('readlane', 'permlane'): n = max(n, 4)
        if ('sdwa' in p.mn or ('op_sel' in p.text and not p.mn.startswith('v_pk_'))) and c.kind in VALUK and pv & (c.rd | c.wr): n = max(n, 1)
    if p.kind == 'mfma':
        d = p.wr
        if c.kind == 'mfma':
            if d & c.srcab: n = max(n, XDL_RAW[p.passes])
            if d & c.srcc and not (d == c.srcc and p.passes == c.passes): n = max(n, XDL_OVL[p.passes])
            if d & c.wr and not (d == c.wr and p.passes == c.passes): n = max(n, XDL_OVL[p.passes])
        elif c.kind in VALUK or c.kind in MEMK:
            if d & (c.rd | c.wr): n = max(n, XDL_RAW[p.passes])
            if c.kind in VALUK and p.srcc & c.wr: n = max(n, XDL_WAR[p.passes])
            if c.kind in ('vload', 'ds') and p.srcc & c.wr: n = max(n, XDL_WAR[p.passes])
    if p.kind == 'vstore' and p.wide_store_data and (p.wide_store_data & c.wr):
        n = max(n, 2)
    if p.kind == 'salu' and 'm0' in p.wr and c.kind == 'dma': n = max(n, 1)
    return n

class Stream:
    def __init__(self):
        self.ins = []
        self.vm = []
        self.nlabel = 0
        self.nops_added = 0
    def e(self, text, tag=None, count=True):
        for line in text.split('\n'):
            line = line.strip()
            if not line: continue
            i = Ins(line)
            self._pad(i)
            self.ins.append(i)
            if i.kind in ('vload', 'vstore', 'dma') and count:
                self.vm.append(tag)
    def _pad(self, c):
        if c.states == 0: return
        dist = 0; req = 0
        for p in reversed(self.ins):
            if p.kind == 'label' and p.marker != 'loop':
                break
            if dist >= 20: break
            k = need(p, c)
            if k > dist: req = max(req, k - dist)
            dist += p.states
        while req > 0:
            k = min(req, 16)
            self.ins.append(Ins(f"s_nop {k-1}")); self.nops_added += 1
            req -= k
    def flush_hazards(self):
        self.e("s_nop 15"); self.e("s_nop 3")
    def label(self, name):
        self.ins.append(Ins(name + ':'))
    def newlabel(self, p="L"):
        self.nlabel += 1
        return f"{p}_{self.nlabel}"
    def mark(self, m):
        i = Ins(''); i.marker = m; self.ins.append(i)
    def vmcnt_for(self, tag):
        tags = tag if isinstance(tag, (list, set)) else [tag]
        last = -1
        for k, t in enumerate(self.vm):
            if t in tags: last = k
        if last < 0: return None
        return len(self.vm) - 1 - last
    def wait(self, tag=None, lgkm=None, vm0=False):
        parts = []
        if vm0:
            parts.append("vmcnt(0)"); self.vm = []
        elif tag is not None:
            n = self.vmcnt_for(tag)
            if n is not None:
                n = min(n, 63)
                parts.append(f"vmcnt({n})")
                self.vm = self.vm[len(self.vm) - n:] if n > 0 else []
        if lgkm is not None: parts.append(f"lgkmcnt({lgkm})")
        if parts: self.e("s_waitcnt " + " ".join(parts))
    def text(self, counter_sgpr="s98"):
        out = []
        i = 0
        ins = self.ins
        while i < len(ins):
            x = ins[i]
            if x.marker and isinstance(x.marker, tuple) and x.marker[0] == 'chunk':
                grp, period = x.marker[1], x.marker[2]
                chunks = []
                while ins[i].marker and isinstance(ins[i].marker, tuple) and ins[i].marker[0] == 'chunk' and ins[i].marker[1] == grp:
                    i += 1
                    c = []
                    while not (ins[i].marker and isinstance(ins[i].marker, tuple) and ins[i].marker[0] in ('chunk', 'endchunks')):
                        if ins[i].text: c.append(ins[i].text)
                        i += 1
                    chunks.append(c)
                assert ins[i].marker[0] == 'endchunks'
                i += 1
                out += self._fold(chunks, period, grp, counter_sgpr)
                continue
            if x.text: out.append(x.text)
            i += 1
        res = []
        for t in out:
            res.append(t if (t.endswith(':') or t.startswith('.')) else '    ' + t)
        return "\n".join(res)
    def _fold(self, chunks, P, grp, cs):
        out = []
        n = len(chunks); s = 0; k = 0
        while s < n:
            reps = 1
            while s + (reps + 1) * P <= n and all(chunks[s + j] == chunks[s + reps * P + j] for j in range(P)):
                reps += 1
            if reps >= 2:
                k += 1
                lab = f"LOOP_{grp}_{k}"
                out.append(f"s_mov_b32 {cs}, {reps}")
                out.append(".p2align 3")
                out.append(lab + ":")
                for j in range(P): out += chunks[s + j]
                out.append(f"s_sub_u32 {cs}, {cs}, 1")
                out.append(f"s_cmp_lg_u32 {cs}, 0")
                out.append(f"s_cbranch_scc1 {lab}")
                s += reps * P
            else:
                out += chunks[s]; s += 1
        return out

def interleave(st, mfmas, fillers, per_gap=1, lead=0):
    G = len(mfmas); F = len(fillers)
    counts = [0] * G
    if F <= G * per_gap:
        k = 0
        for g in range(G):
            c = min(per_gap, F - k); counts[g] = c; k += c
    else:
        for g in range(G):
            counts[g] = (g + 1) * F // G - g * F // G
    k = 0
    for g in range(G):
        st.e(mfmas[g])
        for _ in range(counts[g]):
            f = fillers[k]; k += 1
            emit_filler(st, f)
    assert k == F

def emit_filler(st, f):
    if isinstance(f, list):
        for x in f: emit_filler(st, x)
    elif isinstance(f, tuple):
        st.e(f[0], tag=f[1])
    elif callable(f):
        f()
    else:
        st.e(f)
```

```python
import sys, os, math, struct
sys.path.insert(0, os.path.dirname(os.path.abspath(__file__)))
from asmlib import *

NAME = "gated_mix__mha_block__mixer_gmlp__prompt"
MB = 1 << 20
WS_KV = 0
WS_ZN = 8 * MB
WS_XF = 16 * MB
WS_ST = 28 * MB
WS_G = 29 * MB
WS_FL = 29 * MB + 65536
WS_SP = 32 * MB
WS_TS = 30 * MB
WS_SIZE = 64 * MB
STAMPS = bool(os.environ.get('STAMPS'))

def f2u(x): return struct.unpack('<I', struct.pack('<f', x))[0]

S_WAVE, S_WR, S_WC, S_RB, S_CB = 's3', 's4', 's5', 's6', 's7'
SRD_X, SRD_WQKV, SRD_WIN, SRD_WSP, SRD_WO, SRD_WOUT, SRD_WS, SRD_OUT, SRD_BSP, SRD_GATE, SRD_DBG = [f"s[{8+4*i}:{11+4*i}]" for i in range(11)]
S_SOX, S_SOW, S_MX, S_MW = 's52', 's53', 's54', 's55'
ACC = 32
ZP = 192
TMP = 144
AQ = 128

def vr(b, n): return f"v[{b}:{b+n-1}]"
def ar(b, n): return f"a[{b}:{b+n-1}]"

def setup(st, nwg=256):
    st.e(f"s_cmp_ge_u32 s2, {nwg}")
    st.e("s_cbranch_scc1 " + st.endlabel)
    st.e("s_load_dwordx16 s[64:79], s[0:1], 0")
    st.e("s_load_dwordx8 s[80:87], s[0:1], 64")
    st.e("v_lshrrev_b32 v2, 6, v0")
    st.e("v_and_b32 v1, 63, v0")
    st.e(f"v_readfirstlane_b32 {S_WAVE}, v2")
    st.e("s_and_b32 s56, s2, 1")
    st.e("s_lshl_b32 s56, s56, 3")
    st.e("s_bfe_u32 s57, s2, 0x30003")
    st.e(f"s_or_b32 {S_RB}, s56, s57")
    st.e("s_bfe_u32 s56, s2, 0x20001")
    st.e("s_lshl_b32 s56, s56, 2")
    st.e("s_lshr_b32 s57, s2, 6")
    st.e(f"s_or_b32 {S_CB}, s56, s57")
    st.e(f"s_lshr_b32 {S_WR}, {S_WAVE}, 1")
    st.e(f"s_and_b32 {S_WC}, {S_WAVE}, 1")
    st.e("s_waitcnt lgkmcnt(0)")
    def srd(base, ptr, size):
        st.e(f"s_mov_b32 s{base}, s{ptr}")
        st.e(f"s_and_b32 s{base+1}, s{ptr+1}, 0xffff")
        st.e(f"s_mov_b32 s{base+2}, {size}")
        st.e(f"s_mov_b32 s{base+3}, 0x20000")
    srd(8, 64, 2048 * 1024 * 2)
    srd(12, 66, 1024 * 3072 * 2)
    srd(16, 72, 1024 * 3584 * 2)
    srd(20, 74, 2048 * 2048 * 2)
    srd(24, 68, 1024 * 1024 * 2)
    srd(28, 78, 1792 * 1024 * 2)
    srd(32, 86, WS_SIZE)
    srd(36, 82, 2048 * 1024 * 2)
    srd(40, 76, 4096)
    srd(44, 80, 2048)
    srd(48, 84, 256)

V_XD = 2
V_WD = 6
V_XR = 13
V_WR = 19
V_T = 25

def ldsaddr(base3, off):
    c = off >> 16
    return f"v{base3 + c}", off & 0xffff

def copies(st, b):
    st.e(f"v_add_u32 v{b+1}, 0x10000, v{b}")
    st.e(f"v_add_u32 v{b+2}, 0x20000, v{b}")

def setup_x_natural(st, rowstride):
    T = V_T
    st.e(f"s_lshl_b32 s56, {S_RB}, 7")
    st.e(f"s_lshl_b32 s57, {S_WAVE}, 5")
    st.e("s_add_u32 s56, s56, s57")
    st.e(f"v_lshrrev_b32 v{T}, 3, v1")
    st.e(f"v_add_u32 v{T}, s56, v{T}")
    st.e(f"s_mov_b32 s57, {rowstride}")
    st.e(f"v_mul_lo_u32 v{T}, v{T}, s57")
    st.e(f"v_lshrrev_b32 v{T+1}, 4, v1")
    st.e(f"v_and_b32 v{T+2}, 7, v1")
    st.e(f"v_xor_b32 v{T+1}, v{T+1}, v{T+2}")
    st.e(f"v_lshlrev_b32 v{T+1}, 4, v{T+1}")
    st.e(f"v_add_u32 v{V_XD}, v{T}, v{T+1}")
    st.e(f"v_xor_b32 v{T+1}, 64, v{T+1}")
    st.e(f"v_add_u32 v{T+1}, v{T}, v{T+1}")
    st.e(f"v_add_u32 v{V_XD+1}, {8*rowstride - 1024}, v{T+1}")
    st.e(f"v_add_u32 v{V_XD+2}, {16*rowstride - 2048}, v{V_XD}")
    st.e(f"v_add_u32 v{V_XD+3}, {24*rowstride - 3072}, v{T+1}")
    st.e(f"v_and_b32 v{T}, 15, v1")
    st.e(f"v_lshrrev_b32 v{T+1}, 1, v{T}")
    st.e(f"v_lshrrev_b32 v{T+2}, 4, v1")
    st.e(f"v_xor_b32 v{T+1}, v{T+1}, v{T+2}")
    st.e(f"v_lshlrev_b32 v{T+1}, 4, v{T+1}")
    st.e(f"v_lshl_add_u32 v{T+1}, v{T}, 7, v{T+1}")
    st.e(f"s_lshl_b32 s56, {S_WR}, 13")
    st.e(f"v_add_u32 v{V_XR}, s56, v{T+1}")
    st.e(f"v_xor_b32 v{V_XR+3}, 64, v{V_XR}")
    copies(st, V_XR); copies(st, V_XR + 3)
    st.e(f"s_lshl_b32 {S_MX}, {S_WAVE}, 12")

def xread_natural(slot, i, hh, dst):
    r, imm = ldsaddr(V_XR + 3 * hh, slot + i * 2048)
    return f"ds_read_b128 {dst}, {r} offset:{imm}"

def setup_w128_read(st):
    T = V_T
    st.e(f"v_lshrrev_b32 v{T}, 4, v1")
    st.e(f"v_bfe_u32 v{T+1}, v1, 2, 2")
    st.e(f"v_lshl_add_u32 v{T+2}, v{T}, 3, v{T+1}")
    st.e(f"v_lshlrev_b32 v{T+2}, 7, v{T+2}")
    st.e(f"v_and_b32 v{T+3}, 3, v1")
    st.e(f"v_lshl_add_u32 v{T+2}, v{T+3}, 3, v{T+2}")
    st.e(f"v_lshrrev_b32 v{T+1}, 1, v{T+1}")
    st.e(f"v_and_b32 v{T}, 1, v{T}")
    st.e(f"v_lshl_or_b32 v{T}, v{T}, 1, v{T+1}")
    st.e(f"s_lshl_b32 s56, {S_WC}, 1")
    st.e(f"v_xor_b32 v{T}, s56, v{T}")
    st.e(f"v_lshl_add_u32 v{V_WR}, v{T}, 5, v{T+2}")
    st.e(f"v_xor_b32 v{V_WR+3}, 32, v{V_WR}")
    copies(st, V_WR); copies(st, V_WR + 3)

def gemm(st, name, nst, NB, slotsz, dma, xread, wread, mf, MT, NT, pre_issued=False, hook=None, tail_hook=None, first_stamp=None, grp=None, after_issue=None):
    XF = lambda p, i: ar(p * 48 + i * 4, 4)
    WFb = lambda p, n: p * 48 + 16 + n * 4
    def reads(s, hh, p):
        slot = (s % NB) * slotsz
        out = []
        wl = [wread(slot, n, hh, WFb(p, n)) for n in range(NT)]
        xl = [xread(slot, i, hh, XF(p, i)) for i in range(MT)]
        out += wl[0] + xl
        for w in wl[1:]: out += w
        return out
    def mfs(s, hh, p):
        return [mf(s, hh, n, i, ar(WFb(p, n), 4), XF(p, i)) for n in range(NT) for i in range(MT)]
    if not pre_issued:
        for s in range(min(NB, nst)):
            for f in dma(s): emit_filler(st, f)
    if after_issue: after_issue(st)
    st.wait(tag=('st', name, 0))
    st.e("s_barrier")
    if first_stamp is not None: stamp(st, first_stamp)
    for r in reads(0, 0, 0): st.e(r)
    st.wait(lgkm=0)
    pend = []
    for s in range(nst):
        st.mark(('chunk', grp or name, NB))
        fl = merge(reads(s, 1, 1), pend)
        if hook: fl = hook(s, 0, fl)
        interleave(st, mfs(s, 0, 0), fl)
        if s + 1 < nst:
            st.wait(tag=('st', name, s + 1), lgkm=0)
        else:
            st.wait(lgkm=0)
        st.e("s_barrier")
        d = dma(s + NB) if s + NB < nst else []
        h = (len(d) + 1) // 2
        pend = d[h:]
        fl = merge(reads(s + 1, 0, 0) if s + 1 < nst else [], d[:h])
        if s + 1 == nst and tail_hook: fl = tail_hook()
        if hook: fl = hook(s, 1, fl)
        interleave(st, mfs(s, 1, 1), fl)
        if s + 1 < nst: st.wait(lgkm=0)
    st.mark(('endchunks',))

def merge(reads, dm):
    out = [[r] for r in reads]
    for d in dm:
        if isinstance(d, str) and d.startswith("s_") and out:
            out[-1].append(d)
        else:
            out.append([d])
    return out

def dma_x(name, slot, s, srd, inc):
    tag = ('st', name, s)
    b = [f"s_add_u32 m0, {S_MX}, {slot}"]
    for q in range(4):
        b.append((f"buffer_load_dwordx4 v{V_XD+q}, {srd}, {S_SOX} offen offset:{1024*q} lds", tag))
    b.append(f"s_add_u32 {S_SOX}, {S_SOX}, {inc}")
    return b

def dma_w(name, slot, s, srd, inc, n):
    tag = ('st', name, s)
    b = []
    for j in range(n):
        if j % 4 == 0: b.append(f"s_add_u32 m0, {S_MW}, {slot + 16384 + 1024 * j}")
        b.append((f"buffer_load_dwordx4 v{V_WD+j}, {srd}, {S_SOW} offen offset:{1024*(j%4)} lds", tag))
    b.append(f"s_add_u32 {S_SOW}, {S_SOW}, {inc}")
    return b

def p1a_setup(st):
    T = V_T
    setup_x_natural(st, 2048)
    setup_w128_read(st)
    st.e(f"v_lshrrev_b32 v{T}, 3, v1")
    st.e(f"v_mul_u32_u24 v{T}, 6144, v{T}")
    st.e(f"v_bfe_u32 v{T+1}, v1, 1, 2")
    st.e(f"v_bfe_u32 v{T+2}, v1, 4, 1")
    st.e(f"v_xor_b32 v{T+1}, v{T+1}, v{T+2}")
    st.e(f"v_lshl_add_u32 v{T}, v{T+1}, 5, v{T}")
    st.e(f"v_and_b32 v{T+1}, 1, v1")
    st.e(f"v_lshl_add_u32 v{T}, v{T+1}, 4, v{T}")
    st.e(f"v_xor_b32 v{T+1}, 64, v{T}")
    st.e(f"s_mul_i32 s56, {S_WAVE}, 6")
    st.e(f"s_lshl_b32 s58, {S_CB}, 7")
    for j in range(6):
        st.e(f"s_add_u32 s57, s56, {j}")
        st.e("s_lshr_b32 s59, s57, 3")
        st.e("s_lshl_b32 s59, s59, 11")
        st.e("s_and_b32 s57, s57, 7")
        st.e(f"s_mul_i32 s57, s57, {8*6144}")
        st.e("s_add_u32 s57, s57, s59")
        st.e("s_add_u32 s57, s57, s58")
        if j % 4: st.e(f"s_sub_u32 s57, s57, {1024*(j%4)}")
        st.e(f"v_add_u32 v{V_WD+j}, s57, v{T + (j & 1)}")
    st.e(f"s_mul_i32 {S_MW}, {S_WAVE}, 6144")
    st.e(f"s_mov_b32 {S_SOX}, 0")
    st.e(f"s_mov_b32 {S_SOW}, 0")

P1A_SLOT = 40960; P1A_NB = 4
def p1a_dma(s):
    slot = (s % P1A_NB) * P1A_SLOT
    return dma_x('p1a', slot, s, SRD_X, 128) + dma_w('p1a', slot, s, SRD_WQKV, 64 * 6144, 6)

def w128_read(segof, tof):
    def f(slot, n, hh, db):
        out = []
        for sec in range(2):
            r, imm = ldsaddr(V_WR + 3 * tof(n), slot + 16384 + segof(n) * 8192 + hh * 4096 + sec * 512)
            out.append(f"ds_read_b64_tr_b16 {ar(db + 2*sec, 2)}, {r} offset:{imm}")
        return out
    return f

def accr(n, i, base=ACC): return base + (n * 4 + i) * 4

def p1a_main(st, **kw):
    def mf(s, hh, n, i, wf, xf):
        a = vr(accr(n, i), 4)
        c = "0" if (s == 0 and hh == 0) else a
        return f"v_mfma_f32_16x16x32_bf16 {a}, {xf}, {wf}, {c}" if n >= 4 else f"v_mfma_f32_16x16x32_bf16 {a}, {wf}, {xf}, {c}"
    gemm(st, 'p1a', 16, P1A_NB, P1A_SLOT, p1a_dma, xread_natural, w128_read(lambda n: n // 2, lambda n: n % 2), mf, 4, 6, **kw)

QSCALE = math.log2(math.e) / math.sqrt(32.0)
def p1a_epilogue(st, sc=""):
    T = V_T
    st.e(f"s_lshl_b32 s56, {S_CB}, 1")
    st.e(f"s_add_u32 s56, s56, {S_WC}")
    st.e("s_lshl_b32 s56, s56, 6")
    st.e(f"s_lshl_b32 s57, {S_RB}, 2")
    st.e("s_add_u32 s56, s56, s57")
    st.e(f"s_lshl_b32 s57, {S_WR}, 1")
    st.e("s_add_u32 s56, s56, s57")
    st.e("s_lshl_b32 s56, s56, 12")
    if WS_KV: st.e(f"s_add_u32 s56, s56, {WS_KV}")
    st.e("s_add_u32 s57, s56, 4096")
    st.e(f"v_lshlrev_b32 v{T}, 4, v1")
    st.e(f"v_and_b32 v{T+1}, 0x33, v1")
    st.e(f"v_bfe_u32 v{T+2}, v1, 2, 1")
    st.e(f"v_lshl_or_b32 v{T+1}, v{T+2}, 3, v{T+1}")
    st.e(f"v_bfe_u32 v{T+2}, v1, 3, 1")
    st.e(f"v_lshl_or_b32 v{T+1}, v{T+2}, 2, v{T+1}")
    st.e(f"v_lshlrev_b32 v{T+1}, 4, v{T+1}")
    st.e(f"s_mov_b32 s58, {f2u(QSCALE)}")
    st.e("s_mov_b32 s59, s58")
    k = 0
    def frag(x, y):
        nonlocal k
        t = TMP + 4 * (k % 8); k += 1
        st.e(f"v_cvt_pk_bf16_f32 v{t}, v{x}, v{x+1}")
        st.e(f"v_cvt_pk_bf16_f32 v{t+1}, v{x+2}, v{x+3}")
        st.e(f"v_cvt_pk_bf16_f32 v{t+2}, v{y}, v{y+1}")
        st.e(f"v_cvt_pk_bf16_f32 v{t+3}, v{y+2}, v{y+3}")
        return t
    def swaps(t):
        st.e(f"v_permlane16_swap_b32 v{t}, v{t+2}")
        st.e(f"v_permlane16_swap_b32 v{t+1}, v{t+3}")
    ts = []
    for a in range(2):
        for ks in range(2):
            ts.append((frag(accr(2 + ks, 2 * a), accr(2 + ks, 2 * a + 1)), a, ks))
    for t, a, ks in ts: swaps(t)
    for t, a, ks in ts:
        st.e(f"buffer_store_dwordx4 {vr(t,4)}, v{T+1}, {SRD_WS}, s{56+a} offen offset:{1024*ks}{sc}", tag='kv')
    ts = []
    for i in range(4):
        ts.append((frag(accr(4, i), accr(5, i)), i))
    for t, i in ts: swaps(t)
    for t, i in ts:
        st.e(f"buffer_store_dwordx4 {vr(t,4)}, v{T}, {SRD_WS}, s{56+i//2} offen offset:{2048+1024*(i%2)}{sc}", tag='kv')
    for r in range(ACC, ACC + 32, 2):
        st.e(f"v_pk_mul_f32 {vr(r,2)}, {vr(r,2)}, s[58:59]")
    ts = []
    for a in range(2):
        for ks in range(2):
            ts.append((frag(accr(ks, 2 * a), accr(ks, 2 * a + 1)), a, ks))
    for t, a, ks in ts: swaps(t)
    for t, a, ks in ts:
        for j in range(4):
            st.e(f"v_accvgpr_write_b32 a{AQ + (a*2+ks)*4 + j}, v{t+j}")

P1B_SLOT = 45056; P1B_NB = 3
def p1b_setup(st, x_done=False):
    T = V_T
    if not x_done: setup_x_natural(st, 2048)
    st.e(f"s_mul_i32 s56, {S_WAVE}, {7*64}")
    st.e(f"s_mul_i32 s58, {S_CB}, 224")
    st.e("s_mov_b32 s59, 18725")
    for j in range(7):
        d = V_WD + j
        st.e(f"s_add_u32 s57, s56, {64*j}")
        st.e(f"v_add_u32 v{T}, s57, v1")
        st.e(f"v_mul_u32_u24 v{T+1}, s59, v{T}")
        st.e(f"v_lshrrev_b32 v{T+1}, 19, v{T+1}")
        st.e(f"v_mul_u32_u24 v{T+2}, 28, v{T+1}")
        st.e(f"v_sub_u32 v{T+2}, v{T}, v{T+2}")
        st.e(f"v_lshrrev_b32 v{T+3}, 1, v{T+2}")
        st.e(f"v_bfe_u32 v{T+4}, v{T+1}, 3, 1")
        st.e(f"v_xor_b32 v{T+3}, v{T+3}, v{T+4}")
        st.e(f"v_mul_u32_u24 v{d}, 7168, v{T+1}")
        st.e(f"v_lshl_add_u32 v{d}, v{T+3}, 5, v{d}")
        st.e(f"v_and_b32 v{T+2}, 1, v{T+2}")
        st.e(f"v_lshl_add_u32 v{d}, v{T+2}, 4, v{d}")
        st.e(f"v_mov_b32 v{T+4}, 0")
        st.e(f"v_mov_b32 v{T+5}, 3456")
        st.e(f"v_cmp_lt_u32 vcc, 3, v{T+3}")
        st.e(f"v_cndmask_b32 v{T+4}, v{T+4}, v{T+5}, vcc")
        st.e(f"v_mov_b32 v{T+5}, -96")
        st.e(f"v_cmp_lt_u32 vcc, 6, v{T+3}")
        st.e(f"v_cndmask_b32 v{T+4}, v{T+4}, v{T+5}, vcc")
        st.e(f"v_mov_b32 v{T+5}, 3360")
        st.e(f"v_cmp_lt_u32 vcc, 9, v{T+3}")
        st.e(f"v_cndmask_b32 v{T+4}, v{T+4}, v{T+5}, vcc")
        st.e(f"v_add_u32 v{d}, v{d}, v{T+4}")
        st.e(f"s_sub_u32 s57, s58, {1024*(j%4)}")
        st.e(f"v_add_u32 v{d}, s57, v{d}")
    st.e(f"v_lshrrev_b32 v{T}, 4, v1")
    st.e(f"v_bfe_u32 v{T+1}, v1, 2, 2")
    st.e(f"v_lshl_add_u32 v{T+2}, v{T}, 3, v{T+1}")
    st.e(f"v_mul_u32_u24 v{T+2}, 448, v{T+2}")
    st.e(f"v_and_b32 v{T+3}, 3, v1")
    st.e(f"v_lshl_add_u32 v{T+2}, v{T+3}, 3, v{T+2}")
    st.e(f"v_and_b32 v{T}, 1, v{T}")
    st.e(f"s_mul_i32 s56, {S_WC}, 7")
    st.e(f"v_xor_b32 v{T+1}, s56, v{T}")
    st.e(f"v_lshl_add_u32 v{V_WR}, v{T+1}, 5, v{T+2}")
    st.e("s_add_u32 s56, s56, 1")
    st.e(f"v_xor_b32 v{T+1}, s56, v{T}")
    st.e(f"v_lshl_add_u32 v{V_WR+3}, v{T+1}, 5, v{T+2}")
    st.e(f"v_subrev_u32 v{V_WR+3}, 32, v{V_WR+3}")
    copies(st, V_WR); copies(st, V_WR + 3)
    st.e(f"s_mul_i32 {S_MW}, {S_WAVE}, 7168")
    st.e(f"s_mov_b32 {S_SOX}, 0")
    st.e(f"s_mov_b32 {S_SOW}, 0")

def p1b_dma(s):
    slot = (s % P1B_NB) * P1B_SLOT
    return dma_x('p1b', slot, s, SRD_X, 128) + dma_w('p1b', slot, s, SRD_WIN, 64 * 7168, 7)

def p1b_wread(slot, n, hh, db):
    out = []
    for sec in range(2):
        r, imm = ldsaddr(V_WR + 3 * (n % 2), slot + 16384 + hh * 32 * 448 + sec * 4 * 448 + n * 32)
        out.append(f"ds_read_b64_tr_b16 {ar(db + 2*sec, 2)}, {r} offset:{imm}")
    return out

def mf_plain(base=ACC):
    def mf(s, hh, n, i, wf, xf):
        a = vr(accr(n, i, base), 4)
        c = "0" if (s == 0 and hh == 0) else a
        return f"v_mfma_f32_16x16x32_bf16 {a}, {wf}, {xf}, {c}"
    return mf

def p1b_main(st, **kw):
    gemm(st, 'p1b', 16, P1B_NB, P1B_SLOT, p1b_dma, xread_natural, p1b_wread, mf_plain(), 4, 7, **kw)

GC1 = -2.0 * math.sqrt(2.0 / math.pi) * math.log2(math.e)
GC2 = GC1 * 0.044715
def xreduce(st, r, t):
    st.e(f"v_mov_b32 v{t}, v{r}")
    st.e(f"v_permlane16_swap_b32 v{r}, v{t}")
    st.e(f"v_add_f32 v{r}, v{r}, v{t}")
    st.e(f"v_mov_b32 v{t}, v{r}")
    st.e(f"v_permlane32_swap_b32 v{r}, v{t}")
    st.e(f"v_add_f32 v{r}, v{r}, v{t}")

def p1b_epilogue(st, sc=""):
    T = V_T
    st.e(f"s_mov_b32 s56, {f2u(GC1)}"); st.e("s_mov_b32 s57, s56")
    st.e(f"s_mov_b32 s58, {f2u(GC2)}"); st.e("s_mov_b32 s59, s58")
    st.e("s_mov_b32 s60, 1.0"); st.e("s_mov_b32 s61, 1.0")
    st.e(f"v_mov_b32 v{T+1}, s56"); st.e(f"v_mov_b32 v{T+2}, s56")
    pairs = [accr(n, i) + 2 * h for n in range(7) for i in range(4) for h in range(2)]
    G = 4
    for g0 in range(0, len(pairs), G):
        grp = pairs[g0:g0 + G]
        tb = TMP + (g0 // G % 2) * 16
        for k, p in enumerate(grp): st.e(f"v_pk_mul_f32 {vr(tb+2*k,2)}, {vr(p,2)}, {vr(p,2)}")
        for k, p in enumerate(grp): st.e(f"v_pk_fma_f32 {vr(tb+2*k,2)}, {vr(tb+2*k,2)}, s[58:59], {vr(T+1,2)}")
        for k, p in enumerate(grp): st.e(f"v_pk_mul_f32 {vr(tb+2*k,2)}, {vr(tb+2*k,2)}, {vr(p,2)}")
        for k in range(2 * G): st.e(f"v_exp_f32 v{tb+k}, v{tb+k}")
        for k, p in enumerate(grp): st.e(f"v_pk_add_f32 {vr(tb+2*k,2)}, {vr(tb+2*k,2)}, s[60:61]")
        for k in range(2 * G): st.e(f"v_rcp_f32 v{tb+k}, v{tb+k}")
        for k, p in enumerate(grp): st.e(f"v_pk_mul_f32 {vr(p,2)}, {vr(tb+2*k,2)}, {vr(p,2)}")
        for k, p in enumerate(grp): st.e(f"v_cvt_pk_bf16_f32 v{ZP + (p - ACC)//2}, v{p}, v{p+1}")
    st.e(f"s_cmp_eq_u32 {S_WC}, 1")
    st.e("s_cselect_b32 s56, 1.0, 0"); st.e("s_mov_b32 s57, s56")
    st.e(f"s_mov_b32 s59, {f2u(-1.0/48)}")
    st.e(f"s_cselect_b32 s58, {f2u(-1.0/64)}, s59")
    MEAN = TMP; M2 = TMP + 4; A = TMP + 8; D = TMP + 16
    for i in range(4):
        a = A + 2 * i
        ps = [accr(n, i) + 2 * h for n in (4, 5, 6) for h in range(2)]
        st.e(f"v_pk_add_f32 {vr(a,2)}, {vr(accr(3,i),2)}, {vr(accr(3,i)+2,2)}")
        st.e(f"v_pk_fma_f32 {vr(a,2)}, {vr(a,2)}, s[56:57], {vr(ps[0],2)}")
        for p in ps[1:]: st.e(f"v_pk_add_f32 {vr(a,2)}, {vr(a,2)}, {vr(p,2)}")
        st.e(f"v_add_f32 v{MEAN+i}, v{a}, v{a+1}")
    for i in range(4): xreduce(st, MEAN + i, D + i)
    for i in range(4):
        st.e(f"v_mul_f32 v{D+2*i}, s58, v{MEAN+i}")
        st.e(f"v_mul_f32 v{D+2*i+1}, s58, v{MEAN+i}")
        st.e(f"v_sub_f32 v{MEAN+i}, 0, v{D+2*i}")
    for i in range(4):
        a = A + 2 * i; nm = vr(D + 2 * i, 2)
        p3 = [accr(3, i), accr(3, i) + 2]
        for p in p3: st.e(f"v_pk_add_f32 {vr(p,2)}, {vr(p,2)}, {nm}")
        st.e(f"v_pk_mul_f32 {vr(a,2)}, {vr(p3[0],2)}, {vr(p3[0],2)}")
        st.e(f"v_pk_fma_f32 {vr(a,2)}, {vr(p3[1],2)}, {vr(p3[1],2)}, {vr(a,2)}")
        st.e(f"v_pk_mul_f32 {vr(a,2)}, {vr(a,2)}, s[56:57]")
        ps = [accr(n, i) + 2 * h for n in (4, 5, 6) for h in range(2)]
        for p in ps: st.e(f"v_pk_add_f32 {vr(p,2)}, {vr(p,2)}, {nm}")
        for p in ps: st.e(f"v_pk_fma_f32 {vr(a,2)}, {vr(p,2)}, {vr(p,2)}, {vr(a,2)}")
        st.e(f"v_add_f32 v{M2+i}, v{a}, v{a+1}")
    for i in range(4): xreduce(st, M2 + i, D + 8 + i)
    st.e(f"v_lshrrev_b32 v{T}, 4, v1")
    for i in range(1, 4):
        st.e(f"v_cmp_eq_u32 vcc, {i}, v{T}")
        st.e(f"v_cndmask_b32 v{MEAN}, v{MEAN}, v{MEAN+i}, vcc")
        st.e(f"v_cndmask_b32 v{M2}, v{M2}, v{M2+i}, vcc")
    st.e(f"s_lshl_b32 s56, {S_RB}, 4")
    st.e(f"s_add_u32 s56, s56, {S_CB}")
    st.e("s_lshl_b32 s56, s56, 11")
    st.e(f"s_lshl_b32 s57, {S_WR}, 10")
    st.e("s_add_u32 s56, s56, s57")
    st.e(f"s_lshl_b32 s57, {S_WC}, 2")
    st.e("s_add_u32 s56, s56, s57")
    st.e(f"s_add_u32 s56, s56, {WS_ST}")
    st.e(f"v_lshlrev_b32 v{T}, 4, v1")
    st.e(f"buffer_store_dword v{MEAN}, v{T}, {SRD_WS}, s56 offen{sc}", tag='stat')
    st.e(f"buffer_store_dword v{M2}, v{T}, {SRD_WS}, s56 offen offset:8{sc}", tag='stat')

def k1b(st):
    p1b_setup(st)
    stamp(st, 1)
    p1b_main(st, first_stamp=2)
    stamp(st, 3)
    p1b_epilogue(st)
    stamp(st, 4)
    spill(st, ZREGS, 4)

LOG2E = math.log2(math.e)
def gate_issue(st):
    T = TMP
    st.e(f"s_lshl_b32 s56, {S_RB}, 7")
    st.e(f"s_lshl_b32 s57, {S_CB}, 3")
    st.e("s_add_u32 s56, s56, s57")
    st.e(f"s_lshl_b32 s57, {S_WAVE}, 1")
    st.e("s_add_u32 s62, s56, s57")
    st.e("s_lshl_b32 s56, s62, 11")
    st.e(f"v_lshlrev_b32 v{T+32}, 6, v1")
    st.e(f"v_and_b32 v{T+33}, 0x7ff, v{T+32}")
    for k in range(4):
        st.e(f"buffer_load_dwordx4 {vr(T+4*k,4)}, v{T+32}, {SRD_X}, s56 offen offset:{16*k}", tag='gate')
        st.e(f"buffer_load_dwordx4 {vr(T+16+4*k,4)}, v{T+33}, {SRD_GATE}, 0 offen offset:{16*k}", tag='gate')
def gate_finish(st, sc=""):
    T = TMP
    st.wait(tag='gate')
    a = T + 34
    st.e(f"v_mov_b32 v{a}, 0"); st.e(f"v_mov_b32 v{a+1}, 0")
    for k in range(16):
        st.e(f"v_dot2_f32_bf16 v{a + k % 2}, v{T+k}, v{T+16+k}, v{a + k % 2}")
    st.e(f"v_add_f32 v{a}, v{a}, v{a+1}")
    for m in ("quad_perm:[1,0,3,2]", "quad_perm:[2,3,0,1]", "row_half_mirror", "row_mirror"):
        st.e(f"v_add_f32_dpp v{a}, v{a}, v{a} {m} row_mask:0xf bank_mask:0xf")
    st.e(f"v_mov_b32 v{a+1}, v{a}")
    st.e(f"v_permlane16_swap_b32 v{a}, v{a+1}")
    st.e(f"v_add_f32 v{a}, v{a}, v{a+1}")
    st.e(f"v_mul_f32 v{a}, {f2u(-LOG2E)}, v{a}")
    st.e(f"v_exp_f32 v{a}, v{a}")
    st.e(f"v_add_f32 v{a}, 1.0, v{a}")
    st.e(f"v_rcp_f32 v{a}, v{a}")
    st.e(f"v_lshrrev_b32 v{a+1}, 5, v1")
    st.e(f"v_lshlrev_b32 v{a+1}, 2, v{a+1}")
    st.e("s_lshl_b32 s56, s62, 2")
    st.e(f"s_add_u32 s56, s56, {WS_G}")
    st.e(f"buffer_store_dword v{a}, v{a+1}, {SRD_WS}, s56 offen{sc}", tag='gst')

SA, SB, CA, CB, OA, OB, PA, PB, LA, LB, SEL = 32, 48, 64, 80, 96, 112, 128, 136, 144, 148, 152
AT = 156
V_L16 = 2
S_KV = 's52'
RING = 8
def m32(d, a, b, c): return f"v_mfma_f32_32x32x16_bf16 {vr(d,16)}, {a}, {b}, {c if c == '0' else vr(c,16)}"
def m16s(l, p, first=False): return f"v_mfma_f32_16x16x32_bf16 {vr(l,4)}, {vr(SEL,4)}, {vr(p,4)}, {'0' if first else vr(l,4)}"
def uK(u, ks): return ar(16 * (u % RING) + 8 + 4 * ks, 4)
def uV(u, kk): return ar(16 * (u % RING) + 4 * kk, 4)
def Qf(t, ks): return ar(AQ + (t * 2 + ks) * 4, 4)

def unit_loads(u):
    b = []
    for k in range(4):
        b.append((f"buffer_load_dwordx4 {ar(16*(u%RING)+4*k,4)}, v{V_L16}, {SRD_WS}, {S_KV} offen offset:{1024*k}", ('u', u)))
    b.append(f"s_add_u32 {S_KV}, {S_KV}, 4096")
    return b

def softmax_valu(S, P):
    out = []
    for i in range(16):
        out.append(f"v_exp_f32 v{S+i}, v{S+i}")
        if i >= 3 and i % 2 == 1:
            c = (i - 3) // 2
            out.append(f"v_cvt_pk_bf16_f32 v{P+c}, v{S+2*c}, v{S+2*c+1}")
    out.append(None)
    out.append(f"v_cvt_pk_bf16_f32 v{P+7}, v{S+14}, v{S+15}")
    return out

def att_phase(st, mf, valu, extra):
    extra = list(extra)
    nv = len([v for v in valu if v])
    G = len(mf)
    pos = [k * nv // G for k in range(G)] if G else []
    k = 0; cnt = 0
    for v in valu:
        if v is None:
            if extra: emit_filler(st, extra.pop(0))
            continue
        while k < G and pos[k] <= cnt:
            st.e(mf[k]); k += 1
        st.e(v); cnt += 1
        if extra and v.startswith("v_exp") and cnt % 3 == 2:
            emit_filler(st, extra.pop(0))
    while k < G: st.e(mf[k]); k += 1
    for x in extra: emit_filler(st, x)

def rowmax(st, S, d, t):
    st.e(f"v_max3_f32 v{d}, v{S}, v{S+1}, v{S+2}")
    for i in range(3, 15, 2): st.e(f"v_max3_f32 v{d}, v{S+i}, v{S+i+1}, v{d}")
    st.e(f"v_max_f32 v{d}, v{S+15}, v{d}")
    st.e(f"v_mov_b32 v{t}, v{d}")
    st.e(f"v_permlane32_swap_b32 v{d}, v{t}")
    st.e(f"v_max_f32 v{d}, v{d}, v{t}")

def p2_setup(st):
    st.e(f"v_lshlrev_b32 v{V_L16}, 4, v1")
    st.e(f"s_lshl_b32 s56, {S_CB}, 1")
    st.e(f"s_add_u32 s56, s56, {S_WC}")
    st.e("s_lshl_b32 s63, s56, 18")
    if WS_KV: st.e(f"s_add_u32 s63, s63, {WS_KV}")
    st.e(f"v_bfe_u32 v{AT}, v1, 4, 1")
    st.e(f"v_lshlrev_b32 v{AT}, 2, v{AT}")
    st.e(f"v_and_b32 v{AT+1}, 7, v1")
    st.e(f"v_cmp_eq_u32 vcc, v{AT}, v{AT+1}")
    st.e(f"v_mov_b32 v{AT}, 0x3f803f80")
    st.e(f"v_cndmask_b32 v{SEL}, 0, v{AT}, vcc")
    for k in range(1, 4): st.e(f"v_mov_b32 v{SEL+k}, v{SEL}")

def p2_prefetch(st):
    st.e(f"s_mov_b32 {S_KV}, s63")
    for ks in range(2):
        st.e(f"buffer_load_dwordx4 {uK(-1, ks)}, v{V_L16}, {SRD_WS}, {S_KV} offen offset:{1024*ks}", tag=('u', -1))
    st.e(f"s_add_u32 {S_KV}, {S_KV}, 2048")
    for u in range(RING - 1):
        for f in unit_loads(u): emit_filler(st, f)

def ln_load(st, batch):
    st.e(f"s_lshl_b32 s56, {S_RB}, 15")
    st.e(f"s_lshl_b32 s57, {S_WR}, 10")
    st.e("s_add_u32 s56, s56, s57")
    st.e(f"s_add_u32 s56, s56, {WS_ST + batch * 8 * 2048}")
    for k in range(8):
        if k == 2 or k == 4 or k == 6: st.e("s_add_u32 s56, s56, 4096")
        st.e(f"buffer_load_dwordx4 {vr(AT+4*k,4)}, v{V_L16}, {SRD_WS}, s56 offen offset:{2048*(k%2)}{st.sc_ld}", tag=('ln', batch))
LNA = 26
def ln_accum(st, batch):
    st.wait(tag=('ln', batch))
    if batch == 0:
        st.e(f"v_sub_f32 v24, 0, v{AT}"); st.e(f"v_sub_f32 v25, 0, v{AT}")
        for r in range(LNA, LNA + 6): st.e(f"v_mov_b32 v{r}, 0")
    for k in range(8): st.e(f"v_pk_add_f32 {vr(AT+4*k,2)}, {vr(AT+4*k,2)}, v[24:25]")
    for k in range(8):
        st.e(f"v_pk_add_f32 {vr(LNA,2)}, {vr(LNA,2)}, {vr(AT+4*k,2)}")
        st.e(f"v_pk_fma_f32 {vr(LNA+2,2)}, {vr(AT+4*k,2)}, {vr(AT+4*k,2)}, {vr(LNA+2,2)}")
        st.e(f"v_pk_add_f32 {vr(LNA+4,2)}, {vr(LNA+4,2)}, {vr(AT+4*k+2,2)}")
def ln_final(st, sc=""):
    A, B, M = LNA, LNA + 2, LNA + 4
    t = AT
    st.e(f"v_mul_f32 v{A}, {f2u(48.0)}, v{A}"); st.e(f"v_fmac_f32 v{A}, {f2u(64.0)}, v{A+1}")
    st.e(f"v_mul_f32 v{B}, {f2u(48.0)}, v{B}"); st.e(f"v_fmac_f32 v{B}, {f2u(64.0)}, v{B+1}")
    st.e(f"v_add_f32 v{M}, v{M}, v{M+1}")
    st.e(f"v_add_f32 v{M}, v{M}, v{B}")
    st.e(f"v_mul_f32 v{A+1}, {f2u(1.0/1792)}, v{A}")
    st.e(f"v_fma_f32 v{M}, -v{A}, v{A+1}, v{M}")
    st.e(f"v_mul_f32 v{M}, {f2u(1.0/1792)}, v{M}")
    st.e(f"v_max_f32 v{M}, 0, v{M}")
    st.e(f"v_add_f32 v{M}, {f2u(1e-5)}, v{M}")
    st.e(f"v_rsq_f32 v{M}, v{M}")
    st.e(f"v_sub_f32 v{A}, v24, v{A+1}")
    st.e(f"v_mul_f32 v{A}, v{A}, v{M}")
    st.e(f"v_and_b32 v{B}, 15, v1")
    st.e(f"v_lshlrev_b32 v{B}, 2, v{B}")
    for i in range(4):
        st.e(f"ds_bpermute_b32 v{t+2*i}, v{B}, v{M} offset:{64*i}")
        st.e(f"ds_bpermute_b32 v{t+2*i+1}, v{B}, v{A} offset:{64*i}")
    st.e(f"v_bfe_u32 v{B}, v1, 2, 1"); st.e(f"v_lshlrev_b32 v{B}, 9, v{B}")
    st.e(f"v_bfe_u32 v{B+1}, v1, 3, 1"); st.e(f"v_lshl_or_b32 v{B}, v{B+1}, 7, v{B}")
    st.e(f"v_and_b32 v{B+1}, 3, v1"); st.e(f"v_lshl_or_b32 v{B}, v{B+1}, 5, v{B}")
    st.e(f"v_lshrrev_b32 v{B+1}, 4, v1"); st.e(f"v_lshl_or_b32 v{B}, v{B+1}, 3, v{B}")
    st.e(f"s_mul_i32 s56, {S_CB}, 458752")
    st.e(f"s_lshl_b32 s57, {S_RB}, 1"); st.e(f"s_add_u32 s57, s57, {S_WR}")
    st.e("s_mul_i32 s57, s57, 14336")
    st.e("s_add_u32 s56, s56, s57")
    st.e(f"s_lshl_b32 s57, {S_WC}, 12")
    st.e("s_add_u32 s56, s56, s57")
    st.e(f"s_add_u32 s56, s56, {WS_ZN}")
    st.e("s_add_u32 s57, s56, 7168")
    st.e("s_sub_u32 s58, s56, 1024"); st.e("s_sub_u32 s59, s57, 1024")
    st.e(f"s_cmp_eq_u32 {S_WC}, 1")
    st.e(f"s_cselect_b32 s58, s58, {WS_SIZE}"); st.e(f"s_cselect_b32 s59, s59, {WS_SIZE}")
    st.e("s_mov_b32 s60, 0xffff0000")
    st.wait(lgkm=0)
    k = 0
    for j in (4, 5, 6, 3):
        for i in range(4):
            u = t + 8 + 8 * (k % 3); k += 1
            z = ZP + (j * 4 + i) * 2
            for h in range(2):
                st.e(f"v_lshlrev_b32 v{u+2*h}, 16, v{z+h}")
                st.e(f"v_and_b32 v{u+2*h+1}, s60, v{z+h}")
            for h in range(2):
                st.e(f"v_pk_fma_f32 {vr(u+2*h,2)}, {vr(u+2*h,2)}, {vr(t+2*i,2)}, {vr(t+2*i,2)} op_sel:[0,0,1] op_sel_hi:[1,0,1]")
            for h in range(2):
                st.e(f"v_cvt_pk_bf16_f32 v{u+4+h}, v{u+2*h}, v{u+2*h+1}")
            so = (56 if j >= 4 else 58) + i // 2
            off = (i % 2) * 256 + (j - 4) * 1024 if j >= 4 else (i % 2) * 256
            st.e(f"buffer_store_dwordx2 {vr(u+4,2)}, v{B}, {SRD_WS}, s{so} offen offset:{off}{sc}", tag='zn')

def p2_main(st, hooks=None, sc=""):
    hooks = hooks or {}
    st.wait(tag=('u', -1))
    st.e(m32(SA, uK(-1, 0), Qf(0, 0), '0')); st.e(m32(SA, uK(-1, 1), Qf(0, 1), SA))
    st.e(m32(SB, uK(-1, 0), Qf(1, 0), '0')); st.e(m32(SB, uK(-1, 1), Qf(1, 1), SB))
    rowmax(st, SA, AT, AT + 1)
    for i in range(16): st.e(f"v_sub_f32 v{CA+i}, 0, v{AT}")
    rowmax(st, SB, AT + 2, AT + 3)
    for i in range(16): st.e(f"v_sub_f32 v{CB+i}, 0, v{AT+2}")
    st.e(m32(SA, uK(-1, 0), Qf(0, 0), CA)); st.e(m32(SA, uK(-1, 1), Qf(0, 1), SA))
    st.e("s_nop 7")
    for j in range(64):
        st.mark(('chunk', 'att', RING))
        if j in hooks: hooks[j](st)
        mf = [m32(SB, uK(j - 1, 0), Qf(1, 0), CB), m32(SB, uK(j - 1, 1), Qf(1, 1), SB)]
        if j > 0:
            f = (j == 1)
            mf += [m32(OB, uV(j - 1, 0), vr(PB, 4), '0' if f else OB), m16s(LB, PB, f), m32(OB, uV(j - 1, 1), vr(PB + 4, 4), OB), m16s(LB, PB + 4)]
        att_phase(st, mf, softmax_valu(SA, PA), [])
        st.wait(tag=('u', j))
        mf = []
        if j < 63: mf += [m32(SA, uK(j, 0), Qf(0, 0), CA), m32(SA, uK(j, 1), Qf(0, 1), SA)]
        f = (j == 0)
        mf += [m32(OA, uV(j, 0), vr(PA, 4), '0' if f else OA), m16s(LA, PA, f), m32(OA, uV(j, 1), vr(PA + 4, 4), OA), m16s(LA, PA + 4)]
        att_phase(st, mf, softmax_valu(SB, PB), unit_loads(j + RING - 1) if j + RING - 1 < 64 else [])
    st.mark(('endchunks',))
    st.e(m32(OB, uV(63, 0), vr(PB, 4), OB)); st.e(m16s(LB, PB)); st.e(m32(OB, uV(63, 1), vr(PB + 4, 4), OB)); st.e(m16s(LB, PB + 4))
    t = AT
    st.e(f"v_max_f32 v{t}, v{LA}, v{LB}")
    st.e(f"v_mul_f32 v{t+2}, 0, v{LA}"); st.e(f"v_mul_f32 v{t+3}, 0, v{LB}")
    for r in range(OA, OA + 32, 2): st.e(f"v_pk_fma_f32 {vr(t+2,2)}, {vr(r,2)}, 0, {vr(t+2,2)}")
    st.e(f"v_add_f32 v{t}, v{t}, v{t+2}")
    st.e(f"v_add_f32 v{t}, v{t}, v{t+3}")
    st.e(f"v_cmp_nge_f32 vcc, {f2u(2.0**30)}, v{t}")
    ok = st.newlabel("ATT_OK")
    st.e(f"s_cbranch_vccz {ok}")
    p2_fallback(st)
    st.flush_hazards()
    st.label(ok)
    st.e(f"v_rcp_f32 v{t}, v{LA}"); st.e(f"v_rcp_f32 v{t+2}, v{LB}")
    st.e(f"s_mul_i32 s56, {S_RB}, {88*8192}")
    st.e("s_lshr_b32 s57, s63, 5")
    st.e("s_add_u32 s56, s56, s57")
    st.e(f"s_lshl_b32 s57, {S_WR}, 12")
    st.e("s_add_u32 s56, s56, s57")
    st.e(f"s_add_u32 s56, s56, {WS_XF - (WS_KV >> 5)}")
    st.e(f"v_bfe_u32 v{t+4}, v1, 4, 1"); st.e(f"v_lshlrev_b32 v{t+4}, 10, v{t+4}")
    st.e(f"v_lshrrev_b32 v{t+5}, 5, v1"); st.e(f"v_lshl_or_b32 v{t+4}, v{t+5}, 8, v{t+4}")
    st.e(f"v_and_b32 v{t+5}, 15, v1"); st.e(f"v_lshl_or_b32 v{t+4}, v{t+5}, 4, v{t+4}")
    for q, (O, rr) in enumerate(((OA, t), (OB, t + 2))):
        for r in range(0, 16, 2):
            st.e(f"v_pk_mul_f32 {vr(O+r,2)}, {vr(O+r,2)}, {vr(rr,2)} op_sel_hi:[1,0]")
        P = PA + 8 * q
        for c in range(8): st.e(f"v_cvt_pk_bf16_f32 v{P+c}, v{O+2*c}, v{O+2*c+1}")
        for a in (0, 4):
            st.e(f"v_permlane32_swap_b32 v{P+a}, v{P+a+2}")
            st.e(f"v_permlane32_swap_b32 v{P+a+1}, v{P+a+3}")
        for a in (0, 4):
            st.e(f"buffer_store_dwordx4 {vr(P+a,4)}, v{t+4}, {SRD_WS}, s56 offen offset:{q*2048 + a*128}{sc}", tag='o')

def p2_fallback(st):
    t = AT
    MA, MB_ = t + 8, t + 9
    st.e("s_waitcnt vmcnt(0)")
    st.e(f"v_mov_b32 v{MA}, {f2u(-3.0e38)}"); st.e(f"v_mov_b32 v{MB_}, {f2u(-3.0e38)}")
    for r in list(range(OA, OA + 32)) + list(range(LA, LA + 8)): st.e(f"v_mov_b32 v{r}, 0")
    st.e(f"s_mov_b32 {S_KV}, s63")
    st.e("s_mov_b32 s58, 64")
    lp = st.newlabel("ATT_FB")
    st.flush_hazards()
    st.label(lp)
    for k in range(4):
        st.e(f"buffer_load_dwordx4 {ar(4*k,4)}, v{V_L16}, {SRD_WS}, {S_KV} offen offset:{1024*k}", count=False)
    st.e(f"s_add_u32 {S_KV}, {S_KV}, 4096")
    st.e("s_waitcnt vmcnt(0)")
    for q, (S, O, P, L, M) in enumerate(((SA, OA, PA, LA, MA), (SB, OB, PB, LB, MB_))):
        st.e(m32(S, ar(0, 4), Qf(q, 0), '0')); st.e(m32(S, ar(4, 4), Qf(q, 1), S))
        rowmax(st, S, t, t + 1)
        st.e(f"v_max_f32 v{t}, v{t}, v{M}")
        st.e(f"v_sub_f32 v{t+1}, v{M}, v{t}")
        st.e(f"v_exp_f32 v{t+1}, v{t+1}")
        st.e(f"v_mov_b32 v{M}, v{t}")
        for r in range(16): st.e(f"v_mul_f32 v{O+r}, v{t+1}, v{O+r}")
        st.e(f"v_mul_f32 v{L}, v{t+1}, v{L}")
        for r in range(16): st.e(f"v_sub_f32 v{S+r}, v{S+r}, v{M}")
        for r in range(16): st.e(f"v_exp_f32 v{S+r}, v{S+r}")
        for c in range(8): st.e(f"v_cvt_pk_bf16_f32 v{P+c}, v{S+2*c}, v{S+2*c+1}")
        st.e(m32(O, ar(8, 4), vr(P, 4), O)); st.e(m16s(L, P)); st.e(m32(O, ar(12, 4), vr(P + 4, 4), O)); st.e(m16s(L, P + 4))
    st.flush_hazards()
    st.e("s_sub_u32 s58, s58, 1")
    st.e("s_cmp_lg_u32 s58, 0")
    st.e(f"s_cbranch_scc1 {lp}")

def k2(st):
    st.sc_ld = ""
    p2_setup(st)
    p2_prefetch(st)
    spill(st, QREGS + ZREGS, 0, load=True)
    stamp(st, 1)
    hooks = {24: lambda st: ln_load(st, 0), 27: lambda st: (ln_accum(st, 0), ln_load(st, 1)), 30: lambda st: (ln_accum(st, 1), ln_final(st))}
    p2_main(st, hooks)
    stamp(st, 3)

P3_SLOT = 30720; P3_NB = 5
V_B = 248
def p3_setup(st):
    setup_x_natural(st, 4096)
    st.e(f"v_lshlrev_b32 v{V_WD}, 4, v1")
    st.e(f"s_lshl_b32 s56, {S_WC}, 12")
    st.e(f"v_lshlrev_b32 v{V_WR}, 3, v1")
    st.e(f"v_add_u32 v{V_WR}, s56, v{V_WR}")
    copies(st, V_WR)
    st.e(f"s_mul_i32 {S_MW}, {S_WAVE}, 3584")
    st.e(f"s_mul_i32 {S_SOW}, {S_CB}, 458752")
    st.e(f"s_add_u32 {S_SOW}, {S_SOW}, {S_MW}")
    st.e(f"s_add_u32 {S_SOW}, {S_SOW}, {WS_ZN}")
    st.e(f"s_mov_b32 {S_SOX}, 0")
    st.e(f"s_lshl_b32 s56, {S_RB}, 8"); st.e(f"s_lshl_b32 s57, {S_WR}, 7"); st.e("s_add_u32 s56, s56, s57")
    st.e(f"v_and_b32 v{V_T}, 15, v1"); st.e(f"v_lshlrev_b32 v{V_T}, 1, v{V_T}")
    for i in range(4):
        st.e(f"buffer_load_ushort v{V_B+i}, v{V_T}, {SRD_BSP}, s56 offen offset:{32*i}", tag='bsp')

def p3_dma(s):
    slot = (s % P3_NB) * P3_SLOT
    tag = ('st', 'p3', s)
    b = dma_x('p3', slot, s, SRD_WSP, 128)
    b.append(f"s_add_u32 m0, {S_MW}, {slot + 16384}")
    for j in range(3):
        b.append((f"buffer_load_dwordx4 v{V_WD}, {SRD_WS}, {S_SOW} offen offset:{1024*j} lds", tag))
    b.append(["s_mov_b32 exec_hi, 0", (f"buffer_load_dwordx4 v{V_WD}, {SRD_WS}, {S_SOW} offen offset:3072 lds", tag), "s_mov_b32 exec_hi, -1"])
    b.append(f"s_add_u32 {S_SOW}, {S_SOW}, 14336")
    return b

def p3_wread(slot, n, hh, db):
    out = []
    for sec in range(2):
        r, imm = ldsaddr(V_WR, slot + 16384 + hh * 7168 + n * 1024 + sec * 512)
        out.append(f"ds_read_b64_tr_b16 {ar(db + 2*sec, 2)}, {r} offset:{imm}")
    return out

def p3_epilogue(st, NT, sc=""):
    T = V_T
    st.wait(tag='bsp')
    for i in range(4): st.e(f"v_lshlrev_b32 v{V_B+i}, 16, v{V_B+i}")
    st.e(f"v_bfe_u32 v{T}, v1, 4, 1"); st.e(f"v_lshlrev_b32 v{T}, 10, v{T}")
    st.e(f"v_lshrrev_b32 v{T+1}, 5, v1"); st.e(f"v_lshl_or_b32 v{T}, v{T+1}, 8, v{T}")
    st.e(f"v_and_b32 v{T+1}, 15, v1"); st.e(f"v_lshl_or_b32 v{T}, v{T+1}, 4, v{T}")
    st.e(f"s_mul_i32 s56, {S_RB}, {88*8192}")
    st.e(f"s_lshl_b32 s57, {S_WR}, 12")
    st.e("s_add_u32 s56, s56, s57")
    st.e(f"s_add_u32 s56, s56, {WS_XF + 32*8192}")
    st.e(f"s_mul_i32 s57, {S_CB}, 7")
    if NT == 3: st.e("s_add_u32 s57, s57, 4")
    st.e("s_mov_b32 s60, 0xffff0000")
    k = 0
    for n in range(NT):
        st.e(f"s_add_u32 s58, s57, {n}")
        st.e("s_lshr_b32 s59, s58, 1"); st.e("s_lshl_b32 s59, s59, 13")
        st.e("s_and_b32 s58, s58, 1"); st.e("s_lshl_b32 s58, s58, 9")
        st.e("s_add_u32 s58, s58, s59"); st.e("s_add_u32 s58, s58, s56")
        for ip in (0, 2):
            u = TMP + 16 * (k % 2); k += 1
            for d in range(2):
                i = ip + d; a = accr(n, i); z = ZP + (n * 4 + i) * 2
                for h in range(2):
                    st.e(f"v_lshlrev_b32 v{u+4*d+2*h}, 16, v{z+h}")
                    st.e(f"v_and_b32 v{u+4*d+2*h+1}, s60, v{z+h}")
                bp = V_B + (i // 2) * 2
                sel = "op_sel_hi:[1,0]" if i % 2 == 0 else "op_sel:[0,1] op_sel_hi:[1,1]"
                for h in range(2): st.e(f"v_pk_add_f32 {vr(a+2*h,2)}, {vr(a+2*h,2)}, {vr(bp,2)} {sel}")
                for h in range(2): st.e(f"v_pk_mul_f32 {vr(a+2*h,2)}, {vr(a+2*h,2)}, {vr(u+4*d+2*h,2)}")
                for h in range(2): st.e(f"v_cvt_pk_bf16_f32 v{u+8+2*d+h}, v{a+2*h}, v{a+2*h+1}")
            st.e(f"v_permlane16_swap_b32 v{u+8}, v{u+10}")
            st.e(f"v_permlane16_swap_b32 v{u+9}, v{u+11}")
            st.e(f"buffer_store_dwordx4 {vr(u+8,4)}, v{T}, {SRD_WS}, s58 offen offset:{ip*1024}{sc}", tag='u', count=(n < 3))

def p3_all(st, sc="", pre_issued=False, tail=None):
    if not pre_issued:
        for s in range(P3_NB):
            for f in p3_dma(s): emit_filler(st, f)
    l1 = st.newlabel("P3_WC1"); le = st.newlabel("P3_END")
    st.e(f"s_cmp_eq_u32 {S_WC}, 1")
    st.e(f"s_cbranch_scc1 {l1}")
    vm0 = list(st.vm)
    res = []
    for NT in (4, 3):
        st.vm = list(vm0)
        if NT == 3: st.label(l1)
        dm = lambda s: p3_dma(s)
        gemm(st, 'p3', 32, P3_NB, P3_SLOT, dm, xread_natural, p3_wread, mf_plain(), 4, NT, pre_issued=True, first_stamp=2, grp=f"p3_{NT}", tail_hook=tail)
        stamp(st, 3)
        p3_epilogue(st, NT, sc)
        res.append(list(st.vm))
        st.flush_hazards() if NT == 4 else None
        if NT == 4: st.e(f"s_branch {le}")
    assert res[0] == res[1], (res[0], res[1])
    st.flush_hazards()
    st.label(le)

def k3(st):
    p3_setup(st)
    spill(st, ZREGS, 4, load=True)
    stamp(st, 1)
    p3_all(st)
    stamp(st, 4)

P4_SLOT = 24576; P4_NB = 6
def p4_setup(st):
    T = V_T
    st.e(f"v_lshlrev_b32 v{V_XD}, 4, v1")
    st.e(f"s_lshl_b32 {S_MX}, {S_WAVE}, 12")
    st.e(f"s_lshl_b32 s56, {S_WR}, 12")
    st.e(f"v_add_u32 v{V_XR}, s56, v{V_XD}")
    copies(st, V_XR)
    st.e(f"s_mul_i32 {S_SOX}, {S_RB}, {88*8192}")
    st.e(f"s_add_u32 {S_SOX}, {S_SOX}, {S_MX}")
    st.e(f"s_add_u32 {S_SOX}, {S_SOX}, {WS_XF}")
    setup_w128_read(st)
    st.e(f"v_lshrrev_b32 v{T}, 3, v1")
    st.e(f"v_lshlrev_b32 v{T}, 11, v{T}")
    st.e(f"v_bfe_u32 v{T+1}, v1, 1, 2")
    st.e(f"v_bfe_u32 v{T+2}, v1, 4, 1")
    st.e(f"v_xor_b32 v{T+1}, v{T+1}, v{T+2}")
    st.e(f"v_lshl_add_u32 v{T}, v{T+1}, 5, v{T}")
    st.e(f"v_and_b32 v{T+1}, 1, v1")
    st.e(f"v_lshl_add_u32 v{T}, v{T+1}, 4, v{T}")
    st.e(f"s_lshl_b32 s56, {S_WAVE}, 15")
    st.e(f"s_lshl_b32 s57, {S_CB}, 7")
    st.e("s_add_u32 s56, s56, s57")
    st.e(f"v_add_u32 v{V_WD}, s56, v{T}")
    st.e(f"v_xor_b32 v{T}, 64, v{T}")
    st.e(f"s_add_u32 s56, s56, {8*2048 - 1024}")
    st.e(f"v_add_u32 v{V_WD+1}, s56, v{T}")
    st.e(f"s_lshl_b32 {S_MW}, {S_WAVE}, 11")
    st.e(f"s_mov_b32 {S_SOW}, 0")

def p4_gate_load(st, sc=""):
    st.e(f"s_lshl_b32 s56, {S_RB}, 9"); st.e(f"s_lshl_b32 s57, {S_WR}, 8"); st.e("s_add_u32 s56, s56, s57")
    st.e(f"s_add_u32 s56, s56, {WS_G}")
    st.e(f"v_and_b32 v{V_T}, 15, v1"); st.e(f"v_lshlrev_b32 v{V_T}, 2, v{V_T}")
    for i in range(4):
        st.e(f"buffer_load_dword v{V_B+i}, v{V_T}, {SRD_WS}, s56 offen offset:{64*i}{sc}", tag='gld')

def p4_dma(s):
    slot = (s % P4_NB) * P4_SLOT
    tag = ('st', 'p4', s)
    b = [f"s_add_u32 m0, {S_MX}, {slot}"]
    for q in range(4):
        b.append((f"buffer_load_dwordx4 v{V_XD}, {SRD_WS}, {S_SOX} offen offset:{1024*q} lds", tag))
    b.append(f"s_add_u32 {S_SOX}, {S_SOX}, 16384")
    w = dma_w('p4', slot, s, SRD_WO if s < 16 else SRD_WOUT, 64 * 2048, 2)
    if s == 15: w[-1] = f"s_mov_b32 {S_SOW}, 0"
    return b + w

def p4_xread(slot, i, hh, dst):
    r, imm = ldsaddr(V_XR, slot + hh * 8192 + i * 1024)
    return f"ds_read_b128 {dst}, {r} offset:{imm}"

def p4_main(st, **kw):
    def mf(s, hh, n, i, wf, xf):
        a = vr(accr(n, i, ACC if s < 16 else ACC + 32), 4)
        c = "0" if (s in (0, 16) and hh == 0) else a
        return f"v_mfma_f32_16x16x32_bf16 {a}, {wf}, {xf}, {c}"
    gemm(st, 'p4', 44, P4_NB, P4_SLOT, p4_dma, p4_xread, w128_read(lambda n: 0, lambda n: n), mf, 4, 2, **kw)

def p4_epilogue(st):
    T = V_T
    st.wait(tag='gld')
    st.e(f"v_and_b32 v{T}, 15, v1"); st.e(f"v_lshlrev_b32 v{T}, 11, v{T}")
    st.e(f"v_bfe_u32 v{T+1}, v1, 4, 1"); st.e(f"v_lshl_or_b32 v{T}, v{T+1}, 5, v{T}")
    st.e(f"v_lshrrev_b32 v{T+1}, 5, v1"); st.e(f"v_lshl_or_b32 v{T}, v{T+1}, 4, v{T}")
    st.e(f"s_lshl_b32 s56, {S_RB}, 18"); st.e(f"s_lshl_b32 s57, {S_WR}, 17"); st.e("s_add_u32 s56, s56, s57")
    st.e(f"s_lshl_b32 s57, {S_CB}, 7"); st.e("s_add_u32 s56, s56, s57")
    st.e(f"s_lshl_b32 s57, {S_WC}, 6"); st.e("s_add_u32 s56, s56, s57")
    for i in range(4):
        u = TMP + 4 * i
        bp = V_B + (i // 2) * 2
        sel = "op_sel_hi:[1,0,1]" if i % 2 == 0 else "op_sel:[0,1,0] op_sel_hi:[1,1,1]"
        for n in range(2):
            a = accr(n, i); b = a + 32
            for h in range(2): st.e(f"v_pk_add_f32 {vr(a+2*h,2)}, {vr(a+2*h,2)}, {vr(b+2*h,2)} neg_lo:[0,1] neg_hi:[0,1]")
            for h in range(2): st.e(f"v_pk_fma_f32 {vr(a+2*h,2)}, {vr(a+2*h,2)}, {vr(bp,2)}, {vr(b+2*h,2)} {sel}")
            for h in range(2): st.e(f"v_cvt_pk_bf16_f32 v{u+2*n+h}, v{a+2*h}, v{a+2*h+1}")
        st.e(f"v_permlane16_swap_b32 v{u}, v{u+2}")
        st.e(f"v_permlane16_swap_b32 v{u+1}, v{u+3}")
        st.e(f"buffer_store_dwordx4 {vr(u,4)}, v{T}, {SRD_OUT}, s56 offen", tag='out')
        if i < 3: st.e("s_add_u32 s56, s56, 32768")

def k4(st):
    p4_setup(st)
    p4_gate_load(st)
    stamp(st, 1)
    p4_main(st, first_stamp=2)
    stamp(st, 3)
    p4_epilogue(st)
    stamp(st, 4)

def spill_addr(st):
    st.e(f"s_lshl_b32 s56, s2, 2")
    st.e(f"s_add_u32 s56, s56, {S_WAVE}")
    st.e(f"s_mul_i32 s56, s56, {18*1024}")
    st.e(f"s_add_u32 s56, s56, {WS_SP}")
    st.e(f"v_lshlrev_b32 v{V_T}, 4, v1")
def spill(st, regs4, idx0, load=False):
    spill_addr(st)
    for k, r in enumerate(regs4):
        idx = idx0 + k
        st.e(f"s_add_u32 s57, s56, {idx*1024}")
        op = "buffer_load_dwordx4" if load else "buffer_store_dwordx4"
        st.e(f"{op} {r}, v{V_T}, {SRD_WS}, s57 offen", tag='spill')
    st.wait(vm0=True)
QREGS = [ar(AQ + 4 * k, 4) for k in range(4)]
ZREGS = [vr(ZP + 4 * k, 4) for k in range(14)]

def stamp(st, idx):
    if not STAMPS: return
    st.e("s_memrealtime s[96:97]")
    st.e("s_waitcnt lgkmcnt(0)")
    st.e(f"s_mov_b32 s{88+idx}, s96")
    st.nstamp = max(getattr(st, 'nstamp', 0), idx + 1)
def write_stamps(st, kidx):
    if not STAMPS: return
    st.e("s_waitcnt vmcnt(0)")
    stamp(st, 7)
    st.e(f"s_lshl_b32 s56, s2, 2")
    st.e(f"s_add_u32 s56, s56, {S_WAVE}")
    st.e(f"s_lshl_b32 s56, s56, 5")
    st.e(f"s_add_u32 s56, s56, {WS_TS + kidx * 32768}")
    st.e("v_mov_b32 v2, 0")
    for i in range(8):
        st.e(f"v_mov_b32 v3, s{88+i}")
        st.e(f"buffer_store_dword v3, v2, {SRD_WS}, s56 offen offset:{4*i}")

def kernel_text(kname, body, kidx=0):
    st = Stream()
    st.endlabel = f"END_{kname}"
    if STAMPS:
        for i in range(8): st.e(f"s_mov_b32 s{88+i}, 0")
    stamp(st, 0)
    setup(st)
    body(st)
    write_stamps(st, kidx)
    st.label(st.endlabel)
    st.e("s_endpgm")
    hdr = f".globl {kname}\n.p2align 8\n.type {kname},@function\n{kname}:\n"
    return hdr + st.text() + "\n", st

def descriptor(kname):
    return f""".p2align 6
.amdhsa_kernel {kname}
  .amdhsa_next_free_vgpr 512
  .amdhsa_next_free_sgpr 102
  .amdhsa_accum_offset 256
  .amdhsa_group_segment_fixed_size 0
  .amdhsa_kernarg_size 96
  .amdhsa_user_sgpr_count 2
  .amdhsa_user_sgpr_kernarg_segment_ptr 1
  .amdhsa_system_sgpr_workgroup_id_x 1
  .amdhsa_float_denorm_mode_32 3
.end_amdhsa_kernel
"""

def k1a(st):
    p1a_setup(st)
    stamp(st, 1)
    gate_issue(st)
    p1a_main(st, first_stamp=2, after_issue=gate_finish)
    stamp(st, 3)
    p1a_epilogue(st)
    stamp(st, 4)
    spill(st, QREGS, 0)

def build(kernels):
    ref = open(os.path.join(os.path.dirname(os.path.abspath(__file__)), "..", "cdna_kernels", NAME + ".s.ref")).read()
    head = [l for l in ref.splitlines() if l.startswith(";") and "@launch" not in l]
    out = "\n".join(head) + "\n"
    for kn, _ in kernels:
        out += f"; @launch kernel={kn} grid=(256,1,1) block=(256,1,1) lds=163840\n"
    out += '.amdgcn_target "amdgcn-amd-amdhsa--gfx950"\n.text\n'
    for kidx, (kn, body) in enumerate(kernels):
        t, st = kernel_text(kn, body, kidx)
        sys.stderr.write(f"{kn}: {len(st.ins)} instrs (unrolled), nops added {st.nops_added}\n")
        out += t
    out += '.section .rodata,"a"\n'
    for kn, _ in kernels: out += descriptor(kn)
    return out

if __name__ == "__main__":
    ks = [("k1a_kernel", k1a), ("k1b_kernel", k1b), ("k2_kernel", k2), ("k3_kernel", k3), ("k4_kernel", k4)]
    open(sys.argv[1], "w").write(build(ks))
```

```python
import re

REG_RE = re.compile(r'^(-|\|)?(abs\()?([vas])(\d+)\)?\|?$')
RNG_RE = re.compile(r'^(-)?([vas])\[(\d+):(\d+)\]$')

def regs_of(op):
    op = op.strip()
    m = RNG_RE.match(op)
    if m:
        return [f"{m.group(2)}{i}" for i in range(int(m.group(3)), int(m.group(4)) + 1)]
    m = REG_RE.match(op)
    if m:
        return [f"{m.group(3)}{m.group(4)}"]
    if op in ('vcc', 'exec'):
        return [op + '_lo', op + '_hi']
    if op in ('vcc_lo', 'vcc_hi', 'exec_lo', 'exec_hi', 'm0', 'scc'):
        return [op]
    return []

TRANS = ('v_exp_f32', 'v_log_f32', 'v_rcp_f32', 'v_rsq_f32', 'v_sqrt_f32', 'v_sin_f32', 'v_cos_f32', 'v_exp_f16', 'v_rcp_iflag_f32')

class Ins:
    __slots__ = ('text', 'mn', 'kind', 'wr', 'rd', 'srcc', 'srcab', 'passes', 'states', 'wide_store_data', 'dpp', 'marker')
    def __init__(self, text):
        self.text = text
        self.marker = None
        t = text.split(';')[0].strip()
        self.wr = set(); self.rd = set(); self.srcc = set(); self.srcab = set()
        self.passes = 0; self.states = 1; self.wide_store_data = set(); self.dpp = False
        if not t or t.endswith(':') or t.startswith('.'):
            self.mn = ''; self.kind = 'label' if t.endswith(':') else 'none'; self.states = 0
            return
        parts = t.split(None, 1)
        mn = parts[0]; self.mn = mn
        rest = parts[1] if len(parts) > 1 else ''
        ops = []; cur = ''; depth = 0
        for ch in rest:
            if ch == '[': depth += 1
            if ch == ']': depth -= 1
            if ch == ',' and depth == 0:
                ops.append(cur.strip()); cur = ''
            else:
                cur += ch
        if cur.strip(): ops.append(cur.strip())
        mods = []
        if ops:
            sp = ops[-1].split()
            ops[-1] = sp[0]; mods = sp[1:]
        R = [regs_of(o) for o in ops]
        allr = lambda idx: set(x for i in idx if i < len(R) for x in R[i])
        n = len(ops)
        if any(m.startswith(('row_', 'quad_perm', 'wave_', 'bank_mask', 'row_mask')) for m in mods): self.dpp = True
        if mn.startswith('v_mfma'):
            self.kind = 'mfma'
            self.passes = 8 if '32x32x16' in mn else 4
            self.wr = allr([0]); self.srcab = allr([1, 2]); self.srcc = allr([3]); self.rd = self.srcab | self.srcc
        elif mn.startswith('v_cmp'):
            self.kind = 'valu'; self.wr = allr([0]); self.rd = allr(range(1, n))
            if mn.startswith('v_cmpx'): self.wr |= {'exec_lo', 'exec_hi'}
        elif mn.startswith(('v_readfirstlane', 'v_readlane')):
            self.kind = 'readlane'; self.wr = allr([0]); self.rd = allr(range(1, n))
        elif mn.startswith('v_permlane') and 'swap' in mn:
            self.kind = 'permlane'; self.wr = allr([0, 1]); self.rd = allr([0, 1])
        elif mn.startswith('v_'):
            self.kind = 'trans' if mn.split('_e32')[0].split('_e64')[0] in TRANS else 'valu'
            self.wr = allr([0]); self.rd = allr(range(1, n))
            if mn.startswith(('v_fmac', 'v_pk_fmac', 'v_dot2c', 'v_writelane')) or 'UNUSED_PRESERVE' in t or self.dpp:
                self.rd |= self.wr
            if mn.startswith(('v_add_co', 'v_sub_co', 'v_addc_co', 'v_subb_co')):
                self.wr |= allr([1]); self.rd = allr(range(2, n))
            if mn.startswith('v_cndmask') and n == 3: self.rd |= {'vcc_lo', 'vcc_hi'}
            if mn.startswith('v_dot'): self.kind = 'dot'
        elif mn.startswith('buffer_load') or mn.startswith('global_load'):
            if 'lds' in mods:
                self.kind = 'dma'; self.rd = allr(range(0, n)) | {'m0'}
            else:
                self.kind = 'vload'; self.wr = allr([0]); self.rd = allr(range(1, n))
        elif mn.startswith('buffer_store') or mn.startswith('global_store'):
            self.kind = 'vstore'; self.rd = allr(range(0, n))
            if 'x3' in mn or 'x4' in mn:
                self.wide_store_data = allr([0]) if mn.startswith('buffer') else allr([1])
        elif mn.startswith(('buffer_atomic', 'global_atomic')):
            self.kind = 'vstore'; self.rd = allr(range(0, n))
            if 'sc0' in mods: self.wr = allr([0])
        elif mn.startswith(('buffer_inv', 'buffer_wbl2')):
            self.kind = 'vstore'
        elif mn.startswith('ds_read') or mn.startswith(('ds_bpermute', 'ds_permute', 'ds_swizzle')):
            self.kind = 'ds'; self.wr = allr([0]); self.rd = allr(range(1, n))
        elif mn.startswith('ds_'):
            self.kind = 'ds'; self.rd = allr(range(0, n))
        elif mn == 's_nop':
            self.kind = 'nop'; self.states = int(ops[0], 0) + 1
        elif mn in ('s_waitcnt', 's_barrier', 's_setprio', 's_sleep', 's_endpgm'):
            self.kind = 'ctl'
        elif mn.startswith(('s_branch', 's_cbranch')):
            self.kind = 'branch'
        elif mn.startswith('s_cmp') or mn.startswith('s_bitcmp'):
            self.kind = 'salu'; self.rd = allr(range(0, n)); self.wr = {'scc'}
        elif mn.startswith(('s_load', 's_memtime', 's_memrealtime')):
            self.kind = 'smem'; self.wr = allr([0]); self.rd = allr(range(1, n))
        elif mn.startswith('s_'):
            self.kind = 'salu'; self.wr = allr([0]); self.rd = allr(range(1, n))
            if 'saveexec' in mn: self.wr |= {'exec_lo', 'exec_hi'}
        else:
            raise ValueError("unknown instruction: " + text)

VALUK = ('valu', 'trans', 'readlane', 'permlane', 'dot')
MEMK = ('vload', 'vstore', 'dma', 'ds')
XDL_RAW = {4: 8, 8: 12}
XDL_OVL = {4: 6, 8: 10}
XDL_WAR = {4: 3, 8: 7}

def need(p, c):
    n = 0
    isv = lambda s: set(x for x in s if x[0] in 'va' and not x.startswith('vcc'))
    iss = lambda s: set(x for x in s if x[0] == 's' and x != 'scc' or x.startswith('vcc'))
    if p.kind in VALUK:
        pv = isv(p.wr); ps = iss(p.wr)
        if c.kind == 'mfma' and pv & c.rd: n = max(n, 3 if p.kind == 'dot' else 2)
        if c.kind == 'mfma' and ('exec_lo' in p.wr): n = max(n, 4)
        if c.kind == 'readlane' and pv & c.rd: n = max(n, 1)
        if c.kind == 'permlane' and pv & c.rd: n = max(n, 2)
        if c.dpp and pv & c.rd: n = max(n, 2)
        if c.dpp and 'exec_lo' in p.wr: n = max(n, 5)
        if p.kind == 'trans' and c.kind in VALUK and c.kind != 'trans' and pv & c.rd: n = max(n, 1)
        if p.kind == 'trans' and c.kind in MEMK and pv & c.rd: n = max(n, 1)
        if p.kind == 'dot' and (pv & (c.rd | c.wr)) and not (c.mn == p.mn and not (pv & (c.rd - c.wr))): n = max(n, 3)
        if ps:
            if c.kind in ('vload', 'vstore', 'dma') and ps & c.rd: n = max(n, 5)
            if c.kind in VALUK and ps & c.rd: n = max(n, 4 if c.kind == 'readlane' else 2)
            if c.kind in ('salu', 'branch', 'smem') and (ps & c.rd or (c.kind == 'branch' and 'vcc' in c.mn and 'vcc_lo' in ps)): n = max(n, 4 if c.kind != 'branch' else 5)
        if 'exec_lo' in p.wr and c.kind in ('readlane', 'permlane'): n = max(n, 4)
        if ('sdwa' in p.mn or ('op_sel' in p.text and not p.mn.startswith('v_pk_'))) and c.kind in VALUK and pv & (c.rd | c.wr): n = max(n, 1)
    if p.kind == 'mfma':
        d = p.wr
        if c.kind == 'mfma':
            if d & c.srcab: n = max(n, XDL_RAW[p.passes])
            if d & c.srcc and not (d == c.srcc and p.passes == c.passes): n = max(n, XDL_OVL[p.passes])
            if d & c.wr and not (d == c.wr and p.passes == c.passes): n = max(n, XDL_OVL[p.passes])
        elif c.kind in VALUK or c.kind in MEMK:
            if d & (c.rd | c.wr): n = max(n, XDL_RAW[p.passes])
            if c.kind in VALUK and p.srcc & c.wr: n = max(n, XDL_WAR[p.passes])
            if c.kind in ('vload', 'ds') and p.srcc & c.wr: n = max(n, XDL_WAR[p.passes])
    if p.kind == 'vstore' and p.wide_store_data and (p.wide_store_data & c.wr):
        n = max(n, 2)
    if p.kind == 'salu' and 'm0' in p.wr and c.kind == 'dma': n = max(n, 1)
    return n

class Stream:
    def __init__(self):
        self.ins = []
        self.vm = []
        self.nlabel = 0
        self.nops_added = 0
        self.bg = []
        self.bg_every = 8
        self._bgc = 0
        self._nobg = 0
        self._scc_hold = 0
    def e(self, text, tag=None, count=True):
        for line in text.split('\n'):
            line = line.strip()
            if not line: continue
            i = Ins(line)
            self._pad(i)
            self.ins.append(i)
            if i.kind in ('vload', 'vstore', 'dma') and count:
                self.vm.append(tag)
            if i.mn.startswith(('s_cmp', 's_bitcmp')): self._scc_hold = 8
            elif self._scc_hold: self._scc_hold -= 1
            if self.bg and not self._nobg:
                self._bgc += 1
                if self._bgc >= self.bg_every and not self._scc_hold:
                    self._bgc = 0
                    self._nobg += 1
                    isdma = lambda d: not (isinstance(d, str) and d.startswith(("s_", "v_")))
                    while self.bg:
                        f = self.bg.pop(0)
                        emit_filler(self, f)
                        if isdma(f): break
                    self._nobg -= 1
    def nobg(self, on):
        self._nobg += 1 if on else -1
    def _pad(self, c):
        if c.states == 0: return
        dist = 0; req = 0
        at_label = {}
        scanned = 0
        for p in reversed(self.ins):
            scanned += 1
            if p.kind == 'label':
                if p.marker != 'loop':
                    break
                at_label[p.text[:-1]] = dist
                continue
            if p.kind == 'branch':
                tgt = p.text.split()[-1]
                if tgt in at_label: dist = min(dist, at_label.pop(tgt))
            if dist >= 20 and (not at_label or scanned > 200): break
            k = need(p, c)
            if k > dist: req = max(req, k - dist)
            dist += p.states
        while req > 0:
            k = min(req, 16)
            self.ins.append(Ins(f"s_nop {k-1}")); self.nops_added += 1
            req -= k
    def flush_hazards(self):
        self.e("s_nop 15"); self.e("s_nop 3")
    def label(self, name, soft=False):
        i = Ins(name + ':')
        if soft: i.marker = 'loop'
        self.ins.append(i)
    def newlabel(self, p="L"):
        self.nlabel += 1
        return f"{p}_{self.nlabel}"
    def mark(self, m):
        i = Ins(''); i.marker = m; self.ins.append(i)
    def vm_mark(self, tag):
        self.vm.append(('__mark__', tag))
    def vmcnt_for(self, tag):
        tags = tag if isinstance(tag, (list, set)) else [tag]
        last = -1
        for k, t in enumerate(self.vm):
            if t in tags or (isinstance(t, tuple) and t and t[0] == '__mark__' and t[1] in tags): last = k
        if last < 0: return None, None
        n = sum(1 for t in self.vm[last + 1:] if not (isinstance(t, tuple) and t and t[0] == '__mark__'))
        return n, last
    def wait(self, tag=None, lgkm=None, vm0=False):
        parts = []
        if vm0:
            parts.append("vmcnt(0)"); self.vm = []
        elif tag is not None:
            n, last = self.vmcnt_for(tag)
            if n is not None:
                assert n <= 63, n
                parts.append(f"vmcnt({n})")
                self.vm = self.vm[last + 1:]
        if lgkm is not None: parts.append(f"lgkmcnt({lgkm})")
        if parts: self.e("s_waitcnt " + " ".join(parts))
    def text(self, counter_sgpr="s98"):
        out = []
        i = 0
        ins = self.ins
        while i < len(ins):
            x = ins[i]
            if x.marker and isinstance(x.marker, tuple) and x.marker[0] == 'chunk':
                grp, period = x.marker[1], x.marker[2]
                chunks = []
                while ins[i].marker and isinstance(ins[i].marker, tuple) and ins[i].marker[0] == 'chunk' and ins[i].marker[1] == grp:
                    i += 1
                    c = []
                    while not (ins[i].marker and isinstance(ins[i].marker, tuple) and ins[i].marker[0] in ('chunk', 'endchunks')):
                        if ins[i].text: c.append(ins[i].text)
                        i += 1
                    chunks.append(c)
                assert ins[i].marker[0] == 'endchunks'
                i += 1
                out += self._fold(chunks, period, grp, counter_sgpr)
                continue
            if x.text: out.append(x.text)
            i += 1
        res = []
        for t in out:
            res.append(t if (t.endswith(':') or t.startswith('.')) else '    ' + t)
        return "\n".join(res)
    def _fold(self, chunks, P, grp, cs):
        out = []
        n = len(chunks); s = 0; k = 0
        while s < n:
            reps = 1
            while s + (reps + 1) * P <= n and all(chunks[s + j] == chunks[s + reps * P + j] for j in range(P)):
                reps += 1
            if reps >= 2:
                k += 1
                lab = f"LOOP_{grp}_{k}"
                out.append(f"s_mov_b32 {cs}, {reps}")
                out.append(".p2align 3")
                out.append(lab + ":")
                for j in range(P): out += chunks[s + j]
                out.append(f"s_sub_u32 {cs}, {cs}, 1")
                out.append(f"s_cmp_lg_u32 {cs}, 0")
                out.append(f"s_cbranch_scc1 {lab}")
                s += reps * P
            else:
                out += chunks[s]; s += 1
        return out

def interleave(st, mfmas, fillers, per_gap=1, lead=0):
    G = len(mfmas); F = len(fillers)
    counts = [0] * G
    if F <= G * per_gap:
        k = 0
        for g in range(G):
            c = min(per_gap, F - k); counts[g] = c; k += c
    else:
        for g in range(G):
            counts[g] = (g + 1) * F // G - g * F // G
    k = 0
    for g in range(G):
        st.e(mfmas[g])
        for _ in range(counts[g]):
            f = fillers[k]; k += 1
            emit_filler(st, f)
    assert k == F

def emit_filler(st, f):
    if isinstance(f, list):
        for x in f: emit_filler(st, x)
    elif isinstance(f, tuple):
        st.e(f[0], tag=f[1])
    elif callable(f):
        f()
    else:
        st.e(f)
```

```python
import sys, os, math, struct
sys.path.insert(0, os.path.dirname(os.path.abspath(__file__)))
from asmlib import *

NAME = "gated_mix__mha_block__mixer_gmlp__prompt"
MB = 1 << 20
WS_KV = 0
WS_ZN = 8 * MB
WS_XF = 16 * MB
WS_ST = 28 * MB
WS_G = 29 * MB
WS_FL = 29 * MB + 65536
WS_SP = 32 * MB
WS_TS = 30 * MB
WS_SIZE = 64 * MB
STAMPS = bool(os.environ.get('STAMPS'))
NOINC = bool(os.environ.get('NOINC'))
CYC = bool(os.environ.get('CYC'))
NODMA = bool(os.environ.get('NODMA'))
NOREAD = bool(os.environ.get('NOREAD'))
ONLY = os.environ.get('ONLY')
FUSED = not os.environ.get('SPLIT')
SC = ' sc1' if FUSED else ''

def f2u(x): return struct.unpack('<I', struct.pack('<f', x))[0]

S_WAVE, S_WR, S_WC, S_RB, S_CB = 's3', 's4', 's5', 's6', 's7'
SRD_X, SRD_WQKV, SRD_WIN, SRD_WSP, SRD_WO, SRD_WOUT, SRD_WS, SRD_OUT, SRD_BSP, SRD_GATE, SRD_DBG = [f"s[{8+4*i}:{11+4*i}]" for i in range(11)]
S_SOX, S_SOW, S_MX, S_MW = 's52', 's53', 's54', 's55'
ACC = 32
ZP = 192
TMP = 144
AQ = 176

def vr(b, n): return f"v[{b}:{b+n-1}]"
def ar(b, n): return f"a[{b}:{b+n-1}]"

def setup(st, nwg=256):
    st.e(f"s_cmp_ge_u32 s2, {nwg}")
    st.e("s_cbranch_scc1 " + st.endlabel)
    st.e("s_load_dwordx16 s[64:79], s[0:1], 0")
    st.e("s_load_dwordx8 s[80:87], s[0:1], 64")
    st.e("v_lshrrev_b32 v2, 6, v0")
    st.e("v_and_b32 v1, 63, v0")
    st.e(f"v_readfirstlane_b32 {S_WAVE}, v2")
    st.e("s_and_b32 s56, s2, 1")
    st.e("s_lshl_b32 s56, s56, 3")
    st.e("s_bfe_u32 s57, s2, 0x30003")
    st.e(f"s_or_b32 {S_RB}, s56, s57")
    st.e("s_bfe_u32 s56, s2, 0x20001")
    st.e("s_lshl_b32 s56, s56, 2")
    st.e("s_lshr_b32 s57, s2, 6")
    st.e(f"s_or_b32 {S_CB}, s56, s57")
    st.e(f"s_lshr_b32 {S_WR}, {S_WAVE}, 1")
    st.e(f"s_and_b32 {S_WC}, {S_WAVE}, 1")
    st.e("s_waitcnt lgkmcnt(0)")
    def srd(base, ptr, size):
        st.e(f"s_mov_b32 s{base}, s{ptr}")
        st.e(f"s_and_b32 s{base+1}, s{ptr+1}, 0xffff")
        st.e(f"s_mov_b32 s{base+2}, {size}")
        st.e(f"s_mov_b32 s{base+3}, 0x20000")
    srd(8, 64, 2048 * 1024 * 2)
    srd(12, 66, 1024 * 3072 * 2)
    srd(16, 72, 1024 * 3584 * 2)
    srd(20, 74, 2048 * 2048 * 2)
    srd(24, 68, 1024 * 1024 * 2)
    srd(28, 78, 1792 * 1024 * 2)
    srd(32, 86, WS_SIZE)
    srd(36, 82, 2048 * 1024 * 2)
    srd(40, 76, 4096)
    srd(44, 80, 2048)
    srd(48, 84, 256)

V_XD = 2
V_WD = 6
V_XR = 13
V_WR = 19
V_T = 25

def ldsaddr(base3, off):
    c = off >> 16
    return f"v{base3 + c}", off & 0xffff

def copies(st, b):
    st.e(f"v_add_u32 v{b+1}, 0x10000, v{b}")
    st.e(f"v_add_u32 v{b+2}, 0x20000, v{b}")

def setup_x_natural(st, rowstride):
    T = V_T
    st.e(f"s_lshl_b32 s56, {S_RB}, 7")
    st.e(f"s_lshl_b32 s57, {S_WAVE}, 5")
    st.e("s_add_u32 s56, s56, s57")
    st.e(f"v_lshrrev_b32 v{T}, 3, v1")
    st.e(f"v_add_u32 v{T}, s56, v{T}")
    st.e(f"s_mov_b32 s57, {rowstride}")
    st.e(f"v_mul_lo_u32 v{T}, v{T}, s57")
    st.e(f"v_lshrrev_b32 v{T+1}, 4, v1")
    st.e(f"v_and_b32 v{T+2}, 7, v1")
    st.e(f"v_xor_b32 v{T+1}, v{T+1}, v{T+2}")
    st.e(f"v_lshlrev_b32 v{T+1}, 4, v{T+1}")
    st.e(f"v_add_u32 v{V_XD}, v{T}, v{T+1}")
    st.e(f"v_xor_b32 v{T+1}, 64, v{T+1}")
    st.e(f"v_add_u32 v{T+1}, v{T}, v{T+1}")
    st.e(f"v_add_u32 v{V_XD+1}, {8*rowstride - 1024}, v{T+1}")
    st.e(f"v_add_u32 v{V_XD+2}, {16*rowstride - 2048}, v{V_XD}")
    st.e(f"v_add_u32 v{V_XD+3}, {24*rowstride - 3072}, v{T+1}")
    st.e(f"v_and_b32 v{T}, 15, v1")
    st.e(f"v_lshrrev_b32 v{T+1}, 1, v{T}")
    st.e(f"v_lshrrev_b32 v{T+2}, 4, v1")
    st.e(f"v_xor_b32 v{T+1}, v{T+1}, v{T+2}")
    st.e(f"v_lshlrev_b32 v{T+1}, 4, v{T+1}")
    st.e(f"v_lshl_add_u32 v{T+1}, v{T}, 7, v{T+1}")
    st.e(f"s_lshl_b32 s56, {S_WR}, 13")
    st.e(f"v_add_u32 v{V_XR}, s56, v{T+1}")
    st.e(f"v_xor_b32 v{V_XR+3}, 64, v{V_XR}")
    copies(st, V_XR); copies(st, V_XR + 3)
    st.e(f"s_lshl_b32 {S_MX}, {S_WAVE}, 12")

def xread_natural(slot, i, hh, dst):
    r, imm = ldsaddr(V_XR + 3 * hh, slot + i * 2048)
    return f"ds_read_b128 {dst}, {r} offset:{imm}"

def setup_w128_read(st):
    T = V_T
    st.e(f"v_lshrrev_b32 v{T}, 4, v1")
    st.e(f"v_bfe_u32 v{T+1}, v1, 2, 2")
    st.e(f"v_lshl_add_u32 v{T+2}, v{T}, 3, v{T+1}")
    st.e(f"v_lshlrev_b32 v{T+2}, 7, v{T+2}")
    st.e(f"v_and_b32 v{T+3}, 3, v1")
    st.e(f"v_lshl_add_u32 v{T+2}, v{T+3}, 3, v{T+2}")
    st.e(f"v_lshrrev_b32 v{T+1}, 1, v{T+1}")
    st.e(f"v_and_b32 v{T}, 1, v{T}")
    st.e(f"v_lshl_or_b32 v{T}, v{T}, 1, v{T+1}")
    st.e(f"s_lshl_b32 s56, {S_WC}, 1")
    st.e(f"v_xor_b32 v{T}, s56, v{T}")
    st.e(f"v_lshl_add_u32 v{V_WR}, v{T}, 5, v{T+2}")
    st.e(f"v_xor_b32 v{V_WR+3}, 32, v{V_WR}")
    copies(st, V_WR); copies(st, V_WR + 3)

def gemm(st, name, nst, NB, slotsz, dma, xread, wread, mf, MT, NT, pre_issued=False, tail=None, first_stamp=None,
         grp=None, after_issue=None, publish=None, at=None, nxt=None, rot=0):
    at = at or {}
    XF = lambda p, i: ar(p * 48 + i * 4, 4)
    WFb = lambda p, n: p * 48 + 16 + n * 4
    def reads(s, hh, p):
        slot = ((s + rot) % NB) * slotsz
        out = []
        wl = [wread(slot, n, hh, WFb(p, n)) for n in range(NT)]
        xl = [xread(slot, i, hh, XF(p, i)) for i in range(MT)]
        out += wl[0] + xl
        for w in wl[1:]: out += w
        if NOREAD and s > 0: return []
        return out
    def mfs(s, hh, p):
        return [mf(s, hh, n, i, ar(WFb(p, n), 4), XF(p, i)) for n in range(NT) for i in range(MT)]
    if not pre_issued:
        for s in range(min(NB, nst)):
            for f in dma(s): emit_filler(st, f)
    q = list(st.bg); st.bg = []
    def issued(s):
        def tg(x):
            if isinstance(x, list): return any(tg(y) for y in x)
            return isinstance(x, tuple) and x[1] == ('st', name, s)
        return not any(tg(x) for x in q)
    while not issued(0): emit_filler(st, q.pop(0))
    if after_issue: after_issue(st)
    st.wait(tag=('st', name, 0))
    st.e("s_barrier")
    if first_stamp is not None: stamp(st, first_stamp)
    for r in reads(0, 0, 0): st.e(r)
    st.wait(lgkm=0)
    G = MT * NT
    D = ndma(dma(0))
    def take(n, must=None):
        out = []; c = 0
        while q and (c < n or (must is not None and not issued(must))):
            x = q.pop(0); out.append(x)
            if isdma(x): c += 1
        while q and not isdma(q[0]) and 'm0' not in q[0]: out.append(q.pop(0))
        return out
    for s in range(nst):
        st.mark(('chunk', grp or name, NB))
        if (s, 'A') in at: at[(s, 'A')](st)
        extra = CATCH if ndma(q) > D // 2 else 0
        cap = D // 2 + extra if s + NB <= nst else NXT_CAP
        interleave(st, mfs(s, 0, 0), merge(reads(s, 1, 1), take(cap, s + 1), G))
        pub = publish and s == publish[2]
        if pub: st.wait(tag=[('st', name, s + 1)] + publish[1], lgkm=0)
        elif s + 1 < nst: st.wait(tag=('st', name, s + 1), lgkm=0)
        else: st.wait(lgkm=0)
        st.e("s_barrier")
        if pub: do_publish(st, publish[0])
        if (s, 'B') in at: at[(s, 'B')](st)
        extra = CATCH if ndma(q) > 0 else 0
        if s + NB < nst and not NODMA: q += dma(s + NB)
        if nxt and s in nxt:
            assert s + NB >= nst
            it = nxt[s]()
            if it and not isdma(it[0]) and 'm0' not in it[0]:
                assert ndma(q) == 0, "next phase's address registers would clobber pending DMA"
                while not isdma(it[0]) and 'm0' not in it[0]: emit_filler(st, it.pop(0))
            q += it
        cap = (D + 1) // 2 + extra if s + NB < nst else NXT_CAP
        interleave(st, mfs(s, 1, 1), merge(reads(s + 1, 0, 0) if s + 1 < nst else [], take(cap), G))
        if s + 1 < nst: st.wait(lgkm=0)
    st.mark(('endchunks',))
    st.bg = q

NXT_CAP = int(os.environ.get('NXT_CAP', '5'))
CATCH = int(os.environ.get('CATCH', '2'))
def isdma(d): return not (isinstance(d, str) and d.startswith(("s_", "v_")))
def ndma(items): return sum(1 for x in items if isdma(x))

V_FL = 252
def flags_setup(st):
    st.e(f"s_lshl_b32 s56, {S_RB}, 4")
    st.e(f"v_and_b32 v252, 15, v1")
    st.e(f"v_add_u32 v253, s56, v252")
    st.e(f"v_lshlrev_b32 v254, 4, v252")
    st.e(f"v_add_u32 v254, {S_CB}, v254")
    st.e(f"s_add_u32 s56, s56, {S_CB}")
    st.e(f"v_mov_b32 v255, s56")
def do_publish(st, val):
    l = st.newlabel("PUB")
    st.nobg(True)
    st.e(f"s_cmp_lg_u32 {S_WAVE}, 0")
    st.e(f"s_cbranch_scc1 {l}")
    st.e(f"v_mov_b32 v252, {val}")
    st.e("s_mov_b64 exec, 1")
    st.e(f"buffer_store_byte v252, v255, {SRD_DBG}, 0 offen sc1", count=False)
    st.e("s_mov_b64 exec, -1")
    st.label(l, soft=True)
    st.nobg(False)
def poll_issue(st, grp, tag):
    st.e(f"buffer_load_ubyte v252, v{253 if grp == 'rb' else 254}, {SRD_DBG}, 0 offen sc1", tag=tag)
def poll_check(st, grp, tag, val):
    st.wait(tag=tag)
    ok = st.newlabel("POK"); lp = st.newlabel("PSPIN")
    st.nobg(True)
    st.e(f"v_cmp_gt_u32 vcc, {val}, v252")
    st.e(f"s_cbranch_vccz {ok}")
    st.e("s_mov_b32 s99, 0x8000")
    st.label(lp, soft=True)
    st.e("s_sleep 2")
    st.e(f"buffer_load_ubyte v252, v{253 if grp == 'rb' else 254}, {SRD_DBG}, 0 offen sc1", count=False)
    st.e("s_sub_u32 s99, s99, 1")
    st.e(f"s_cbranch_scc1 {ok}")
    st.e("s_waitcnt vmcnt(0)")
    st.e(f"v_cmp_gt_u32 vcc, {val}, v252")
    st.e(f"s_cbranch_vccnz {lp}")
    st.label(ok, soft=True)
    st.nobg(False)

def split_half(d):
    isdma = lambda x: not (isinstance(x, str) and x.startswith("s_"))
    nd = sum(1 for x in d if isdma(x))
    c = 0
    for k, x in enumerate(d):
        if isdma(x):
            c += 1
            if c == (nd + 1) // 2:
                k += 1
                while k < len(d) and not isdma(d[k]) and 'm0' not in d[k]: k += 1
                return k
    return len(d)

SCHED = os.environ.get('SCHED', 'A')
def merge(reads, dm, G):
    gaps = [[] for _ in range(G)]
    nd = sum(1 for d in dm if isdma(d))
    pos = [min(G - 1, (2 * k + 1) * G // (2 * nd)) for k in range(nd)] if nd else []
    k = 0; last = 0
    dg = set(pos)
    post = [[] for _ in range(G)]
    for idx, d in enumerate(dm):
        if isdma(d):
            post[pos[k]].append(d); last = pos[k]; k += 1
        elif 'm0' in d:
            g = max(pos[k] - 1, last) if k < nd else G - 1
            post[g].append(d)
        else:
            post[min(last + 1, G - 1) if (k < nd and last + 1 < pos[k]) or k >= nd else last].append(d)
    if SCHED == 'A':
        free = [g for g in range(G) if g not in dg]
        R = len(reads)
        if R <= len(free):
            for r, g in zip(reads, free): gaps[g].append(r)
        else:
            for j, r in enumerate(reads): gaps[j * G // R].append(r)
    else:
        R = len(reads)
        for j, r in enumerate(reads): gaps[j if R <= G else j * G // R].append(r)
    return [gaps[g] + post[g] for g in range(G)]

def dma_x(name, slot, s, srd, inc):
    tag = ('st', name, s)
    b = [f"s_add_u32 m0, {S_MX}, {slot}"]
    for q in range(4):
        b.append((f"buffer_load_dwordx4 v{V_XD+q}, {srd}, {S_SOX} offen offset:{1024*q} lds", tag))
    b.append(f"s_add_u32 {S_SOX}, {S_SOX}, {0 if NOINC else inc}")
    return b

def dma_w(name, slot, s, srd, inc, n):
    tag = ('st', name, s)
    b = []
    for j in range(n):
        if j % 4 == 0: b.append(f"s_add_u32 m0, {S_MW}, {slot + 16384 + 1024 * j}")
        b.append((f"buffer_load_dwordx4 v{V_WD+j}, {srd}, {S_SOW} offen offset:{1024*(j%4)} lds", tag))
    b.append(f"s_add_u32 {S_SOW}, {S_SOW}, {0 if NOINC else inc}")
    return b

def p1a_setup(st):
    T = V_T
    setup_x_natural(st, 2048)
    setup_w128_read(st)
    st.e(f"v_lshrrev_b32 v{T}, 3, v1")
    st.e(f"v_mul_u32_u24 v{T}, 6144, v{T}")
    st.e(f"v_bfe_u32 v{T+1}, v1, 1, 2")
    st.e(f"v_bfe_u32 v{T+2}, v1, 4, 1")
    st.e(f"v_xor_b32 v{T+1}, v{T+1}, v{T+2}")
    st.e(f"v_lshl_add_u32 v{T}, v{T+1}, 5, v{T}")
    st.e(f"v_and_b32 v{T+1}, 1, v1")
    st.e(f"v_lshl_add_u32 v{T}, v{T+1}, 4, v{T}")
    st.e(f"v_xor_b32 v{T+1}, 64, v{T}")
    st.e(f"s_mul_i32 s56, {S_WAVE}, 6")
    st.e(f"s_lshl_b32 s58, {S_CB}, 7")
    for j in range(6):
        st.e(f"s_add_u32 s57, s56, {j}")
        st.e("s_lshr_b32 s59, s57, 3")
        st.e("s_lshl_b32 s59, s59, 11")
        st.e("s_and_b32 s57, s57, 7")
        st.e(f"s_mul_i32 s57, s57, {8*6144}")
        st.e("s_add_u32 s57, s57, s59")
        st.e("s_add_u32 s57, s57, s58")
        if j % 4: st.e(f"s_sub_u32 s57, s57, {1024*(j%4)}")
        st.e(f"v_add_u32 v{V_WD+j}, s57, v{T + (j & 1)}")
    st.e(f"s_mul_i32 {S_MW}, {S_WAVE}, 6144")
    st.e(f"s_mov_b32 {S_SOX}, 0")
    st.e(f"s_mov_b32 {S_SOW}, 0")

P1A_SLOT = 40960; P1A_NB = 4
def p1a_dma(s):
    slot = (s % P1A_NB) * P1A_SLOT
    return dma_x('p1a', slot, s, SRD_X, 128) + dma_w('p1a', slot, s, SRD_WQKV, 64 * 6144, 6)

def w128_read(segof, tof):
    def f(slot, n, hh, db):
        out = []
        for sec in range(2):
            r, imm = ldsaddr(V_WR + 3 * tof(n), slot + 16384 + segof(n) * 8192 + hh * 4096 + sec * 512)
            out.append(f"ds_read_b64_tr_b16 {ar(db + 2*sec, 2)}, {r} offset:{imm}")
        return out
    return f

def accr(n, i, base=ACC): return base + (n * 4 + i) * 4

def p1a_main(st, **kw):
    def mf(s, hh, n, i, wf, xf):
        a = vr(accr(n, i), 4)
        c = "0" if (s == 0 and hh == 0) else a
        return f"v_mfma_f32_16x16x32_bf16 {a}, {xf}, {wf}, {c}" if n >= 4 else f"v_mfma_f32_16x16x32_bf16 {a}, {wf}, {xf}, {c}"
    gemm(st, 'p1a', 16, P1A_NB, P1A_SLOT, p1a_dma, xread_natural, w128_read(lambda n: n // 2, lambda n: n % 2), mf, 4, 6, **kw)

QSCALE = math.log2(math.e) / math.sqrt(32.0)
def p1a_epilogue(st, sc=SC):
    T = V_T
    st.e(f"s_lshl_b32 s56, {S_CB}, 1")
    st.e(f"s_add_u32 s56, s56, {S_WC}")
    st.e("s_lshl_b32 s56, s56, 6")
    st.e(f"s_lshl_b32 s57, {S_RB}, 2")
    st.e("s_add_u32 s56, s56, s57")
    st.e(f"s_lshl_b32 s57, {S_WR}, 1")
    st.e("s_add_u32 s56, s56, s57")
    st.e("s_lshl_b32 s56, s56, 12")
    if WS_KV: st.e(f"s_add_u32 s56, s56, {WS_KV}")
    st.e("s_add_u32 s57, s56, 4096")
    st.e(f"v_lshlrev_b32 v{T}, 4, v1")
    st.e(f"v_and_b32 v{T+1}, 0x33, v1")
    st.e(f"v_bfe_u32 v{T+2}, v1, 2, 1")
    st.e(f"v_lshl_or_b32 v{T+1}, v{T+2}, 3, v{T+1}")
    st.e(f"v_bfe_u32 v{T+2}, v1, 3, 1")
    st.e(f"v_lshl_or_b32 v{T+1}, v{T+2}, 2, v{T+1}")
    st.e(f"v_lshlrev_b32 v{T+1}, 4, v{T+1}")
    st.e(f"s_mov_b32 s58, {f2u(QSCALE)}")
    st.e("s_mov_b32 s59, s58")
    k = 0
    def frag(x, y):
        nonlocal k
        t = TMP + 4 * (k % 8); k += 1
        st.e(f"v_cvt_pk_bf16_f32 v{t}, v{x}, v{x+1}")
        st.e(f"v_cvt_pk_bf16_f32 v{t+1}, v{x+2}, v{x+3}")
        st.e(f"v_cvt_pk_bf16_f32 v{t+2}, v{y}, v{y+1}")
        st.e(f"v_cvt_pk_bf16_f32 v{t+3}, v{y+2}, v{y+3}")
        return t
    def swaps(t):
        st.e(f"v_permlane16_swap_b32 v{t}, v{t+2}")
        st.e(f"v_permlane16_swap_b32 v{t+1}, v{t+3}")
    ts = []
    for a in range(2):
        for ks in range(2):
            ts.append((frag(accr(2 + ks, 2 * a), accr(2 + ks, 2 * a + 1)), a, ks))
    for t, a, ks in ts: swaps(t)
    for t, a, ks in ts:
        st.e(f"buffer_store_dwordx4 {vr(t,4)}, v{T+1}, {SRD_WS}, s{56+a} offen offset:{1024*ks}{sc}", tag='kv')
    ts = []
    for i in range(4):
        ts.append((frag(accr(4, i), accr(5, i)), i))
    for t, i in ts: swaps(t)
    for t, i in ts:
        st.e(f"buffer_store_dwordx4 {vr(t,4)}, v{T}, {SRD_WS}, s{56+i//2} offen offset:{2048+1024*(i%2)}{sc}", tag='kv')
    for r in range(ACC, ACC + 32, 2):
        st.e(f"v_pk_mul_f32 {vr(r,2)}, {vr(r,2)}, s[58:59]")
    ts = []
    for a in range(2):
        for ks in range(2):
            ts.append((frag(accr(ks, 2 * a), accr(ks, 2 * a + 1)), a, ks))
    for t, a, ks in ts: swaps(t)
    for t, a, ks in ts:
        for j in range(4):
            st.e(f"v_accvgpr_write_b32 a{AQ + (a*2+ks)*4 + j}, v{t+j}")

P1B_SLOT = 45056; P1B_NB = 3
def p1b_setup(st, x_done=False):
    T = V_T
    if not x_done: setup_x_natural(st, 2048)
    st.e(f"s_mul_i32 s56, {S_WAVE}, {7*64}")
    st.e(f"s_mul_i32 s58, {S_CB}, 224")
    st.e("s_mov_b32 s59, 18725")
    for j in range(7):
        d = V_WD + j
        st.e(f"s_add_u32 s57, s56, {64*j}")
        st.e(f"v_add_u32 v{T}, s57, v1")
        st.e(f"v_mul_u32_u24 v{T+1}, s59, v{T}")
        st.e(f"v_lshrrev_b32 v{T+1}, 19, v{T+1}")
        st.e(f"v_mul_u32_u24 v{T+2}, 28, v{T+1}")
        st.e(f"v_sub_u32 v{T+2}, v{T}, v{T+2}")
        st.e(f"v_lshrrev_b32 v{T+3}, 1, v{T+2}")
        st.e(f"v_bfe_u32 v{T+4}, v{T+1}, 3, 1")
        st.e(f"v_xor_b32 v{T+3}, v{T+3}, v{T+4}")
        st.e(f"v_mul_u32_u24 v{d}, 7168, v{T+1}")
        st.e(f"v_lshl_add_u32 v{d}, v{T+3}, 5, v{d}")
        st.e(f"v_and_b32 v{T+2}, 1, v{T+2}")
        st.e(f"v_lshl_add_u32 v{d}, v{T+2}, 4, v{d}")
        st.e(f"v_mov_b32 v{T+5}, 3360")
        st.e(f"v_cmp_lt_u32 vcc, 6, v{T+3}")
        st.e(f"v_cndmask_b32 v{T+4}, 0, v{T+5}, vcc")
        st.e(f"v_add_u32 v{d}, v{d}, v{T+4}")
        st.e(f"s_sub_u32 s57, s58, {1024*(j%4)}")
        st.e(f"v_add_u32 v{d}, s57, v{d}")
    st.e(f"v_lshrrev_b32 v{T}, 4, v1")
    st.e(f"v_bfe_u32 v{T+1}, v1, 2, 2")
    st.e(f"v_lshl_add_u32 v{T+2}, v{T}, 3, v{T+1}")
    st.e(f"v_mul_u32_u24 v{T+2}, 448, v{T+2}")
    st.e(f"v_and_b32 v{T+3}, 3, v1")
    st.e(f"v_lshl_add_u32 v{T+2}, v{T+3}, 3, v{T+2}")
    st.e(f"v_and_b32 v{T}, 1, v{T}")
    st.e(f"s_lshl_b32 s56, {S_WC}, 7")
    st.e(f"v_add_u32 v{T+2}, s56, v{T+2}")
    st.e(f"v_lshl_add_u32 v{V_WR}, v{T}, 5, v{T+2}")
    st.e(f"v_lshlrev_b32 v{T+1}, 5, v{T}")
    st.e(f"v_sub_u32 v{V_WR+3}, v{T+2}, v{T+1}")
    st.e(f"v_add_u32 v{V_WR+3}, 32, v{V_WR+3}")
    st.e(f"s_mul_i32 s57, {S_WC}, 7"); st.e("s_add_u32 s57, s57, 3")
    st.e(f"v_xor_b32 v{T+1}, s57, v{T}")
    st.e(f"v_subrev_u32 v{T+2}, s56, v{T+2}")
    st.e(f"v_lshl_add_u32 v{V_W3}, v{T+1}, 5, v{T+2}")
    copies(st, V_WR); copies(st, V_WR + 3); copies(st, V_W3)
    st.e(f"s_mul_i32 {S_MW}, {S_WAVE}, 7168")
    st.e(f"s_mov_b32 {S_SOX}, 0")
    st.e(f"s_mov_b32 {S_SOW}, 0")

def p1b_dma(s):
    slot = (s % P1B_NB) * P1B_SLOT
    return dma_x('p1b', slot, s, SRD_X, 128) + dma_w('p1b', slot, s, SRD_WIN, 64 * 7168, 7)

V_W3 = 28
def p1b_wread(slot, n, hh, db):
    out = []
    u0 = [0, 1, 2, 3, 7, 8, 9][n]
    for sec in range(2):
        off = slot + 16384 + hh * 32 * 448 + sec * 4 * 448
        if n == 3: r, imm = ldsaddr(V_W3, off)
        elif u0 % 2 == 0: r, imm = ldsaddr(V_WR, off + u0 * 32)
        else: r, imm = ldsaddr(V_WR + 3, off + u0 * 32 - 32)
        out.append(f"ds_read_b64_tr_b16 {ar(db + 2*sec, 2)}, {r} offset:{imm}")
    return out

def mf_plain(base=ACC):
    def mf(s, hh, n, i, wf, xf):
        a = vr(accr(n, i, base), 4)
        c = "0" if (s == 0 and hh == 0) else a
        return f"v_mfma_f32_16x16x32_bf16 {a}, {wf}, {xf}, {c}"
    return mf

def p1b_main(st, **kw):
    gemm(st, 'p1b', 16, P1B_NB, P1B_SLOT, p1b_dma, xread_natural, p1b_wread, mf_plain(), 4, 7, **kw)

GC1 = -2.0 * math.sqrt(2.0 / math.pi) * math.log2(math.e)
GC2 = GC1 * 0.044715
def xreduce(st, r, t):
    st.e(f"v_mov_b32 v{t}, v{r}")
    st.e(f"v_permlane16_swap_b32 v{r}, v{t}")
    st.e(f"v_add_f32 v{r}, v{r}, v{t}")
    st.e(f"v_mov_b32 v{t}, v{r}")
    st.e(f"v_permlane32_swap_b32 v{r}, v{t}")
    st.e(f"v_add_f32 v{r}, v{r}, v{t}")

def p1b_epilogue(st, sc=SC):
    T = V_T
    st.e(f"s_mov_b32 s56, {f2u(GC1)}"); st.e("s_mov_b32 s57, s56")
    st.e(f"s_mov_b32 s58, {f2u(GC2)}"); st.e("s_mov_b32 s59, s58")
    st.e("s_mov_b32 s60, 1.0"); st.e("s_mov_b32 s61, 1.0")
    st.e(f"v_mov_b32 v{T+1}, s56"); st.e(f"v_mov_b32 v{T+2}, s56")
    pairs = [accr(n, i) + 2 * h for n in range(7) for i in range(4) for h in range(2)]
    G = 4
    for g0 in range(0, len(pairs), G):
        grp = pairs[g0:g0 + G]
        tb = TMP + (g0 // G % 2) * 16
        for k, p in enumerate(grp): st.e(f"v_pk_mul_f32 {vr(tb+2*k,2)}, {vr(p,2)}, {vr(p,2)}")
        for k, p in enumerate(grp): st.e(f"v_pk_fma_f32 {vr(tb+2*k,2)}, {vr(tb+2*k,2)}, s[58:59], {vr(T+1,2)}")
        for k, p in enumerate(grp): st.e(f"v_pk_mul_f32 {vr(tb+2*k,2)}, {vr(tb+2*k,2)}, {vr(p,2)}")
        for k in range(2 * G): st.e(f"v_exp_f32 v{tb+k}, v{tb+k}")
        for k, p in enumerate(grp): st.e(f"v_pk_add_f32 {vr(tb+2*k,2)}, {vr(tb+2*k,2)}, s[60:61]")
        for k in range(2 * G): st.e(f"v_rcp_f32 v{tb+k}, v{tb+k}")
        for k, p in enumerate(grp): st.e(f"v_pk_mul_f32 {vr(p,2)}, {vr(tb+2*k,2)}, {vr(p,2)}")
        for k, p in enumerate(grp): st.e(f"v_cvt_pk_bf16_f32 v{ZP + (p - ACC)//2}, v{p}, v{p+1}")
    st.e(f"s_cmp_eq_u32 {S_WC}, 1")
    st.e("s_cselect_b32 s56, 1.0, 0"); st.e("s_mov_b32 s57, s56")
    st.e(f"s_mov_b32 s59, {f2u(-1.0/48)}")
    st.e(f"s_cselect_b32 s58, {f2u(-1.0/64)}, s59")
    MEAN = TMP; M2 = TMP + 4; A = TMP + 8; D = TMP + 16
    for i in range(4):
        a = A + 2 * i
        ps = [accr(n, i) + 2 * h for n in (4, 5, 6) for h in range(2)]
        st.e(f"v_pk_add_f32 {vr(a,2)}, {vr(accr(3,i),2)}, {vr(accr(3,i)+2,2)}")
        st.e(f"v_pk_fma_f32 {vr(a,2)}, {vr(a,2)}, s[56:57], {vr(ps[0],2)}")
        for p in ps[1:]: st.e(f"v_pk_add_f32 {vr(a,2)}, {vr(a,2)}, {vr(p,2)}")
        st.e(f"v_add_f32 v{MEAN+i}, v{a}, v{a+1}")
    for i in range(4): xreduce(st, MEAN + i, D + i)
    for i in range(4):
        st.e(f"v_mul_f32 v{D+2*i}, s58, v{MEAN+i}")
        st.e(f"v_mul_f32 v{D+2*i+1}, s58, v{MEAN+i}")
        st.e(f"v_sub_f32 v{MEAN+i}, 0, v{D+2*i}")
    for i in range(4):
        a = A + 2 * i; nm = vr(D + 2 * i, 2)
        p3 = [accr(3, i), accr(3, i) + 2]
        for p in p3: st.e(f"v_pk_add_f32 {vr(p,2)}, {vr(p,2)}, {nm}")
        st.e(f"v_pk_mul_f32 {vr(a,2)}, {vr(p3[0],2)}, {vr(p3[0],2)}")
        st.e(f"v_pk_fma_f32 {vr(a,2)}, {vr(p3[1],2)}, {vr(p3[1],2)}, {vr(a,2)}")
        st.e(f"v_pk_mul_f32 {vr(a,2)}, {vr(a,2)}, s[56:57]")
        ps = [accr(n, i) + 2 * h for n in (4, 5, 6) for h in range(2)]
        for p in ps: st.e(f"v_pk_add_f32 {vr(p,2)}, {vr(p,2)}, {nm}")
        for p in ps: st.e(f"v_pk_fma_f32 {vr(a,2)}, {vr(p,2)}, {vr(p,2)}, {vr(a,2)}")
        st.e(f"v_add_f32 v{M2+i}, v{a}, v{a+1}")
    for i in range(4): xreduce(st, M2 + i, D + 8 + i)
    st.e(f"v_lshrrev_b32 v{T}, 4, v1")
    for i in range(1, 4):
        st.e(f"v_cmp_eq_u32 vcc, {i}, v{T}")
        st.e(f"v_cndmask_b32 v{MEAN}, v{MEAN}, v{MEAN+i}, vcc")
        st.e(f"v_cndmask_b32 v{M2}, v{M2}, v{M2+i}, vcc")
    st.e(f"s_lshl_b32 s56, {S_RB}, 4")
    st.e(f"s_add_u32 s56, s56, {S_CB}")
    st.e("s_lshl_b32 s56, s56, 11")
    st.e(f"s_lshl_b32 s57, {S_WR}, 10")
    st.e("s_add_u32 s56, s56, s57")
    st.e(f"s_lshl_b32 s57, {S_WC}, 2")
    st.e("s_add_u32 s56, s56, s57")
    st.e(f"s_add_u32 s56, s56, {WS_ST}")
    st.e(f"v_lshlrev_b32 v{T}, 4, v1")
    st.e(f"buffer_store_dword v{MEAN}, v{T}, {SRD_WS}, s56 offen{sc}", tag='stat')
    st.e(f"buffer_store_dword v{M2}, v{T}, {SRD_WS}, s56 offen offset:8{sc}", tag='stat')

def k1b(st):
    p1b_setup(st)
    stamp(st, 1)
    p1b_main(st, first_stamp=2)
    stamp(st, 3)
    p1b_epilogue(st)
    stamp(st, 4)
    spill(st, ZREGS, 4)

LOG2E = math.log2(math.e)
def gate_issue(st):
    T = TMP
    st.e(f"s_lshl_b32 s56, {S_RB}, 7")
    st.e(f"s_lshl_b32 s57, {S_CB}, 3")
    st.e("s_add_u32 s56, s56, s57")
    st.e(f"s_lshl_b32 s57, {S_WAVE}, 1")
    st.e("s_add_u32 s66, s56, s57")
    st.e("s_lshl_b32 s56, s66, 11")
    st.e(f"v_lshlrev_b32 v{T+32}, 6, v1")
    st.e(f"v_and_b32 v{T+33}, 0x7ff, v{T+32}")
    for k in range(4):
        st.e(f"buffer_load_dwordx4 {vr(T+4*k,4)}, v{T+32}, {SRD_X}, s56 offen offset:{16*k}", tag='gate')
        st.e(f"buffer_load_dwordx4 {vr(T+16+4*k,4)}, v{T+33}, {SRD_GATE}, 0 offen offset:{16*k}", tag='gate')
def gate_finish(st, sc=SC):
    T = TMP
    st.wait(tag='gate')
    a = T + 34
    st.e(f"v_mov_b32 v{a}, 0"); st.e(f"v_mov_b32 v{a+1}, 0")
    for k in range(16):
        st.e(f"v_dot2_f32_bf16 v{a + k % 2}, v{T+k}, v{T+16+k}, v{a + k % 2}")
    st.e(f"v_add_f32 v{a}, v{a}, v{a+1}")
    for m in ("quad_perm:[1,0,3,2]", "quad_perm:[2,3,0,1]", "row_half_mirror", "row_mirror"):
        st.e(f"v_add_f32_dpp v{a}, v{a}, v{a} {m} row_mask:0xf bank_mask:0xf")
    st.e(f"v_mov_b32 v{a+1}, v{a}")
    st.e(f"v_permlane16_swap_b32 v{a}, v{a+1}")
    st.e(f"v_add_f32 v{a}, v{a}, v{a+1}")
    st.e(f"v_mul_f32 v{a}, {f2u(-LOG2E)}, v{a}")
    st.e(f"v_exp_f32 v{a}, v{a}")
    st.e(f"v_add_f32 v{a}, 1.0, v{a}")
    st.e(f"v_rcp_f32 v{a}, v{a}")
    st.e(f"v_lshrrev_b32 v{a+1}, 5, v1")
    st.e(f"v_lshlrev_b32 v{a+1}, 2, v{a+1}")
    st.e("s_lshl_b32 s56, s66, 2")
    st.e(f"s_add_u32 s56, s56, {WS_G}")
    st.e(f"buffer_store_dword v{a}, v{a+1}, {SRD_WS}, s56 offen{sc}", tag='gst')

SA, SB, CA, CB, OA, OB, PA, PB, LA, LB, SEL = 32, 48, 64, 80, 96, 112, 128, 136, 144, 148, 152
AT = 156
V_L16 = 20
S_KV = 's64'
RING = 8
def m32(d, a, b, c): return f"v_mfma_f32_32x32x16_bf16 {vr(d,16)}, {a}, {b}, {c if c == '0' else vr(c,16)}"
def m16s(l, p, first=False): return f"v_mfma_f32_16x16x32_bf16 {vr(l,4)}, {vr(SEL,4)}, {vr(p,4)}, {'0' if first else vr(l,4)}"
def ubase(u):
    u %= RING
    return 16 * u if u < 3 else 96 + 16 * (u - 3)
def uK(u, ks): return ar(ubase(u) + 8 + 4 * ks, 4)
def uV(u, kk): return ar(ubase(u) + 4 * kk, 4)
def Qf(t, ks): return ar(AQ + (t * 2 + ks) * 4, 4)

def unit_loads(u):
    b = []
    for k in range(4 if u < 63 else 2):
        b.append((f"buffer_load_dwordx4 {ar(ubase(u)+4*k,4)}, v{V_L16}, {SRD_WS}, {S_KV} offen offset:{1024*k}{SC}", ('u', u)))
    b.append(f"s_add_u32 {S_KV}, {S_KV}, {0 if NOINC else 4096}")
    return b

def softmax_valu(S, P):
    out = []
    for i in range(16):
        out.append(f"v_exp_f32 v{S+i}, v{S+i}")
        if i >= 3 and i % 2 == 1:
            c = (i - 3) // 2
            out.append(f"v_cvt_pk_bf16_f32 v{P+c}, v{S+2*c}, v{S+2*c+1}")
    out.append(None)
    out.append(f"v_cvt_pk_bf16_f32 v{P+7}, v{S+14}, v{S+15}")
    return out

ATTV = os.environ.get('ATTV', '1')
def att_phase(st, mf, valu, extra):
    extra = list(extra)
    valu = [v for v in valu if v]
    nv = len(valu)
    G = len(mf)
    pos = [k * nv // G for k in range(G)] if G else []
    if ATTV == '0': xs = [1, 5, 9, 13, 17, 21]
    elif ATTV == '1': xs = [-0.5, 3.5, 7.5, 11.5, 15.5, 19.5]
    elif ATTV == '2': xs = [3, 7, 11, 15, 19, 23]
    else: xs = []
    k = 0
    for c, v in enumerate(valu):
        while k < G and pos[k] <= c:
            st.e(mf[k]); k += 1
            if extra and (c - 0.5) in xs: emit_filler(st, extra.pop(0))
        st.e(v)
        if extra and c in xs: emit_filler(st, extra.pop(0))
    while k < G: st.e(mf[k]); k += 1
    for x in extra: emit_filler(st, x)

def rowmax(st, S, d, t):
    st.e(f"v_max3_f32 v{d}, v{S}, v{S+1}, v{S+2}")
    for i in range(3, 15, 2): st.e(f"v_max3_f32 v{d}, v{S+i}, v{S+i+1}, v{d}")
    st.e(f"v_max_f32 v{d}, v{S+15}, v{d}")
    st.e(f"v_mov_b32 v{t}, v{d}")
    st.e(f"v_permlane32_swap_b32 v{d}, v{t}")
    st.e(f"v_max_f32 v{d}, v{d}, v{t}")

def p2_setup(st):
    st.e(f"v_lshlrev_b32 v{V_L16}, 4, v1")
    st.e(f"s_lshl_b32 s56, {S_CB}, 1")
    st.e(f"s_add_u32 s56, s56, {S_WC}")
    st.e("s_lshl_b32 s65, s56, 18")
    if WS_KV: st.e(f"s_add_u32 s65, s65, {WS_KV}")
def p2_setup2(st):
    st.e(f"v_bfe_u32 v{AT}, v1, 4, 1")
    st.e(f"v_lshlrev_b32 v{AT}, 2, v{AT}")
    st.e(f"v_and_b32 v{AT+1}, 7, v1")
    st.e(f"v_cmp_eq_u32 vcc, v{AT}, v{AT+1}")
    st.e(f"v_mov_b32 v{AT}, 0x3f803f80")
    st.e(f"v_cndmask_b32 v{SEL}, 0, v{AT}, vcc")
    for k in range(1, 4): st.e(f"v_mov_b32 v{SEL+k}, v{SEL}")

def p2_prefetch(st):
    st.e(f"s_mov_b32 {S_KV}, s65")
    for ks in range(2):
        st.e(f"buffer_load_dwordx4 {uK(-1, ks)}, v{V_L16}, {SRD_WS}, {S_KV} offen offset:{1024*ks}{SC}", tag=('u', -1))
    st.e(f"s_add_u32 {S_KV}, {S_KV}, 2048")
    for u in range(RING - 1):
        for f in unit_loads(u): emit_filler(st, f)

def ln_load(st, batch):
    st.e(f"s_lshl_b32 s56, {S_RB}, 15")
    st.e(f"s_lshl_b32 s57, {S_WR}, 10")
    st.e("s_add_u32 s56, s56, s57")
    st.e(f"s_add_u32 s56, s56, {WS_ST + batch * 8 * 2048}")
    for k in range(8):
        if k == 2 or k == 4 or k == 6: st.e("s_add_u32 s56, s56, 4096")
        st.e(f"buffer_load_dwordx4 {vr(AT+4*k,4)}, v{V_L16}, {SRD_WS}, s56 offen offset:{2048*(k%2)}{SC}", tag=('ln', batch))
LNA = 26
def ln_accum(st, batch):
    st.wait(tag=('ln', batch))
    if batch == 0:
        st.e(f"v_sub_f32 v24, 0, v{AT}"); st.e(f"v_sub_f32 v25, 0, v{AT}")
        for r in range(LNA, LNA + 6): st.e(f"v_mov_b32 v{r}, 0")
    for k in range(8): st.e(f"v_pk_add_f32 {vr(AT+4*k,2)}, {vr(AT+4*k,2)}, v[24:25]")
    for k in range(8):
        st.e(f"v_pk_add_f32 {vr(LNA,2)}, {vr(LNA,2)}, {vr(AT+4*k,2)}")
        st.e(f"v_pk_fma_f32 {vr(LNA+2,2)}, {vr(AT+4*k,2)}, {vr(AT+4*k,2)}, {vr(LNA+2,2)}")
        st.e(f"v_pk_add_f32 {vr(LNA+4,2)}, {vr(LNA+4,2)}, {vr(AT+4*k+2,2)}")
def ln_final(st, sc=SC):
    A, B, M = LNA, LNA + 2, LNA + 4
    t = AT
    st.e(f"v_mul_f32 v{A}, {f2u(48.0)}, v{A}"); st.e(f"v_fmac_f32 v{A}, {f2u(64.0)}, v{A+1}")
    st.e(f"v_mul_f32 v{B}, {f2u(48.0)}, v{B}"); st.e(f"v_fmac_f32 v{B}, {f2u(64.0)}, v{B+1}")
    st.e(f"v_add_f32 v{M}, v{M}, v{M+1}")
    st.e(f"v_add_f32 v{M}, v{M}, v{B}")
    st.e(f"v_mul_f32 v{A+1}, {f2u(1.0/1792)}, v{A}")
    st.e(f"v_fma_f32 v{M}, -v{A}, v{A+1}, v{M}")
    st.e(f"v_mul_f32 v{M}, {f2u(1.0/1792)}, v{M}")
    st.e(f"v_max_f32 v{M}, 0, v{M}")
    st.e(f"v_add_f32 v{M}, {f2u(1e-5)}, v{M}")
    st.e(f"v_rsq_f32 v{M}, v{M}")
    st.e(f"v_sub_f32 v{A}, v24, v{A+1}")
    st.e(f"v_mul_f32 v{A}, v{A}, v{M}")
    st.e(f"v_and_b32 v{B}, 15, v1")
    st.e(f"v_lshlrev_b32 v{B}, 2, v{B}")
    for i in range(4):
        st.e(f"ds_bpermute_b32 v{t+2*i}, v{B}, v{M} offset:{64*i}")
        st.e(f"ds_bpermute_b32 v{t+2*i+1}, v{B}, v{A} offset:{64*i}")
    st.e(f"v_bfe_u32 v{B}, v1, 2, 1"); st.e(f"v_lshlrev_b32 v{B}, 9, v{B}")
    st.e(f"v_bfe_u32 v{B+1}, v1, 3, 1"); st.e(f"v_lshl_or_b32 v{B}, v{B+1}, 7, v{B}")
    st.e(f"v_and_b32 v{B+1}, 3, v1"); st.e(f"v_lshl_or_b32 v{B}, v{B+1}, 5, v{B}")
    st.e(f"v_lshrrev_b32 v{B+1}, 4, v1"); st.e(f"v_lshl_or_b32 v{B}, v{B+1}, 3, v{B}")
    st.e(f"s_mul_i32 s56, {S_CB}, 458752")
    st.e(f"s_lshl_b32 s57, {S_RB}, 1"); st.e(f"s_add_u32 s57, s57, {S_WR}")
    st.e("s_mul_i32 s57, s57, 14336")
    st.e("s_add_u32 s56, s56, s57")
    st.e(f"s_lshl_b32 s57, {S_WC}, 12")
    st.e("s_add_u32 s56, s56, s57")
    st.e(f"s_add_u32 s56, s56, {WS_ZN}")
    st.e("s_add_u32 s57, s56, 7168")
    st.e("s_sub_u32 s58, s56, 1024"); st.e("s_sub_u32 s59, s57, 1024")
    st.e(f"s_cmp_eq_u32 {S_WC}, 1")
    st.e(f"s_cselect_b32 s58, s58, {WS_SIZE}"); st.e(f"s_cselect_b32 s59, s59, {WS_SIZE}")
    st.e("s_mov_b32 s60, 0xffff0000")
    st.wait(lgkm=0)
    k = 0
    for j in (4, 5, 6, 3):
        for i in range(4):
            u = t + 8 + 8 * (k % 3); k += 1
            z = ZP + (j * 4 + i) * 2
            for h in range(2):
                st.e(f"v_lshlrev_b32 v{u+2*h}, 16, v{z+h}")
                st.e(f"v_and_b32 v{u+2*h+1}, s60, v{z+h}")
            for h in range(2):
                st.e(f"v_pk_fma_f32 {vr(u+2*h,2)}, {vr(u+2*h,2)}, {vr(t+2*i,2)}, {vr(t+2*i,2)} op_sel:[0,0,1] op_sel_hi:[1,0,1]")
            for h in range(2):
                st.e(f"v_cvt_pk_bf16_f32 v{u+4+h}, v{u+2*h}, v{u+2*h+1}")
            so = (56 if j >= 4 else 58) + i // 2
            off = (i % 2) * 256 + (j - 4) * 1024 if j >= 4 else (i % 2) * 256
            st.e(f"buffer_store_dwordx2 {vr(u+4,2)}, v{B}, {SRD_WS}, s{so} offen offset:{off}{sc}", tag='zn')

def p2_main(st, hooks=None, sc=SC, defer=(), before_epi=None, extras=None):
    extras = extras or {}
    hooks = hooks or {}
    held = []
    p2_setup2(st)
    st.wait(tag=('u', -1))
    st.e(m32(SA, uK(-1, 0), Qf(0, 0), '0')); st.e(m32(SA, uK(-1, 1), Qf(0, 1), SA))
    st.e(m32(SB, uK(-1, 0), Qf(1, 0), '0')); st.e(m32(SB, uK(-1, 1), Qf(1, 1), SB))
    rowmax(st, SA, AT, AT + 1)
    for i in range(16): st.e(f"v_sub_f32 v{CA+i}, 0, v{AT}")
    rowmax(st, SB, AT + 2, AT + 3)
    for i in range(16): st.e(f"v_sub_f32 v{CB+i}, 0, v{AT+2}")
    st.e(m32(SA, uK(-1, 0), Qf(0, 0), CA)); st.e(m32(SA, uK(-1, 1), Qf(0, 1), SA))
    st.e("s_nop 7")
    for j in range(64):
        st.mark(('chunk', 'att', RING))
        if j in hooks: hooks[j](st)
        mf = [m32(SB, uK(j - 1, 0), Qf(1, 0), CB), m32(SB, uK(j - 1, 1), Qf(1, 1), SB)]
        if j > 0:
            f = (j == 1)
            mf += [m32(OB, uV(j - 1, 0), vr(PB, 4), '0' if f else OB), m16s(LB, PB, f), m32(OB, uV(j - 1, 1), vr(PB + 4, 4), OB), m16s(LB, PB + 4)]
        att_phase(st, mf, softmax_valu(SA, PA), held + extras.get(j, []))
        held = []
        st.wait(tag=('u', j))
        mf = []
        if j < 63: mf += [m32(SA, uK(j, 0), Qf(0, 0), CA), m32(SA, uK(j, 1), Qf(0, 1), SA)]
        f = (j == 0)
        mf += [m32(OA, uV(j, 0), vr(PA, 4), '0' if f else OA), m16s(LA, PA, f), m32(OA, uV(j, 1), vr(PA + 4, 4), OA), m16s(LA, PA + 4)]
        ul = unit_loads(j + RING - 1) if j + RING - 1 < 64 else []
        if os.environ.get('ATT_NOLOAD') and j > 0: ul = []
        if j in defer: held, ul = ul, []
        att_phase(st, mf, softmax_valu(SB, PB), ul)
    st.mark(('endchunks',))
    st.e(m32(OB, uV(63, 0), vr(PB, 4), OB)); st.e(m16s(LB, PB)); st.e(m32(OB, uV(63, 1), vr(PB + 4, 4), OB)); st.e(m16s(LB, PB + 4))
    if before_epi: before_epi(st)
    t = AT
    st.e(f"v_max_f32 v{t}, v{LA}, v{LB}")
    st.e(f"v_mul_f32 v{t+2}, 0, v{LA}"); st.e(f"v_mul_f32 v{t+3}, 0, v{LB}")
    for r in range(OA, OA + 32, 2): st.e(f"v_pk_fma_f32 {vr(t+2,2)}, {vr(r,2)}, 0, {vr(t+2,2)}")
    st.e(f"v_add_f32 v{t}, v{t}, v{t+2}")
    st.e(f"v_add_f32 v{t}, v{t}, v{t+3}")
    st.e(f"v_cmp_nge_f32 vcc, {f2u(2.0**30)}, v{t}")
    ok = st.newlabel("ATT_OK")
    st.nobg(True)
    st.e(f"s_cbranch_vccz {ok}")
    p2_fallback(st)
    st.flush_hazards()
    st.label(ok, soft=True)
    st.nobg(False)
    st.e(f"v_rcp_f32 v{t}, v{LA}"); st.e(f"v_rcp_f32 v{t+2}, v{LB}")
    st.e(f"s_mul_i32 s56, {S_RB}, {88*8192}")
    st.e("s_lshr_b32 s57, s65, 5")
    st.e("s_add_u32 s56, s56, s57")
    st.e(f"s_lshl_b32 s57, {S_WR}, 12")
    st.e("s_add_u32 s56, s56, s57")
    st.e(f"s_add_u32 s56, s56, {WS_XF - (WS_KV >> 5)}")
    st.e(f"v_bfe_u32 v{t+4}, v1, 4, 1"); st.e(f"v_lshlrev_b32 v{t+4}, 10, v{t+4}")
    st.e(f"v_lshrrev_b32 v{t+5}, 5, v1"); st.e(f"v_lshl_or_b32 v{t+4}, v{t+5}, 8, v{t+4}")
    st.e(f"v_and_b32 v{t+5}, 15, v1"); st.e(f"v_lshl_or_b32 v{t+4}, v{t+5}, 4, v{t+4}")
    for q, (O, rr) in enumerate(((OA, t), (OB, t + 2))):
        for r in range(0, 16, 2):
            st.e(f"v_pk_mul_f32 {vr(O+r,2)}, {vr(O+r,2)}, {vr(rr,2)} op_sel_hi:[1,0]")
        P = PA + 8 * q
        for c in range(8): st.e(f"v_cvt_pk_bf16_f32 v{P+c}, v{O+2*c}, v{O+2*c+1}")
        for a in (0, 4):
            st.e(f"v_permlane32_swap_b32 v{P+a}, v{P+a+2}")
            st.e(f"v_permlane32_swap_b32 v{P+a+1}, v{P+a+3}")
        for a in (0, 4):
            st.e(f"buffer_store_dwordx4 {vr(P+a,4)}, v{t+4}, {SRD_WS}, s56 offen offset:{q*2048 + a*128}{sc}", tag='o')

def p2_fallback(st):
    t = AT
    MA, MB_ = t + 8, t + 9
    st.e("s_waitcnt vmcnt(0)")
    st.e(f"v_mov_b32 v{MA}, {f2u(-3.0e38)}"); st.e(f"v_mov_b32 v{MB_}, {f2u(-3.0e38)}")
    for r in list(range(OA, OA + 32)) + list(range(LA, LA + 8)): st.e(f"v_mov_b32 v{r}, 0")
    st.e(f"s_mov_b32 {S_KV}, s65")
    st.e("s_mov_b32 s58, 64")
    lp = st.newlabel("ATT_FB")
    st.flush_hazards()
    st.label(lp)
    for k in range(4):
        st.e(f"buffer_load_dwordx4 {ar(4*k,4)}, v{V_L16}, {SRD_WS}, {S_KV} offen offset:{1024*k}{SC}", count=False)
    st.e(f"s_add_u32 {S_KV}, {S_KV}, 4096")
    st.e("s_waitcnt vmcnt(0)")
    for q, (S, O, P, L, M) in enumerate(((SA, OA, PA, LA, MA), (SB, OB, PB, LB, MB_))):
        st.e(m32(S, ar(0, 4), Qf(q, 0), '0')); st.e(m32(S, ar(4, 4), Qf(q, 1), S))
        rowmax(st, S, t, t + 1)
        st.e(f"v_max_f32 v{t}, v{t}, v{M}")
        st.e(f"v_sub_f32 v{t+1}, v{M}, v{t}")
        st.e(f"v_exp_f32 v{t+1}, v{t+1}")
        st.e(f"v_mov_b32 v{M}, v{t}")
        for r in range(16): st.e(f"v_mul_f32 v{O+r}, v{t+1}, v{O+r}")
        st.e(f"v_mul_f32 v{L}, v{t+1}, v{L}")
        for r in range(16): st.e(f"v_sub_f32 v{S+r}, v{S+r}, v{M}")
        for r in range(16): st.e(f"v_exp_f32 v{S+r}, v{S+r}")
        for c in range(8): st.e(f"v_cvt_pk_bf16_f32 v{P+c}, v{S+2*c}, v{S+2*c+1}")
        st.e(m32(O, ar(8, 4), vr(P, 4), O)); st.e(m16s(L, P)); st.e(m32(O, ar(12, 4), vr(P + 4, 4), O)); st.e(m16s(L, P + 4))
    st.flush_hazards()
    st.e("s_sub_u32 s58, s58, 1")
    st.e("s_cmp_lg_u32 s58, 0")
    st.e(f"s_cbranch_scc1 {lp}")

def k2(st):
    p2_setup(st)
    p2_prefetch(st)
    spill(st, QREGS + ZREGS, 0, load=True)
    stamp(st, 1)
    hooks = {24: lambda st: ln_load(st, 0), 27: lambda st: (ln_accum(st, 0), ln_load(st, 1)), 30: lambda st: (ln_accum(st, 1), ln_final(st))}
    if os.environ.get('ATT_NOHOOK'): hooks = {8: lambda st: stamp(st, 'att8'), 49: lambda st: stamp(st, 'att49')}
    p2_main(st, hooks)
    stamp(st, 3)

P3_SLOT = 30720; P3_NB = 5
V_B = 248
V_G = 8
def p3_setup(st):
    setup_x_natural(st, 4096)
    st.e(f"s_mov_b32 {S_SOX}, 0")
    p3_setup_rest(st)

def p3_dma(s):
    slot = (s % P3_NB) * P3_SLOT
    tag = ('st', 'p3', s)
    b = dma_x('p3', slot, s, SRD_WSP, 128)
    b.append(f"s_add_u32 m0, {S_MW}, {slot + 16384}")
    for j in range(3):
        b.append((f"buffer_load_dwordx4 v{V_WD}, {SRD_WS}, {S_SOW} offen offset:{1024*j}{SC} lds", tag))
    b.append(["s_mov_b32 exec_hi, 0", (f"buffer_load_dwordx4 v{V_WD}, {SRD_WS}, {S_SOW} offen offset:3072{SC} lds", tag), "s_mov_b32 exec_hi, -1"])
    b.append(f"s_add_u32 {S_SOW}, {S_SOW}, {0 if NOINC else 14336}")
    return b
def p3_dma_x8(s):
    slot = (s % P3_NB) * P3_SLOT
    tag = ('st', 'p3', s)
    b = []
    for h, so in ((0, S_SOX), (1, S_SOW)):
        b.append(f"s_add_u32 m0, {S_MX}, {slot + 4096 * h}")
        for q in range(4):
            b.append((f"buffer_load_dwordx4 v{V_XD+q}, {SRD_WSP}, {so} offen offset:{1024*q} lds", tag))
        b.append(f"s_add_u32 {so}, {so}, {0 if NOINC else 128}")
    return b
def p3_dma_w7(s):
    slot = (s % P3_NB) * P3_SLOT
    tag = ('st', 'p3', s)
    b = []
    for h, so in ((0, S_SOW), (1, S_SOX)):
        b.append(f"s_add_u32 m0, {S_MW}, {slot + 16384 + 4096 * h}")
        for q in range(4 - h):
            b.append((f"buffer_load_dwordx4 v{V_WD}, {SRD_WS}, {so} offen offset:{1024*q}{SC} lds", tag))
        b.append(f"s_add_u32 {so}, {so}, {0 if NOINC else 14336}")
    return b

def p3_wread(slot, n, hh, db):
    out = []
    for sec in range(2):
        r, imm = ldsaddr(V_WR + 3, slot + 16384 + hh * 7168 + n * 1024 + sec * 512)
        out.append(f"ds_read_b64_tr_b16 {ar(db + 2*sec, 2)}, {r} offset:{imm}")
    return out

def p3_epilogue(st, NT, sc=SC):
    T = V_T
    st.wait(tag='bsp')
    for i in range(4): st.e(f"v_lshlrev_b32 v{V_B+i}, 16, v{V_B+i}")
    st.e(f"v_bfe_u32 v{T}, v1, 4, 1"); st.e(f"v_lshlrev_b32 v{T}, 10, v{T}")
    st.e(f"v_lshrrev_b32 v{T+1}, 5, v1"); st.e(f"v_lshl_or_b32 v{T}, v{T+1}, 8, v{T}")
    st.e(f"v_and_b32 v{T+1}, 15, v1"); st.e(f"v_lshl_or_b32 v{T}, v{T+1}, 4, v{T}")
    st.e(f"s_mul_i32 s56, {S_RB}, {88*8192}")
    st.e(f"s_lshl_b32 s57, {S_WR}, 12")
    st.e("s_add_u32 s56, s56, s57")
    st.e(f"s_add_u32 s56, s56, {WS_XF + 32*8192}")
    st.e(f"s_mul_i32 s57, {S_CB}, 7")
    if NT == 3: st.e("s_add_u32 s57, s57, 4")
    st.e("s_mov_b32 s60, 0xffff0000")
    k = 0
    for n in range(NT):
        st.e(f"s_add_u32 s58, s57, {n}")
        st.e("s_lshr_b32 s59, s58, 1"); st.e("s_lshl_b32 s59, s59, 13")
        st.e("s_and_b32 s58, s58, 1"); st.e("s_lshl_b32 s58, s58, 9")
        st.e("s_add_u32 s58, s58, s59"); st.e("s_add_u32 s58, s58, s56")
        for ip in (0, 2):
            u = TMP + 16 * (k % 2); k += 1
            for d in range(2):
                i = ip + d; a = accr(n, i); z = ZP + (n * 4 + i) * 2
                for h in range(2):
                    st.e(f"v_lshlrev_b32 v{u+4*d+2*h}, 16, v{z+h}")
                    st.e(f"v_and_b32 v{u+4*d+2*h+1}, s60, v{z+h}")
                bp = V_B + (i // 2) * 2
                sel = "op_sel_hi:[1,0]" if i % 2 == 0 else "op_sel:[0,1] op_sel_hi:[1,1]"
                for h in range(2): st.e(f"v_pk_add_f32 {vr(a+2*h,2)}, {vr(a+2*h,2)}, {vr(bp,2)} {sel}")
                for h in range(2): st.e(f"v_pk_mul_f32 {vr(a+2*h,2)}, {vr(a+2*h,2)}, {vr(u+4*d+2*h,2)}")
                for h in range(2): st.e(f"v_cvt_pk_bf16_f32 v{u+8+2*d+h}, v{a+2*h}, v{a+2*h+1}")
            st.e(f"v_permlane16_swap_b32 v{u+8}, v{u+10}")
            st.e(f"v_permlane16_swap_b32 v{u+9}, v{u+11}")
            st.e(f"buffer_store_dwordx4 {vr(u+8,4)}, v{T}, {SRD_WS}, s58 offen offset:{ip*1024}{sc}", tag='u', count=(n < 3))

def p3_all(st, sc=SC, pre_issued=False, **kw):
    if not pre_issued:
        for s in range(P3_NB):
            for f in p3_dma(s): emit_filler(st, f)
    l1 = st.newlabel("P3_WC1"); le = st.newlabel("P3_END")
    bg0 = list(st.bg); st.bg = []
    st.e(f"s_cmp_eq_u32 {S_WC}, 1")
    st.e(f"s_cbranch_scc1 {l1}")
    vm0 = list(st.vm)
    res = []
    for NT in (4, 3):
        st.vm = list(vm0); st.bg = list(bg0)
        if NT == 3: st.label(l1)
        assert not st.bg
        if NT == 4:
            st.e(f"s_add_u32 {S_SOW}, {S_SOX}, {32*4096}")
            dm = p3_dma_x8
        else:
            st.e(f"s_mul_i32 s56, {S_WR}, 7168")
            st.e(f"s_sub_u32 {S_SOW}, {S_SOW}, {S_MW}")
            st.e(f"s_add_u32 {S_SOW}, {S_SOW}, s56")
            st.e(f"s_mov_b32 {S_MW}, s56")
            st.e(f"s_add_u32 {S_SOX}, {S_SOW}, 4096")
            dm = p3_dma_w7
        gemm(st, 'p3', 32, P3_NB, P3_SLOT, dm, xread_natural, p3_wread, mf_plain(), 4, NT, pre_issued=True, grp=f"p3_{NT}", **kw)
        later = st.bg; st.bg = []
        nb = 0
        cut = 0
        while cut < len(later) and nb < P3_EPI_BG:
            if isdma(later[cut]): nb += 1
            cut += 1
        st.bg = later[:cut]; st.bg_every = 8 if NT == 4 else 6; st._bgc = 0
        p3_epilogue(st, NT, sc)
        emit_all(st, st.bg); st.bg = []
        res.append([t for t in st.vm if t != 'u'])
        vm_end = list(st.vm)
        st.flush_hazards() if NT == 4 else None
        if NT == 4: st.e(f"s_branch {le}")
    assert res[0] == res[1]
    st.vm = [t for t in vm_end if t != 'u']
    st.vm_mark('u')
    st.flush_hazards()
    st.label(le)
    st.bg = later[cut:]
P3_EPI_BG = 12

def k3(st):
    p3_setup(st)
    spill(st, ZREGS, 4, load=True)
    stamp(st, 1)
    p3_all(st)
    stamp(st, 4)

P4_SLOT = 24576; P4_NB = 6
def p4_setup(st):
    T = V_T
    st.e(f"v_lshlrev_b32 v{V_XD}, 4, v1")
    st.e(f"s_lshl_b32 {S_MX}, {S_WAVE}, 12")
    st.e(f"s_lshl_b32 s56, {S_WR}, 12")
    st.e(f"v_add_u32 v{V_XR}, s56, v{V_XD}")
    copies(st, V_XR)
    st.e(f"s_mul_i32 {S_SOX}, {S_RB}, {88*8192}")
    st.e(f"s_add_u32 {S_SOX}, {S_SOX}, {S_MX}")
    st.e(f"s_add_u32 {S_SOX}, {S_SOX}, {WS_XF}")
    setup_w128_read(st)
    st.e(f"v_lshrrev_b32 v{T}, 3, v1")
    st.e(f"v_lshlrev_b32 v{T}, 11, v{T}")
    st.e(f"v_bfe_u32 v{T+1}, v1, 1, 2")
    st.e(f"v_bfe_u32 v{T+2}, v1, 4, 1")
    st.e(f"v_xor_b32 v{T+1}, v{T+1}, v{T+2}")
    st.e(f"v_lshl_add_u32 v{T}, v{T+1}, 5, v{T}")
    st.e(f"v_and_b32 v{T+1}, 1, v1")
    st.e(f"v_lshl_add_u32 v{T}, v{T+1}, 4, v{T}")
    st.e(f"s_lshl_b32 s56, {S_WAVE}, 15")
    st.e(f"s_lshl_b32 s57, {S_CB}, 7")
    st.e("s_add_u32 s56, s56, s57")
    st.e(f"v_add_u32 v{V_WD}, s56, v{T}")
    st.e(f"v_xor_b32 v{T}, 64, v{T}")
    st.e(f"s_add_u32 s56, s56, {8*2048 - 1024}")
    st.e(f"v_add_u32 v{V_WD+1}, s56, v{T}")
    st.e(f"s_lshl_b32 {S_MW}, {S_WAVE}, 11")
    st.e(f"s_mov_b32 {S_SOW}, 0")

def p4_gate_load(st, sc=SC):
    st.e(f"s_lshl_b32 s56, {S_RB}, 9"); st.e(f"s_lshl_b32 s57, {S_WR}, 8"); st.e("s_add_u32 s56, s56, s57")
    st.e(f"s_add_u32 s56, s56, {WS_G}")
    st.e(f"v_and_b32 v{V_T+6}, 15, v1"); st.e(f"v_lshlrev_b32 v{V_T+6}, 2, v{V_T+6}")
    for i in range(4):
        st.e(f"buffer_load_dword v{V_G+i}, v{V_T+6}, {SRD_WS}, s56 offen offset:{64*i}{sc}", tag='gld')

P4_ROT = 3 if FUSED else 0
def p4_dma(s):
    slot = ((s + P4_ROT) % P4_NB) * P4_SLOT
    tag = ('st', 'p4', s)
    b = [f"s_add_u32 m0, {S_MX}, {slot}"]
    for q in range(4):
        b.append((f"buffer_load_dwordx4 v{V_XD}, {SRD_WS}, {S_SOX} offen offset:{1024*q}{SC} lds", tag))
    b.append(f"s_add_u32 {S_SOX}, {S_SOX}, {0 if NOINC else 16384}")
    w = dma_w('p4', slot, s, SRD_WO if s < 16 else SRD_WOUT, 64 * 2048, 2)
    if s == 15: w[-1] = f"s_mov_b32 {S_SOW}, 0"
    return b + w

def p4_xread(slot, i, hh, dst):
    r, imm = ldsaddr(V_XR, slot + hh * 8192 + i * 1024)
    return f"ds_read_b128 {dst}, {r} offset:{imm}"

def p4_main(st, **kw):
    def mf(s, hh, n, i, wf, xf):
        a = vr(accr(n, i, ACC if s < 16 else ACC + 32), 4)
        c = "0" if (s in (0, 16) and hh == 0) else a
        return f"v_mfma_f32_16x16x32_bf16 {a}, {wf}, {xf}, {c}"
    gemm(st, 'p4', 44, P4_NB, P4_SLOT, p4_dma, p4_xread, w128_read(lambda n: 0, lambda n: n), mf, 4, 2, rot=P4_ROT, **kw)

def p4_epilogue(st):
    T = V_T
    st.wait(tag='gld')
    st.e(f"v_and_b32 v{T}, 15, v1"); st.e(f"v_lshlrev_b32 v{T}, 11, v{T}")
    st.e(f"v_bfe_u32 v{T+1}, v1, 4, 1"); st.e(f"v_lshl_or_b32 v{T}, v{T+1}, 5, v{T}")
    st.e(f"v_lshrrev_b32 v{T+1}, 5, v1"); st.e(f"v_lshl_or_b32 v{T}, v{T+1}, 4, v{T}")
    st.e(f"s_lshl_b32 s56, {S_RB}, 18"); st.e(f"s_lshl_b32 s57, {S_WR}, 17"); st.e("s_add_u32 s56, s56, s57")
    st.e(f"s_lshl_b32 s57, {S_CB}, 7"); st.e("s_add_u32 s56, s56, s57")
    st.e(f"s_lshl_b32 s57, {S_WC}, 6"); st.e("s_add_u32 s56, s56, s57")
    for i in range(4):
        u = TMP + 4 * i
        bp = V_G + (i // 2) * 2
        sel = "op_sel_hi:[1,0,1]" if i % 2 == 0 else "op_sel:[0,1,0] op_sel_hi:[1,1,1]"
        for n in range(2):
            a = accr(n, i); b = a + 32
            for h in range(2): st.e(f"v_pk_add_f32 {vr(a+2*h,2)}, {vr(a+2*h,2)}, {vr(b+2*h,2)} neg_lo:[0,1] neg_hi:[0,1]")
            for h in range(2): st.e(f"v_pk_fma_f32 {vr(a+2*h,2)}, {vr(a+2*h,2)}, {vr(bp,2)}, {vr(b+2*h,2)} {sel}")
            for h in range(2): st.e(f"v_cvt_pk_bf16_f32 v{u+2*n+h}, v{a+2*h}, v{a+2*h+1}")
        st.e(f"v_permlane16_swap_b32 v{u}, v{u+2}")
        st.e(f"v_permlane16_swap_b32 v{u+1}, v{u+3}")
        st.e(f"buffer_store_dwordx4 {vr(u,4)}, v{T}, {SRD_OUT}, s56 offen", tag='out')
        if i < 3: st.e("s_add_u32 s56, s56, 32768")

def k4(st):
    p4_setup(st)
    p4_gate_load(st)
    stamp(st, 1)
    p4_main(st, first_stamp=2)
    stamp(st, 3)
    p4_epilogue(st)
    stamp(st, 4)

def spill_addr(st):
    st.e(f"s_lshl_b32 s56, s2, 2")
    st.e(f"s_add_u32 s56, s56, {S_WAVE}")
    st.e(f"s_mul_i32 s56, s56, {18*1024}")
    st.e(f"s_add_u32 s56, s56, {WS_SP}")
    st.e(f"v_lshlrev_b32 v{V_T}, 4, v1")
def spill(st, regs4, idx0, load=False):
    spill_addr(st)
    for k, r in enumerate(regs4):
        idx = idx0 + k
        st.e(f"s_add_u32 s57, s56, {idx*1024}")
        op = "buffer_load_dwordx4" if load else "buffer_store_dwordx4"
        st.e(f"{op} {r}, v{V_T}, {SRD_WS}, s57 offen", tag='spill')
    st.wait(vm0=True)
QREGS = [ar(AQ + 4 * k, 4) for k in range(4)]
ZREGS = [vr(ZP + 4 * k, 4) for k in range(14)]

NSTAMP = 26
def stamp(st, name):
    if not STAMPS: return
    names = st.__dict__.setdefault('stamp_names', [])
    name = str(name)
    if name not in names: names.append(name)
    idx = names.index(name)
    assert idx < NSTAMP
    st.e("s_memtime s[96:97]" if CYC else "s_memrealtime s[96:97]")
    st.e("s_waitcnt lgkmcnt(0)")
    st.e(f"s_mov_b32 s{70+idx}, s96")
def write_stamps(st, kidx):
    if not STAMPS: return
    st.e("s_waitcnt vmcnt(0)")
    stamp(st, 'end')
    st.e(f"s_lshl_b32 s56, s2, 2")
    st.e(f"s_add_u32 s56, s56, {S_WAVE}")
    st.e(f"s_lshl_b32 s56, s56, 7")
    st.e(f"s_add_u32 s56, s56, {WS_TS + kidx * 131072}")
    st.e("v_mov_b32 v2, 0")
    for i in range(len(st.stamp_names)):
        st.e(f"v_mov_b32 v3, s{70+i}")
        st.e(f"buffer_store_dword v3, v2, {SRD_WS}, s56 offen offset:{4*i}")
    open(sys.argv[1] + ".names", "a").write(",".join(st.stamp_names) + "\n")

def kernel_text(kname, body, kidx=0):
    st = Stream()
    st.endlabel = f"END_{kname}"
    if STAMPS:
        st.e("s_memtime s[98:99]" if CYC else "s_memrealtime s[98:99]")
    setup(st)
    if STAMPS:
        st.stamp_names = ['start']
        st.e("s_mov_b32 s70, s98")
    body(st)
    write_stamps(st, kidx)
    st.label(st.endlabel)
    st.e("s_endpgm")
    hdr = f".globl {kname}\n.p2align 8\n.type {kname},@function\n{kname}:\n"
    return hdr + st.text() + f"\n.set CODE_BYTES, ({st.endlabel} - {kname} - 512) & 0xffffff00\n", st

def descriptor(kname):
    return f""".p2align 6
.amdhsa_kernel {kname}
  .amdhsa_next_free_vgpr 512
  .amdhsa_next_free_sgpr 102
  .amdhsa_accum_offset 256
  .amdhsa_group_segment_fixed_size 0
  .amdhsa_kernarg_size 96
  .amdhsa_user_sgpr_count 2
  .amdhsa_user_sgpr_kernarg_segment_ptr 1
  .amdhsa_system_sgpr_workgroup_id_x 1
  .amdhsa_float_denorm_mode_32 3
.end_amdhsa_kernel
"""

def k1a(st):
    p1a_setup(st)
    stamp(st, 1)
    gate_issue(st)
    p1a_main(st, first_stamp=2, after_issue=gate_finish)
    stamp(st, 3)
    p1a_epilogue(st)
    stamp(st, 4)
    spill(st, QREGS, 0)

class Rec:
    def __init__(self): self.l = []
    def e(self, text, tag=None, count=True): self.l.append((text, tag) if tag is not None else text)
def rec(fn, *a):
    r = Rec(); fn(r, *a); return r.l

AST = 192
def stash(st, vregs, a0):
    for k, v in enumerate(vregs): st.e(f"v_accvgpr_write_b32 a{a0+k}, v{v}")
def unstash(vregs, a0):
    return [f"v_accvgpr_read_b32 v{v}, a{a0+k}" for k, v in enumerate(vregs)]
R_WD7 = list(range(V_WD, V_WD + 7)); R_WR = list(range(V_WR, V_WR + 6)); R_XD = list(range(V_XD, V_XD + 4)); R_XR = list(range(V_XR, V_XR + 6))
A_1B_WD, A_1B_WR, A_3_XD, A_XR, A_4_WD, A_4_WR, A_1B_W3, A_TSP = AST, AST + 7, AST + 13, AST + 17, AST + 23, AST + 25, AST + 31, AST + 32

def flat(items):
    out = []
    for s_ in items: out += s_
    return out
def bundle(items, n):
    return [items[k:k + n] for k in range(0, len(items), n)]

NOTOUCH = bool(os.environ.get('NOTOUCH'))
V_TX, V_TW, V_TD = 244, 245, 246
S_G = 's100'
def sweep_items(srd, nbytes, piece, npieces, va, vd):
    if NOTOUCH: return []
    pc = nbytes // npieces
    assert pc // 1024 <= 2048
    return [f"s_mul_i32 s58, {S_G}, {pc // 1024}", f"s_add_u32 s58, s58, {piece * pc}",
            (f"buffer_load_dword v{vd}, v{va}, {srd}, s58 offen", 'touch')]
def touch_code(st, vtmp):
    if NOTOUCH: return
    st.e("s_getpc_b64 s[58:59]")
    st.e("s_and_b32 s58, s58, 0xffffff00")
    st.e("s_lshr_b32 s56, s2, 3")
    st.e("s_lshl_b32 s56, s56, 2")
    st.e(f"s_add_u32 s56, s56, {S_WAVE}")
    st.e("s_lshl_b32 s56, s56, 10")
    st.e(f"s_min_u32 s56, s56, CODE_BYTES - 1024")
    st.e(f"v_lshlrev_b32 v{vtmp}, 4, v1")
    st.e(f"v_add_u32 v{vtmp}, s56, v{vtmp}")
    st.e(f"global_load_dword v{vtmp}, v{vtmp}, s[58:59]", tag='touch')
V_S16 = 243
def t1a_setup(st):
    T = V_T
    st.e(f"s_lshl_b32 {S_G}, s2, 2"); st.e(f"s_add_u32 {S_G}, {S_G}, {S_WAVE}")
    st.e(f"v_and_b32 v{V_S16}, 15, v1"); st.e(f"v_lshlrev_b32 v{V_S16}, 7, v{V_S16}")
    st.e(f"v_bfe_u32 v{T}, v1, 2, 1"); st.e(f"v_lshlrev_b32 v{T}, 11, v{T}")
    st.e(f"v_and_b32 v{T+1}, 3, v1"); st.e(f"v_lshl_add_u32 v{V_TX}, v{T+1}, 7, v{T}")
def t1a(st, q):
    if NOTOUCH: return
    st.e(f"s_lshl_b32 s58, {S_G}, 12")
    st.e(f"buffer_load_dword v{V_TD}, v{V_TX}, {SRD_X}, s58 offen offset:{q * 512}", tag='touch')
    emit_all(st, sweep_items(SRD_WQKV, 1024 * 3072 * 2, q, 4, V_S16, V_TD))
def emit_all(st, items):
    for x in items: emit_filler(st, x)

def fused(st):
    t1a_setup(st)
    t1a(st, 0)
    touch_code(st, 242)
    t1a(st, 1)
    p1a_setup(st)
    flags_setup(st)
    stamp(st, 'setup')
    save = R_XD + R_WD7[:6] + R_WR
    stash(st, save, AST + 40)
    st.e(f"s_mov_b32 s67, {S_SOX}"); st.e(f"s_mov_b32 s68, {S_SOW}"); st.e(f"s_mov_b32 s69, {S_MW}")
    stash(st, R_XR, A_XR)
    stash(st, R_WR, A_4_WR)
    p1b_setup(st, x_done=True)
    stash(st, R_WD7, A_1B_WD); stash(st, R_WR, A_1B_WR); stash(st, [V_W3], A_1B_W3)
    setup_x_natural(st, 4096)
    stash(st, R_XD, A_3_XD)
    p4_setup(st)
    stash(st, R_WD7[:2], A_4_WD)
    for t in unstash(save, AST + 40) + unstash(R_XR, A_XR): st.e(t)
    st.e(f"s_mov_b32 {S_SOX}, s67"); st.e(f"s_mov_b32 {S_SOW}, s68"); st.e(f"s_mov_b32 {S_MW}, s69")
    st.e("s_lshr_b32 s56, s2, 6"); st.e("s_lshl_b32 s56, s56, 5")
    st.e(f"s_lshl_b32 s57, {S_RB}, 7"); st.e("s_add_u32 s56, s56, s57")
    st.e(f"s_lshl_b32 s57, {S_WAVE}, 3"); st.e("s_add_u32 s56, s56, s57")
    st.e(f"v_bfe_u32 v{V_T}, v1, 2, 3"); st.e(f"v_add_u32 v{V_T}, s56, v{V_T}")
    st.e(f"v_lshlrev_b32 v{V_T}, 12, v{V_T}")
    st.e(f"v_and_b32 v{V_T+1}, 1, v1"); st.e(f"v_lshl_add_u32 v{V_T}, v{V_T+1}, 7, v{V_T}")
    stash(st, [V_T], A_TSP)
    stamp(st, 'precomp')
    emit_all(st, p1a_dma(0))
    gate_issue(st)
    emit_all(st, p1a_dma(1))
    stamp(st, 'issued')
    gate_finish(st)
    st.bg = p1a_dma(2) + p1a_dma(3)
    win = lambda st, p: emit_all(st, sweep_items(SRD_WIN, 1024 * 3584 * 2, p, 4, V_S16, V_TD))
    at = {(1, 'B'): lambda st: t1a(st, 2), (4, 'A'): lambda st: t1a(st, 3),
          (6, 'B'): lambda st: win(st, 0), (9, 'A'): lambda st: win(st, 1), (11, 'B'): lambda st: win(st, 2), (14, 'A'): lambda st: win(st, 3)}
    at.update({(4, 'B'): lambda st: stamp(st, '1a_s4'), (12, 'A'): lambda st: stamp(st, '1a_s12')})
    pre1b = lambda: unstash(R_WD7, A_1B_WD) + [f"s_mov_b32 {S_SOX}, 0", f"s_mov_b32 {S_SOW}, 0", f"s_mul_i32 {S_MW}, {S_WAVE}, 7168"]
    p1a_main(st, pre_issued=True, first_stamp='1a_first', at=at,
             nxt={13: lambda: pre1b() + p1b_dma(0), 14: lambda: p1b_dma(1), 15: lambda: p1b_dma(2)})
    stamp(st, '1a_main')
    st.bg_every = 10
    p1a_epilogue(st)
    for t in unstash(R_WR, A_1B_WR) + unstash([V_W3], A_1B_W3): st.e(t)
    copies(st, V_W3)
    stamp(st, '1a_epi')
    p1b_main(st, pre_issued=True, publish=(1, ['kv', 'gst'], 2), first_stamp='1b_first',
             nxt={15: lambda: rec(p2_setup) + rec(p2_prefetch)},
             at={(4, 'A'): lambda st: stamp(st, '1b_s4'),
                 (14, 'A'): lambda st: poll_issue(st, 'cb', 'pkv'), (15, 'A'): lambda st: poll_check(st, 'cb', 'pkv', 1)})
    stamp(st, '1b_main')
    st.bg_every = 16
    p1b_epilogue(st)
    emit_all(st, st.bg); st.bg = []
    stamp(st, '1b_epi')
    def drain_publish(val, tag):
        def f(st):
            st.wait(tag=tag)
            st.e("s_barrier")
            do_publish(st, val)
        return f
    VS = 21
    def sweep_setup(st):
        st.e(f"v_and_b32 v{VS}, 15, v1"); st.e(f"v_lshlrev_b32 v{VS}, 7, v{VS}")
        for t in unstash(R_XD, A_3_XD) + unstash([VS + 1], A_TSP): st.e(t)
        st.e(f"s_mov_b32 {S_SOX}, 0")
    hooks = {
        1: lambda st: (stamp(st, 'att1'), sweep_setup(st)),
        5: drain_publish(2, 'stat'),
        20: lambda st: (stamp(st, 'att20'), poll_issue(st, 'rb', 'pst')),
        23: lambda st: (poll_check(st, 'rb', 'pst', 2), ln_load(st, 0)),
        26: lambda st: (ln_accum(st, 0), ln_load(st, 1)),
        29: lambda st: (ln_accum(st, 1), ln_final(st)),
        36: drain_publish(3, 'zn'),
        40: lambda st: stamp(st, 'att40'),
        49: lambda st: poll_issue(st, 'cb', 'pzn'),
        52: lambda st: (poll_check(st, 'cb', 'pzn', 3), p3_setup_rest(st)),
    }
    extras = {}
    for p in range(4): extras[2 + 4 * p] = [sweep_items(SRD_WSP, 2048 * 2048 * 2, p, 4, VS, 19)]
    for p in range(2): extras[18 + 4 * p] = [sweep_items(SRD_WOUT, 1792 * 1024 * 2, p, 2, VS, 19)]
    extras[27] = [sweep_items(SRD_WO, 1024 * 1024 * 2, 0, 1, VS, 19)]
    for s_ in range(P3_NB):
        d = dma_x('p3', s_ * P3_SLOT, s_, SRD_WSP, 128)
        extras[30 + 2 * s_] = [d[0:2], d[2]]
        extras[31 + 2 * s_] = [d[3], d[4:6]]
    for s_ in range(P3_NB):
        d = p3_dma(s_)[6:]
        extras[53 + 2 * s_] = [d[0:2], d[2]]
        extras[54 + 2 * s_] = [d[3], d[4:6]]
    if not NOTOUCH:
        for k in range(SP_L2):
            extras[41 + k] = [(f"buffer_load_dword v19, v{VS+1}, {SRD_WSP}, 0 offen offset:{(5 + 2*k) * 128}", 'touch')]
    def before_epi(st):
        stamp(st, 'att64')
    p2_main(st, hooks, before_epi=before_epi, extras=extras)
    for t in unstash(R_XR, A_XR): st.e(t)
    stamp(st, 'att_epi')
    pre4 = lambda: unstash(R_WD7[:2], A_4_WD) + rec(p4_setup_s)
    p3_all(st, pre_issued=True, publish=(4, ['o'], 3), first_stamp='3_first',
           nxt={28: lambda: pre4() + p4_dma(0) + p4_dma(1), 29: lambda: p4_dma(2), 30: lambda: p4_dma(3), 31: lambda: p4_dma(4) + p4_dma(5)},
           at={(6, 'A'): lambda st: stamp(st, '3_s6'), (26, 'A'): lambda st: stamp(st, '3_s26'),
               (26, 'B'): lambda st: poll_issue(st, 'rb', 'po'), (28, 'A'): lambda st: poll_check(st, 'rb', 'po', 4)})
    stamp(st, '3_epi')
    for t in unstash(R_WR, A_4_WR): st.e(t)
    st.e(f"s_lshl_b32 s56, {S_WR}, 12")
    st.e(f"v_add_u32 v{V_XR}, s56, v{V_XD}")
    copies(st, V_XR)
    p4_main(st, pre_issued=True, publish=(5, ['u'], 4), first_stamp='4_first',
            at={(8, 'B'): lambda st: poll_issue(st, 'rb', 'pu'), (10, 'A'): lambda st: stamp(st, '4_s10'),
                (10, 'B'): lambda st: poll_check(st, 'rb', 'pu', 5), (17, 'A'): lambda st: stamp(st, '4_s17'),
                (36, 'A'): p4_gate_load})
    p4_epilogue(st)
SP_L2 = int(os.environ.get('SP_L2', '10'))

def p3_setup_rest(st):
    st.e(f"v_lshlrev_b32 v{V_WD}, 4, v1")
    st.e(f"s_lshl_b32 s56, {S_WC}, 12")
    st.e(f"v_lshlrev_b32 v{V_WR+3}, 3, v1")
    st.e(f"v_add_u32 v{V_WR+3}, s56, v{V_WR+3}")
    copies(st, V_WR + 3)
    st.e(f"s_mul_i32 {S_MW}, {S_WAVE}, 3584")
    st.e(f"s_mul_i32 {S_SOW}, {S_CB}, 458752")
    st.e(f"s_add_u32 {S_SOW}, {S_SOW}, {S_MW}")
    st.e(f"s_add_u32 {S_SOW}, {S_SOW}, {WS_ZN}")
    st.e(f"s_lshl_b32 s56, {S_RB}, 8"); st.e(f"s_lshl_b32 s57, {S_WR}, 7"); st.e("s_add_u32 s56, s56, s57")
    st.e(f"v_and_b32 v{V_T}, 15, v1"); st.e(f"v_lshlrev_b32 v{V_T}, 1, v{V_T}")
    for i in range(4):
        st.e(f"buffer_load_ushort v{V_B+i}, v{V_T}, {SRD_BSP}, s56 offen offset:{32*i}", tag='bsp')

def p4_setup_s(st):
    st.e(f"v_lshlrev_b32 v{V_XD}, 4, v1")
    st.e(f"s_mul_i32 {S_SOX}, {S_RB}, {88*8192}")
    st.e(f"s_add_u32 {S_SOX}, {S_SOX}, {S_MX}")
    st.e(f"s_add_u32 {S_SOX}, {S_SOX}, {WS_XF}")
    st.e(f"s_lshl_b32 {S_MW}, {S_WAVE}, 11")
    st.e(f"s_mov_b32 {S_SOW}, 0")

def build(kernels):
    if STAMPS: open(sys.argv[1] + ".names", "w").close()
    ref = open(os.path.join(os.path.dirname(os.path.abspath(__file__)), "..", "cdna_kernels", NAME + ".s.ref")).read()
    head = [l for l in ref.splitlines() if l.startswith(";") and "@launch" not in l]
    out = "\n".join(head) + "\n"
    for kn, _ in kernels:
        out += f"; @launch kernel={kn} grid=(256,1,1) block=(256,1,1) lds=163840\n"
    out += '.amdgcn_target "amdgcn-amd-amdhsa--gfx950"\n.text\n'
    for kidx, (kn, body) in enumerate(kernels):
        t, st = kernel_text(kn, body, kidx)
        sys.stderr.write(f"{kn}: {len(st.ins)} instrs (unrolled), nops added {st.nops_added}\n")
        out += t
    out += '.section .rodata,"a"\n'
    for kn, _ in kernels: out += descriptor(kn)
    return out

if __name__ == "__main__":
    ks = [("k1a_kernel", k1a), ("k1b_kernel", k1b), ("k2_kernel", k2), ("k3_kernel", k3), ("k4_kernel", k4)]
    if FUSED: ks = [(NAME + "_kernel", fused)]
    if ONLY and not FUSED: ks = [k for k in ks if k[0].split('_')[0] in ONLY.split(',')]
    open(sys.argv[1], "w").write(build(ks))
```

```python
import sys, os, math, struct
sys.path.insert(0, os.path.dirname(os.path.abspath(__file__)))
from asmlib import *

NAME = "gated_mix__mha_block__mixer_gmlp__prompt"
MB = 1 << 20
WS_KV = 0
WS_ZN = 16 * MB
WS_XF = 24 * MB
WS_ST = 36 * MB
WS_G = 37 * MB
WS_TS = 38 * MB
WS_SIZE = 40 * MB
env = lambda k, d: int(os.environ.get(k, d))
STAMPS = env('STAMPS', 0); CYC = env('CYC', 0); NOINC = env('NOINC', 0); NOTOUCH = env('NOTOUCH', 0)
ROT = env('ROT', 2); ROT4 = env('ROT4', 4)
SC = ' sc1'

def f2u(x): return struct.unpack('<I', struct.pack('<f', x))[0]
def vr(b, n): return f"v[{b}:{b+n-1}]"
def ar(b, n): return f"a[{b}:{b+n-1}]"

S_WAVE, S_WR, S_WC, S_RB, S_CB = 's3', 's4', 's5', 's6', 's7'
SRD_X, SRD_WQKV, SRD_WIN, SRD_WSP, SRD_WO, SRD_WOUT, SRD_WS, SRD_OUT, SRD_BSP, SRD_GATE, SRD_DBG = [f"s[{8+4*i}:{11+4*i}]" for i in range(11)]
S_SOX, S_SOW, S_MX, S_MW = 's52', 's53', 's54', 's55'
S_KV, S_HB, S_OFF, S_G = 's64', 's65', 's69', 's100'

def isdma(d): return not (isinstance(d, str) and d.startswith(("s_", "v_")))
def ndma(items): return sum(1 for x in items if isdma(x))
def emit_all(st, items):
    for x in items: emit_filler(st, x)
def flat(items):
    out = []
    for s_ in items: out += s_
    return out
class Rec:
    def __init__(self): self.l = []
    def e(self, text, tag=None, count=True): self.l.append((text, tag) if tag is not None else text)
def rec(fn, *a):
    r = Rec(); fn(r, *a); return r.l

NSTAMP = 21
def stamp(st, name):
    if not STAMPS: return
    sel = os.environ.get('STAMPSET')
    if sel and not (name.startswith(tuple(sel.split(','))) or name == 'end'): return
    if not sel and name.startswith(('x', 'y')): return
    names = st.stamp_names
    if name not in names: names.append(name)
    idx = names.index(name)
    assert idx < NSTAMP
    st.nobg(True)
    st.e("s_memtime s[96:97]" if CYC else "s_memrealtime s[96:97]")
    st.e("s_waitcnt lgkmcnt(0)")
    st.e(f"s_mov_b32 s{70+idx}, s96")
    st.nobg(False)
def write_stamps(st):
    if not STAMPS: return
    st.e("s_waitcnt vmcnt(0)")
    stamp(st, 'end')
    st.e(f"s_lshl_b32 s56, {S_G}, 7")
    st.e(f"s_add_u32 s56, s56, {WS_TS}")
    st.e("v_mov_b32 v2, 0")
    for i in range(len(st.stamp_names)):
        st.e(f"v_mov_b32 v3, s{70+i}")
        st.e(f"buffer_store_dword v3, v2, {SRD_WS}, s56 offen offset:{4*i}")
    open(sys.argv[1] + ".names", "w").write(",".join(st.stamp_names) + "\n")

def merge(reads, dm, G):
    gaps = [[] for _ in range(G)]
    nd = ndma(dm)
    pos = [min(G - 1, (2 * k + 1) * G // (2 * nd)) for k in range(nd)] if nd else []
    k = 0; last = 0
    dg = set(pos)
    post = [[] for _ in range(G)]
    for d in dm:
        if isdma(d):
            post[pos[k]].append(d); last = pos[k]; k += 1
        elif 'm0' in d:
            g = max(pos[k] - 1, last) if k < nd else G - 1
            post[g].append(d); last = g
        else:
            g = min(last + 1, G - 1) if (k < nd and last + 1 < pos[k]) or k >= nd else last
            post[g].append(d); last = g
    free = [g for g in range(G) if g not in dg]
    R = len(reads)
    if R <= len(free):
        for r, g in zip(reads, free): gaps[g].append(r)
    else:
        for j, r in enumerate(reads): gaps[j * G // R].append(r)
    return [gaps[g] + post[g] for g in range(G)]

def setup(st):
    st.e("s_cmp_ge_u32 s2, 256")
    st.e("s_cbranch_scc1 " + st.endlabel)
    st.e("s_load_dwordx16 s[64:79], s[0:1], 0")
    st.e("s_load_dwordx8 s[80:87], s[0:1], 64")
    st.e("v_lshrrev_b32 v2, 6, v0")
    st.e("v_and_b32 v1, 63, v0")
    st.e(f"v_readfirstlane_b32 {S_WAVE}, v2")
    st.e("s_and_b32 s56, s2, 1"); st.e("s_lshl_b32 s56, s56, 3")
    st.e("s_bfe_u32 s57, s2, 0x30003")
    st.e(f"s_or_b32 {S_RB}, s56, s57")
    st.e("s_bfe_u32 s56, s2, 0x20001"); st.e("s_lshl_b32 s56, s56, 2")
    st.e("s_lshr_b32 s58, s2, 6")
    st.e(f"s_or_b32 {S_CB}, s56, s58")
    st.e("s_add_u32 s101, s57, s58")
    st.e(f"s_lshr_b32 {S_WR}, {S_WAVE}, 1")
    st.e(f"s_and_b32 {S_WC}, {S_WAVE}, 1")
    st.e(f"s_lshl_b32 {S_G}, s2, 2"); st.e(f"s_add_u32 {S_G}, {S_G}, {S_WAVE}")
    st.e(f"s_lshl_b32 {S_MX}, {S_WAVE}, 12")
    sweep_setup(st)
    st.e("s_waitcnt lgkmcnt(0)")
    def srd(base, ptr, size):
        st.e(f"s_mov_b32 s{base}, s{ptr}")
        st.e(f"s_and_b32 s{base+1}, s{ptr+1}, 0xffff")
        st.e(f"s_mov_b32 s{base+2}, {size}")
        st.e(f"s_mov_b32 s{base+3}, 0x20000")
    srd(8, 64, 2048 * 1024 * 2)
    srd(12, 66, 1024 * 3072 * 2)
    if SWFIRST: sweep_1a(st, 0)
    st.e("s_mov_b32 s63, s69")
    st.e(f"s_mov_b32 {S_OFF}, s101")
    p1a_setup(st)
    emit_all(st, p1a_dma(0))
    if not SWFIRST: sweep_1a(st, 0)
    touch_code(st)
    sweep_1a(st, 1)
    srd(16, 72, 1024 * 3584 * 2)
    srd(20, 74, 2048 * 2048 * 2)
    st.e("s_mov_b32 s24, s68"); st.e("s_and_b32 s25, s63, 0xffff"); st.e(f"s_mov_b32 s26, {1024*1024*2}"); st.e("s_mov_b32 s27, 0x20000")
    srd(28, 78, 1792 * 1024 * 2)
    srd(32, 86, WS_SIZE)
    srd(36, 82, 2048 * 1024 * 2)
    srd(40, 76, 4096)
    srd(44, 80, 2048)
    gen_load(st)
SWFIRST = env('SWFIRST', 0)

SW0 = env('SW0', 3)
V_S16, V_TX, V_TD = 240, 241, 242
def sweep_setup(st):
    st.e(f"v_and_b32 v{V_S16}, 15, v1"); st.e(f"v_lshlrev_b32 v{V_S16}, 7, v{V_S16}")
    st.e(f"v_bfe_u32 v{V_TX}, v1, 2, 1"); st.e(f"v_lshlrev_b32 v{V_TX}, 11, v{V_TX}")
    st.e(f"v_and_b32 v{V_TD}, 3, v1"); st.e(f"v_lshl_add_u32 v{V_TX}, v{V_TD}, 7, v{V_TX}")
def sweep_items(srd, nbytes, piece, npieces, va, vd):
    if NOTOUCH: return []
    pc = nbytes // npieces
    return [f"s_mul_i32 s58, {S_G}, {pc // 1024}", f"s_add_u32 s58, s58, {piece * pc}",
            (f"buffer_load_dword v{vd}, v{va}, {srd}, s58 offen", 'touch')]
def sweep_1a(st, q):
    if NOTOUCH: return
    st.e(f"s_lshl_b32 s58, {S_G}, 12")
    st.e(f"buffer_load_dword v{V_TD}, v{V_TX}, {SRD_X}, s58 offen offset:{q * 512}", tag='touch')
    emit_all(st, sweep_items(SRD_WQKV, 1024 * 3072 * 2, q, 4, V_S16, V_TD))
def touch_code(st):
    if NOTOUCH: return
    st.e("s_getpc_b64 s[58:59]")
    st.e("s_and_b32 s58, s58, 0xffffff00")
    st.e("s_lshr_b32 s56, s2, 3"); st.e("s_lshl_b32 s56, s56, 2")
    st.e(f"s_add_u32 s56, s56, {S_WAVE}")
    st.e("s_lshl_b32 s56, s56, 10")
    st.e("s_min_u32 s56, s56, CODE_BYTES - 1024")
    st.e("v_lshlrev_b32 v244, 4, v1")
    st.e("v_add_u32 v244, s56, v244")
    st.e(f"global_load_dword v{V_TD}, v244, s[58:59]", tag='touch')

WS_FL = 37 * MB + 65536
S_TAG, S_GEN = 's94', 's95'
def gen_load(st):
    st.e(f"s_add_u32 s86, s86, {WS_FL + 8192}"); st.e("s_addc_u32 s87, s87, 0")
    st.e(f"s_load_dword {S_GEN}, s[86:87], 0")
def flags_setup(st):
    st.e("v_and_b32 v252, 15, v1"); st.e("v_lshlrev_b32 v252, 2, v252")
    st.e(f"s_lshl_b32 s56, {S_RB}, 7"); st.e(f"s_add_u32 s56, s56, {WS_FL}")
    st.e("v_add_u32 v253, s56, v252")
    st.e(f"s_lshl_b32 s57, {S_CB}, 2"); st.e("s_add_u32 s92, s56, s57")
    st.e(f"s_lshl_b32 s56, {S_CB}, 7"); st.e(f"s_add_u32 s56, s56, {WS_FL + 4096}")
    st.e("v_add_u32 v254, s56, v252")
    st.e(f"s_lshl_b32 s57, {S_RB}, 2"); st.e("s_add_u32 s93, s56, s57")
    st.e("v_mov_b32 v255, 0")
def tag_setup(st):
    st.e(f"s_mul_i32 {S_TAG}, {S_GEN}, 0x9e3779b1"); st.e(f"s_add_u32 {S_TAG}, {S_TAG}, 0x7f4a7c15")
    st.e(f"s_and_b32 {S_TAG}, {S_TAG}, 0xfffffff8")
def do_publish(st, val):
    l = st.newlabel("PUB")
    st.nobg(True)
    st.e(f"s_cmp_lg_u32 {S_WAVE}, {PUBW}")
    st.e(f"s_cbranch_scc1 {l}")
    st.e(f"s_add_u32 s99, {S_TAG}, {val}")
    st.e("v_mov_b32 v0, s99")
    st.e("s_mov_b64 exec, 1")
    st.e(f"buffer_store_dword v0, v255, {SRD_WS}, {'s93' if val in (1, 3) else 's92'} offen sc1", count=False)
    st.e("s_mov_b64 exec, -1")
    st.label(l, soft=True)
    st.nobg(False)
PUBW = env('PUBW', 1)
def gen_advance(st):
    l = st.newlabel("GEN")
    st.e(f"s_cmp_lg_u32 {S_G}, 0")
    st.e(f"s_cbranch_scc1 {l}")
    st.e(f"s_add_u32 s99, {S_GEN}, 1")
    st.e("v_mov_b32 v0, s99")
    st.e(f"s_mov_b32 s99, {WS_FL + 8192}")
    st.e("s_mov_b64 exec, 1")
    st.e(f"buffer_store_dword v0, v255, {SRD_WS}, s99 offen sc1", count=False)
    st.e("s_mov_b64 exec, -1")
    st.label(l, soft=True)
def drain_publish(st, val, tag):
    st.wait(tag=tag)
    st.e("s_barrier")
    do_publish(st, val)
def poll_issue(st, grp, tag):
    st.e(f"buffer_load_dword v252, v{253 if grp == 'rb' else 254}, {SRD_WS}, 0 offen sc1", tag=tag)
def poll_check(st, grp, tag, val):
    st.wait(tag=tag)
    ok = st.newlabel("POK"); lp = st.newlabel("PSPIN")
    st.nobg(True)
    st.e(f"s_add_u32 s91, {S_TAG}, {val}")
    st.e("v_subrev_u32 v252, s91, v252")
    st.e(f"v_cmp_lt_u32 vcc, {7 - val}, v252")
    st.e(f"s_cbranch_vccz {ok}")
    st.e("s_mov_b32 s99, 0x8000")
    st.label(lp, soft=True)
    st.e("s_sleep 2")
    st.e(f"buffer_load_dword v252, v{253 if grp == 'rb' else 254}, {SRD_WS}, 0 offen sc1", count=False)
    st.e("s_sub_u32 s99, s99, 1")
    st.e(f"s_cbranch_scc1 {ok}")
    st.e("s_waitcnt vmcnt(0)")
    st.e("v_subrev_u32 v252, s91, v252")
    st.e(f"v_cmp_lt_u32 vcc, {7 - val}, v252")
    st.e(f"s_cbranch_vccnz {lp}")
    st.label(ok, soft=True)
    st.nobg(False)

def xd_natural(st, rowstride, D, T):
    st.e(f"s_lshl_b32 s56, {S_RB}, 7"); st.e(f"s_lshl_b32 s57, {S_WAVE}, 5"); st.e("s_add_u32 s56, s56, s57")
    st.e(f"v_lshrrev_b32 v{T}, 3, v1")
    st.e(f"v_add_u32 v{T}, s56, v{T}")
    st.e(f"v_lshlrev_b32 v{T}, {rowstride.bit_length() - 1}, v{T}")
    st.e(f"v_lshrrev_b32 v{T+1}, 4, v1")
    st.e(f"v_and_b32 v{T+2}, 7, v1")
    st.e(f"v_xor_b32 v{T+1}, v{T+1}, v{T+2}")
    st.e(f"v_lshlrev_b32 v{T+1}, 4, v{T+1}")
    st.e(f"v_add_u32 v{D}, v{T}, v{T+1}")
    st.e(f"v_xor_b32 v{T+1}, 64, v{T+1}")
    st.e(f"v_add_u32 v{T+1}, v{T}, v{T+1}")
    st.e(f"v_add_u32 v{D+1}, {8*rowstride - 1024}, v{T+1}")
    st.e(f"v_add_u32 v{D+2}, {16*rowstride - 2048}, v{D}")
    st.e(f"v_add_u32 v{D+3}, {24*rowstride - 3072}, v{T+1}")
def xr_natural(st, D, T):
    st.e(f"v_and_b32 v{T}, 15, v1")
    st.e(f"v_lshrrev_b32 v{T+1}, 1, v{T}")
    st.e(f"v_lshrrev_b32 v{T+2}, 4, v1")
    st.e(f"v_xor_b32 v{T+1}, v{T+1}, v{T+2}")
    st.e(f"v_lshlrev_b32 v{T+1}, 4, v{T+1}")
    st.e(f"v_lshl_add_u32 v{T+1}, v{T}, 7, v{T+1}")
    st.e(f"s_lshl_b32 s56, {S_WR}, 13")
    st.e(f"v_add_u32 v{D}, s56, v{T+1}")
def wr128(st, D, T, gstride, base):
    st.e(f"v_lshrrev_b32 v{T}, 4, v1")
    st.e(f"v_bfe_u32 v{T+1}, v1, 2, 2")
    st.e(f"v_mul_u32_u24 v{T+2}, {gstride}, v{T}")
    st.e(f"v_lshl_add_u32 v{T+2}, v{T+1}, 7, v{T+2}")
    st.e(f"v_and_b32 v{T+3}, 3, v1")
    st.e(f"v_lshl_add_u32 v{T+2}, v{T+3}, 3, v{T+2}")
    st.e(f"v_lshrrev_b32 v{T+1}, 1, v{T+1}")
    st.e(f"v_and_b32 v{T}, 1, v{T}")
    st.e(f"v_lshl_or_b32 v{T}, v{T}, 1, v{T+1}")
    st.e(f"s_lshl_b32 s56, {S_WC}, 1")
    st.e(f"v_xor_b32 v{T}, s56, v{T}")
    st.e(f"v_lshl_add_u32 v{D}, v{T}, 5, v{T+2}")
    if base: st.e(f"v_add_u32 v{D}, {base}, v{D}")
def wd128_lane(st, D, T, rowstride):
    st.e(f"v_lshrrev_b32 v{T}, 3, v1")
    st.e(f"v_mul_u32_u24 v{T}, {rowstride}, v{T}")
    st.e(f"v_bfe_u32 v{T+1}, v1, 1, 2")
    st.e(f"v_bfe_u32 v{T+2}, v1, 4, 1")
    st.e(f"v_xor_b32 v{T+1}, v{T+1}, v{T+2}")
    st.e(f"v_lshl_add_u32 v{T}, v{T+1}, 5, v{T}")
    st.e(f"v_and_b32 v{T+1}, 1, v1")
    st.e(f"v_lshl_add_u32 v{D}, v{T+1}, 4, v{T}")

V_XD, V_WD, V_XR, V_WR, V_T = 2, 6, 13, 19, 25
V_W3 = 28
P_T = V_T + 1
ACC1 = 32
def acc1(n, i): return ACC1 + (n * 4 + i) * 4
ZP = 32
AQ = 176
AST = 192
A_3XD, A_XR, A_4WD, A_4WR, A_1BWD, A_1BWR = AST, AST + 4, AST + 5, AST + 7, AST + 8, AST + 15
P1A_SLOT = 40960; P1A_NB = 4
P1B_SLOT = 45056; P1B_NB = 3

def adv(reg, inc, wrap):
    it = [f"s_add_u32 {reg}, {reg}, {0 if NOINC else inc}"]
    if wrap and ROT > 1:
        it.append(f"s_and_b32 {reg}, {reg}, {wrap-1}" if wrap & (wrap - 1) == 0 else f"s_cmp_eq_u32 {reg}, {wrap}\ns_cselect_b32 {reg}, 0, {reg}")
    return it
def p1_dma(name, NB, slotsz, srd, rowbytes, n):
    def f(s):
        slot = (s % NB) * slotsz; tag = ('st', name, s)
        b = [f"s_add_u32 m0, {S_MX}, {slot}"]
        b += [(f"buffer_load_dwordx4 v{V_XD+q}, {SRD_X}, {S_SOX} offen offset:{1024*q} lds", tag) for q in range(4)] + adv(S_SOX, 128, 2048)
        for j in range(n):
            if j % 4 == 0: b.append(f"s_add_u32 m0, {S_MW}, {slot + 16384 + 1024 * j}")
            b.append((f"buffer_load_dwordx4 v{V_WD+j}, {srd}, {S_SOW} offen offset:{1024*(j%4)} lds", tag))
        return b + adv(S_SOW, 64 * rowbytes, 1024 * rowbytes)
    return f
p1a_dma = p1_dma('p1a', P1A_NB, P1A_SLOT, SRD_WQKV, 6144, 6)
p1b_dma = p1_dma('p1b', P1B_NB, P1B_SLOT, SRD_WIN, 7168, 7)
def p1_soff(rowbytes, mw):
    return [f"s_and_b32 s56, {S_OFF}, {max(ROT - 1, 0)}", f"s_lshl_b32 {S_SOX}, s56, 7", f"s_mul_i32 {S_SOW}, s56, {64*rowbytes}", f"s_mul_i32 {S_MW}, {S_WAVE}, {mw}"]

def p1a_setup(st):
    T = V_T
    xd_natural(st, 2048, V_XD, T)
    wd128_lane(st, T + 3, T, 6144)
    st.e(f"v_xor_b32 v{T+4}, 64, v{T+3}")
    st.e(f"s_mul_i32 s56, {S_WAVE}, 6")
    st.e(f"s_lshl_b32 s58, {S_CB}, 7")
    for j in range(6):
        st.e(f"s_add_u32 s57, s56, {j}")
        st.e("s_lshr_b32 s59, s57, 3"); st.e("s_lshl_b32 s59, s59, 11")
        st.e("s_and_b32 s57, s57, 7"); st.e(f"s_mul_i32 s57, s57, {8*6144}")
        st.e("s_add_u32 s57, s57, s59"); st.e("s_add_u32 s57, s57, s58")
        if j % 4: st.e(f"s_sub_u32 s57, s57, {1024*(j%4)}")
        st.e(f"v_add_u32 v{V_WD+j}, s57, v{T + 3 + (j & 1)}")
    emit_all(st, p1_soff(6144, 6144))
def p1a_setup_reads(st):
    T = V_T
    xr_natural(st, V_XR, T)
    st.e(f"v_xor_b32 v{V_XR+3}, 64, v{V_XR}")
    copies(st, V_XR); copies(st, V_XR + 3)
    wr128(st, V_WR, T, 1024, 0)
    st.e(f"v_xor_b32 v{V_WR+3}, 32, v{V_WR}")
    copies(st, V_WR); copies(st, V_WR + 3)
def p1b_regs(st, D, T):
    st.e(f"s_mul_i32 s56, {S_WAVE}, {7*64}")
    st.e(f"s_mul_i32 s58, {S_CB}, 224")
    st.e("s_mov_b32 s59, 18725")
    st.e(f"v_mov_b32 v{T+5}, 3360")
    for j in range(7):
        d = D + j
        st.e(f"s_add_u32 s57, s56, {64*j}")
        st.e(f"v_add_u32 v{T}, s57, v1")
        st.e(f"v_mul_u32_u24 v{T+1}, s59, v{T}")
        st.e(f"v_lshrrev_b32 v{T+1}, 19, v{T+1}")
        st.e(f"v_mul_u32_u24 v{T+2}, 28, v{T+1}")
        st.e(f"v_sub_u32 v{T+2}, v{T}, v{T+2}")
        st.e(f"v_lshrrev_b32 v{T+3}, 1, v{T+2}")
        st.e(f"v_bfe_u32 v{T+4}, v{T+1}, 3, 1")
        st.e(f"v_xor_b32 v{T+3}, v{T+3}, v{T+4}")
        st.e(f"v_cmp_lt_u32 vcc, 6, v{T+3}")
        st.e(f"v_mul_u32_u24 v{d}, 7168, v{T+1}")
        st.e(f"v_lshl_add_u32 v{d}, v{T+3}, 5, v{d}")
        st.e(f"v_and_b32 v{T+2}, 1, v{T+2}")
        st.e(f"v_lshl_add_u32 v{d}, v{T+2}, 4, v{d}")
        st.e(f"v_cndmask_b32 v{T+4}, 0, v{T+5}, vcc")
        st.e(f"s_sub_u32 s57, s58, {1024*(j%4)}")
        st.e(f"v_add3_u32 v{d}, v{d}, v{T+4}, s57")
    st.e(f"v_lshrrev_b32 v{T}, 4, v1")
    st.e(f"v_bfe_u32 v{T+1}, v1, 2, 2")
    st.e(f"v_lshl_add_u32 v{T+2}, v{T}, 3, v{T+1}")
    st.e(f"v_mul_u32_u24 v{T+2}, 448, v{T+2}")
    st.e(f"v_and_b32 v{T+3}, 3, v1")
    st.e(f"v_lshl_add_u32 v{T+2}, v{T+3}, 3, v{T+2}")
    st.e(f"v_and_b32 v{T}, 1, v{T}")
    st.e(f"s_mul_i32 s57, {S_WC}, 7"); st.e("s_add_u32 s57, s57, 3")
    st.e(f"v_xor_b32 v{T+1}, s57, v{T}")
    st.e(f"v_lshl_add_u32 v{D+9}, v{T+1}, 5, v{T+2}")
    st.e(f"s_lshl_b32 s56, {S_WC}, 7")
    st.e(f"v_add_u32 v{T+2}, s56, v{T+2}")
    st.e(f"v_lshl_add_u32 v{D+7}, v{T}, 5, v{T+2}")
    st.e(f"v_lshlrev_b32 v{T+1}, 5, v{T}")
    st.e(f"v_sub_u32 v{D+8}, v{T+2}, v{T+1}")
    st.e(f"v_add_u32 v{D+8}, 32, v{D+8}")
def p1a_wread(slot, n, hh, db):
    out = []
    for sec in range(2):
        r, imm = ldsaddr(V_WR + 3 * (n % 2), slot + 16384 + (n // 2) * 8192 + hh * 4096 + sec * 512)
        out.append(f"ds_read_b64_tr_b16 {ar(db + 2*sec, 2)}, {r} offset:{imm}")
    return out
def p1b_wread(slot, n, hh, db):
    out = []
    u0 = [0, 1, 2, 3, 7, 8, 9][n]
    for sec in range(2):
        off = slot + 16384 + hh * 14336 + sec * 1792
        if n == 3: r, imm = ldsaddr(V_W3, off)
        elif u0 % 2 == 0: r, imm = ldsaddr(V_WR, off + u0 * 32)
        else: r, imm = ldsaddr(V_WR + 3, off + u0 * 32 - 32)
        out.append(f"ds_read_b64_tr_b16 {ar(db + 2*sec, 2)}, {r} offset:{imm}")
    return out
def p1a_mf(s, hh, n, i, wf, xf):
    a = vr(acc1(n, i), 4); c = "0" if (s == 0 and hh == 0) else a
    return f"v_mfma_f32_16x16x32_bf16 {a}, {xf}, {wf}, {c}" if n >= 4 else f"v_mfma_f32_16x16x32_bf16 {a}, {wf}, {xf}, {c}"
def p1b_mf(s, hh, n, i, wf, xf):
    a = vr(acc1(6 + n, i), 4)
    return f"v_mfma_f32_16x16x32_bf16 {a}, {wf}, {xf}, {'0' if (s == 0 and hh == 0) else a}"

QSCALE = math.log2(math.e) / math.sqrt(32.0)
def p1_epi_qkv(st):
    T = P_T
    st.e(f"s_lshl_b32 s56, {S_CB}, 1"); st.e(f"s_add_u32 s56, s56, {S_WC}")
    st.e(f"s_lshl_b32 {S_HB}, s56, 18")
    st.e(f"s_lshl_b32 s56, {S_RB}, 2"); st.e(f"s_lshl_b32 s57, {S_WR}, 1"); st.e("s_add_u32 s56, s56, s57")
    st.e("s_lshl_b32 s56, s56, 12")
    st.e("s_sub_u32 s58, s56, 4096"); st.e("s_and_b32 s58, s58, 0x3ffff")
    st.e(f"s_add_u32 s58, s58, {S_HB}")
    st.e(f"s_add_u32 s56, s56, {S_HB}")
    st.e("s_add_u32 s57, s56, 4096")
    st.e(f"v_lshlrev_b32 v{T}, 4, v1")
    st.e(f"v_and_b32 v{T+1}, 0x33, v1")
    st.e(f"v_bfe_u32 v{T+2}, v1, 2, 1"); st.e(f"v_lshl_or_b32 v{T+1}, v{T+2}, 3, v{T+1}")
    st.e(f"v_bfe_u32 v{T+2}, v1, 3, 1"); st.e(f"v_lshl_or_b32 v{T+1}, v{T+2}, 2, v{T+1}")
    st.e(f"v_lshlrev_b32 v{T+1}, 4, v{T+1}")
    def frag(t, x, y):
        st.e(f"v_cvt_pk_bf16_f32 v{t}, v{x}, v{x+1}"); st.e(f"v_cvt_pk_bf16_f32 v{t+1}, v{x+2}, v{x+3}")
        st.e(f"v_cvt_pk_bf16_f32 v{t+2}, v{y}, v{y+1}"); st.e(f"v_cvt_pk_bf16_f32 v{t+3}, v{y+2}, v{y+3}")
    def swaps(t):
        st.e(f"v_permlane16_swap_b32 v{t}, v{t+2}"); st.e(f"v_permlane16_swap_b32 v{t+1}, v{t+3}")
    K = [(128 + 4 * (a * 2 + ks), a, ks) for a in range(2) for ks in range(2)]
    for t, a, ks in K: frag(t, acc1(2 + ks, 2 * a), acc1(2 + ks, 2 * a + 1))
    for t, a, ks in K: swaps(t)
    for t, a, ks in K: st.e(f"buffer_store_dwordx4 {vr(t,4)}, v{T+1}, {SRD_WS}, {'s58' if a == 0 else 's56'} offen offset:{2048+1024*ks}{SC}", tag='kv')
    V = [(acc1(2, 0) + 4 * i, i) for i in range(4)]
    for t, i in V: frag(t, acc1(4, i), acc1(5, i))
    for t, i in V: swaps(t)
    for t, i in V: st.e(f"buffer_store_dwordx4 {vr(t,4)}, v{T}, {SRD_WS}, s{56+i//2} offen offset:{1024*(i%2)}{SC}", tag='kv')
    st.e(f"s_mov_b32 s58, {f2u(QSCALE)}"); st.e("s_mov_b32 s59, s58")
    for r in range(ACC1, ACC1 + 32, 2): st.e(f"v_pk_mul_f32 {vr(r,2)}, {vr(r,2)}, s[58:59]")
    Q = [(acc1(3, 0) + 4 * (a * 2 + ks), a, ks) for a in range(2) for ks in range(2)]
    for t, a, ks in Q: frag(t, acc1(ks, 2 * a), acc1(ks, 2 * a + 1))
    for t, a, ks in Q: swaps(t)
    for t, a, ks in Q:
        for j in range(4): st.e(f"v_accvgpr_write_b32 a{AQ + (a*2+ks)*4 + j}, v{t+j}")

GC1 = -2.0 * math.sqrt(2.0 / math.pi) * math.log2(math.e)
GC2 = GC1 * 0.044715
def xreduce(st, regs, temps):
    for w in (16, 32):
        for r, t in zip(regs, temps): st.e(f"v_mov_b32 v{t}, v{r}")
        for r, t in zip(regs, temps): st.e(f"v_permlane{w}_swap_b32 v{r}, v{t}")
        for r, t in zip(regs, temps): st.e(f"v_add_f32 v{r}, v{r}, v{t}")
def p1_epi_z(st, at):
    T = 26; TB = 96
    za = lambda j, i: acc1(6 + j, i)
    st.e(f"s_mov_b32 s56, {f2u(GC1)}")
    st.e(f"s_mov_b32 s58, {f2u(GC2)}"); st.e("s_mov_b32 s59, s58")
    st.e("s_mov_b32 s60, 1.0"); st.e("s_mov_b32 s61, 1.0")
    st.e(f"v_mov_b32 v{T}, s56"); st.e(f"v_mov_b32 v{T+1}, s56")
    pairs = [za(j, i) + 2 * h for j in range(7) for i in range(4) for h in range(2)]
    G = 4
    for gi, g0 in enumerate(range(0, len(pairs), G)):
        if gi in at: at[gi](st)
        grp = pairs[g0:g0 + G]
        tb = TB + (gi % 2) * 8
        for k, p in enumerate(grp): st.e(f"v_pk_mul_f32 {vr(tb+2*k,2)}, {vr(p,2)}, {vr(p,2)}")
        for k, p in enumerate(grp): st.e(f"v_pk_fma_f32 {vr(tb+2*k,2)}, {vr(tb+2*k,2)}, s[58:59], {vr(T,2)}")
        for k, p in enumerate(grp): st.e(f"v_pk_mul_f32 {vr(tb+2*k,2)}, {vr(tb+2*k,2)}, {vr(p,2)}")
        for k in range(2 * G): st.e(f"v_exp_f32 v{tb+k}, v{tb+k}")
        for k, p in enumerate(grp): st.e(f"v_pk_add_f32 {vr(tb+2*k,2)}, {vr(tb+2*k,2)}, s[60:61]")
        for k in range(2 * G): st.e(f"v_rcp_f32 v{tb+k}, v{tb+k}")
        for k, p in enumerate(grp): st.e(f"v_pk_mul_f32 {vr(p,2)}, {vr(tb+2*k,2)}, {vr(p,2)}")
        for k, p in enumerate(grp): st.e(f"v_cvt_pk_bf16_f32 v{ZP + (p - za(0, 0))//2}, v{p}, v{p+1}")
    st.e(f"s_mov_b32 s59, {f2u(-1.0/48)}")
    st.e(f"s_cmp_eq_u32 {S_WC}, 1")
    st.e("s_cselect_b32 s56, 1.0, 0"); st.e("s_mov_b32 s57, s56")
    st.e(f"s_cselect_b32 s58, {f2u(-1.0/64)}, s59")
    MEAN = TB; M2 = TB + 4; A = TB + 8; D = TB + 16
    ps = lambda i: [za(j, i) + 2 * h for j in (4, 5, 6) for h in range(2)]
    for i in range(4): st.e(f"v_pk_add_f32 {vr(A+2*i,2)}, {vr(za(3,i),2)}, {vr(za(3,i)+2,2)}")
    for i in range(4): st.e(f"v_pk_fma_f32 {vr(A+2*i,2)}, {vr(A+2*i,2)}, s[56:57], {vr(ps(i)[0],2)}")
    for k in range(1, 6):
        for i in range(4): st.e(f"v_pk_add_f32 {vr(A+2*i,2)}, {vr(A+2*i,2)}, {vr(ps(i)[k],2)}")
    for i in range(4): st.e(f"v_add_f32 v{MEAN+i}, v{A+2*i}, v{A+2*i+1}")
    xreduce(st, [MEAN + i for i in range(4)], [D + i for i in range(4)])
    for i in range(4): st.e(f"v_mul_f32 v{D+2*i}, s58, v{MEAN+i}")
    for i in range(4): st.e(f"v_sub_f32 v{MEAN+i}, 0, v{D+2*i}")
    for i in range(4):
        for p in [za(3, i), za(3, i) + 2] + ps(i): st.e(f"v_pk_add_f32 {vr(p,2)}, {vr(p,2)}, {vr(D+2*i,2)} op_sel_hi:[1,0]")
    for i in range(4): st.e(f"v_pk_mul_f32 {vr(A+2*i,2)}, {vr(za(3,i),2)}, {vr(za(3,i),2)}")
    for i in range(4): st.e(f"v_pk_fma_f32 {vr(A+2*i,2)}, {vr(za(3,i)+2,2)}, {vr(za(3,i)+2,2)}, {vr(A+2*i,2)}")
    for i in range(4): st.e(f"v_pk_mul_f32 {vr(A+2*i,2)}, {vr(A+2*i,2)}, s[56:57]")
    for k in range(6):
        for i in range(4): st.e(f"v_pk_fma_f32 {vr(A+2*i,2)}, {vr(ps(i)[k],2)}, {vr(ps(i)[k],2)}, {vr(A+2*i,2)}")
    for i in range(4): st.e(f"v_add_f32 v{M2+i}, v{A+2*i}, v{A+2*i+1}")
    xreduce(st, [M2 + i for i in range(4)], [D + i for i in range(4)])
    st.e(f"v_lshrrev_b32 v{T}, 4, v1")
    for i in range(1, 4):
        st.e(f"v_cmp_eq_u32 vcc, {i}, v{T}")
        st.e(f"v_cndmask_b32 v{MEAN}, v{MEAN}, v{MEAN+i}, vcc")
        st.e(f"v_cndmask_b32 v{M2}, v{M2}, v{M2+i}, vcc")
    st.e(f"s_lshl_b32 s56, {S_RB}, 4"); st.e(f"s_add_u32 s56, s56, {S_CB}"); st.e("s_lshl_b32 s56, s56, 11")
    st.e(f"s_lshl_b32 s57, {S_WR}, 10"); st.e("s_add_u32 s56, s56, s57")
    st.e(f"s_lshl_b32 s57, {S_WC}, 2"); st.e("s_add_u32 s56, s56, s57")
    st.e(f"s_add_u32 s56, s56, {WS_ST}")
    st.e(f"buffer_store_dword v{MEAN}, v{V_L16}, {SRD_WS}, s56 offen{SC}", tag='stat')
    st.e(f"buffer_store_dword v{M2}, v{V_L16}, {SRD_WS}, s56 offen offset:8{SC}", tag='stat')

LOG2E = math.log2(math.e)
def gate_issue(st):
    T = 32
    st.e(f"s_lshl_b32 s56, {S_RB}, 7"); st.e(f"s_lshl_b32 s57, {S_CB}, 3"); st.e("s_add_u32 s56, s56, s57")
    st.e(f"s_lshl_b32 s57, {S_WAVE}, 1"); st.e("s_add_u32 s66, s56, s57")
    st.e("s_lshl_b32 s56, s66, 11")
    st.e(f"v_lshlrev_b32 v{T+32}, 6, v1")
    st.e(f"v_and_b32 v{T+33}, 0x7ff, v{T+32}")
    for k in range(4):
        st.e(f"buffer_load_dwordx4 {vr(T+4*k,4)}, v{T+32}, {SRD_X}, s56 offen offset:{16*k}", tag='gate')
        st.e(f"buffer_load_dwordx4 {vr(T+16+4*k,4)}, v{T+33}, {SRD_GATE}, 0 offen offset:{16*k}", tag='gate')
def gate_finish(st):
    T = 32
    st.wait(tag='gate')
    a = T + 34
    st.e(f"v_mov_b32 v{a}, 0"); st.e(f"v_mov_b32 v{a+1}, 0")
    for k in range(16): st.e(f"v_dot2_f32_bf16 v{a + k % 2}, v{T+k}, v{T+16+k}, v{a + k % 2}")
    st.e(f"v_add_f32 v{a}, v{a}, v{a+1}")
    for m in ("quad_perm:[1,0,3,2]", "quad_perm:[2,3,0,1]", "row_half_mirror", "row_mirror"):
        st.e(f"v_add_f32_dpp v{a}, v{a}, v{a} {m} row_mask:0xf bank_mask:0xf")
    st.e(f"v_mov_b32 v{a+1}, v{a}")
    st.e(f"v_permlane16_swap_b32 v{a}, v{a+1}")
    st.e(f"v_add_f32 v{a}, v{a}, v{a+1}")
    st.e(f"v_mul_f32 v{a}, {f2u(-LOG2E)}, v{a}")
    st.e(f"v_exp_f32 v{a}, v{a}")
    st.e(f"v_add_f32 v{a}, 1.0, v{a}")
    st.e(f"v_rcp_f32 v{a}, v{a}")
    st.e(f"v_lshrrev_b32 v{a+1}, 5, v1"); st.e(f"v_lshlrev_b32 v{a+1}, 2, v{a+1}")
    st.e("s_lshl_b32 s56, s66, 2"); st.e(f"s_add_u32 s56, s56, {WS_G}")
    st.e(f"buffer_store_dword v{a}, v{a+1}, {SRD_WS}, s56 offen{SC}", tag='gst')

SA, SB, CA, CB, OA, OB, PA, PB, LA, LB, SEL, AT = 88, 104, 120, 136, 152, 168, 184, 192, 200, 204, 208, 212
V_L16 = 20
RING = 8
def m32(d, a, b, c): return f"v_mfma_f32_32x32x16_bf16 {vr(d,16)}, {a}, {b}, {c if c == '0' else vr(c,16)}"
def m16s(l, p, first=False): return f"v_mfma_f32_16x16x32_bf16 {vr(l,4)}, {vr(SEL,4)}, {vr(p,4)}, {'0' if first else vr(l,4)}"
def ubase(u):
    u %= RING
    return 16 * u if u < 3 else 96 + 16 * (u - 3)
def uK(u, ks): return ar(ubase(u) + 8 + 4 * ks, 4)
def uV(u, kk): return ar(ubase(u) + 4 * kk, 4)
def Qf(t, ks): return ar(AQ + (t * 2 + ks) * 4, 4)
V_KV = 18
KV_ADV = f"s_add_u32 {S_KV}, {S_KV}, 4096\ns_and_b32 {S_KV}, {S_KV}, 0x3ffff" if env("KVROT", 1) else f"s_add_u32 {S_KV}, {S_KV}, 4096"
def unit_loads(u):
    ks = range(2, 4) if u < 0 else range(4 if u < 63 else 2)
    return [(f"buffer_load_dwordx4 {ar(ubase(u)+4*k,4)}, v{V_KV}, {SRD_WS}, {S_KV} offen offset:{1024*k}{SC}", ('u', u)) for k in ks] + [KV_ADV]
def kv_start(st):
    st.e(f"s_lshl_b32 {S_KV}, {S_RB}, 14"); st.e(f"s_sub_u32 {S_KV}, {S_KV}, 4096"); st.e(f"s_and_b32 {S_KV}, {S_KV}, 0x3ffff")
    st.e(f"v_add_u32 v{V_KV}, {S_HB}, v{V_L16}")
def softmax_valu(S, P):
    out = []
    for i in range(16):
        out.append(f"v_exp_f32 v{S+i}, v{S+i}")
        if i >= 3 and i % 2 == 1:
            c = (i - 3) // 2
            out.append(f"v_cvt_pk_bf16_f32 v{P+c}, v{S+2*c}, v{S+2*c+1}")
    out.append(f"v_cvt_pk_bf16_f32 v{P+7}, v{S+14}, v{S+15}")
    return out
def att_phase(st, mf, valu, extra):
    extra = list(extra)
    nv = len(valu); G = len(mf)
    pos = [k * nv // G for k in range(G)]
    k = 0
    for c, v in enumerate(valu):
        while k < G and pos[k] <= c:
            st.e(mf[k]); k += 1
            if extra: emit_filler(st, extra.pop(0))
        st.e(v)
    for x in extra: emit_filler(st, x)
def rowmax(st, S, d, t):
    st.e(f"v_max3_f32 v{d}, v{S}, v{S+1}, v{S+2}")
    for i in range(3, 15, 2): st.e(f"v_max3_f32 v{d}, v{S+i}, v{S+i+1}, v{d}")
    st.e(f"v_max_f32 v{d}, v{S+15}, v{d}")
    st.e(f"v_mov_b32 v{t}, v{d}")
    st.e(f"v_permlane32_swap_b32 v{d}, v{t}")
    st.e(f"v_max_f32 v{d}, v{d}, v{t}")

def ln_load(st, batch):
    st.e(f"s_lshl_b32 s56, {S_RB}, 15"); st.e(f"s_lshl_b32 s57, {S_WR}, 10"); st.e("s_add_u32 s56, s56, s57")
    st.e(f"s_add_u32 s56, s56, {WS_ST + batch * 8 * 2048}")
    for k in range(8):
        if k in (2, 4, 6): st.e("s_add_u32 s56, s56, 4096")
        st.e(f"buffer_load_dwordx4 {vr(AT+4*k,4)}, v{V_L16}, {SRD_WS}, s56 offen offset:{2048*(k%2)}{SC}", tag=('ln', batch))
LNA = 26
def ln_accum(st, batch):
    st.wait(tag=('ln', batch))
    if batch == 0:
        st.e(f"v_sub_f32 v24, 0, v{AT}")
        for r in range(LNA, LNA + 6): st.e(f"v_mov_b32 v{r}, 0")
    for k in range(8): st.e(f"v_pk_add_f32 {vr(AT+4*k,2)}, {vr(AT+4*k,2)}, v[24:25] op_sel_hi:[1,0]")
    for k in range(8):
        st.e(f"v_pk_add_f32 {vr(LNA,2)}, {vr(LNA,2)}, {vr(AT+4*k,2)}")
        st.e(f"v_pk_fma_f32 {vr(LNA+2,2)}, {vr(AT+4*k,2)}, {vr(AT+4*k,2)}, {vr(LNA+2,2)}")
        st.e(f"v_pk_add_f32 {vr(LNA+4,2)}, {vr(LNA+4,2)}, {vr(AT+4*k+2,2)}")
def ln_final(st):
    A, B, M = LNA, LNA + 2, LNA + 4
    t = AT
    st.e(f"v_mul_f32 v{A}, {f2u(48.0)}, v{A}"); st.e(f"v_fmac_f32 v{A}, {f2u(64.0)}, v{A+1}")
    st.e(f"v_mul_f32 v{B}, {f2u(48.0)}, v{B}"); st.e(f"v_fmac_f32 v{B}, {f2u(64.0)}, v{B+1}")
    st.e(f"v_add_f32 v{M}, v{M}, v{M+1}")
    st.e(f"v_add_f32 v{M}, v{M}, v{B}")
    st.e(f"v_mul_f32 v{A+1}, {f2u(1.0/1792)}, v{A}")
    st.e(f"v_fma_f32 v{M}, -v{A}, v{A+1}, v{M}")
    st.e(f"v_mul_f32 v{M}, {f2u(1.0/1792)}, v{M}")
    st.e(f"v_max_f32 v{M}, 0, v{M}")
    st.e(f"v_add_f32 v{M}, {f2u(1e-5)}, v{M}")
    st.e(f"v_rsq_f32 v{M}, v{M}")
    st.e(f"v_sub_f32 v{A}, v24, v{A+1}")
    st.e(f"v_mul_f32 v{A}, v{A}, v{M}")
    st.e(f"v_and_b32 v{B}, 15, v1"); st.e(f"v_lshlrev_b32 v{B}, 2, v{B}")
    for i in range(4):
        st.e(f"ds_bpermute_b32 v{t+2*i}, v{B}, v{M} offset:{64*i}")
        st.e(f"ds_bpermute_b32 v{t+2*i+1}, v{B}, v{A} offset:{64*i}")
    st.e(f"v_bfe_u32 v{B}, v1, 2, 1"); st.e(f"v_lshlrev_b32 v{B}, 9, v{B}")
    st.e(f"v_bfe_u32 v{B+1}, v1, 3, 1"); st.e(f"v_lshl_or_b32 v{B}, v{B+1}, 7, v{B}")
    st.e(f"v_and_b32 v{B+1}, 3, v1"); st.e(f"v_lshl_or_b32 v{B}, v{B+1}, 5, v{B}")
    st.e(f"v_lshrrev_b32 v{B+1}, 4, v1"); st.e(f"v_lshl_or_b32 v{B}, v{B+1}, 3, v{B}")
    st.e(f"s_mul_i32 s60, {S_CB}, 458752")
    st.e(f"s_lshl_b32 s57, {S_RB}, 1"); st.e(f"s_add_u32 s57, s57, {S_WR}"); st.e("s_mul_i32 s57, s57, 14336")
    st.e("s_add_u32 s60, s60, s57")
    st.e(f"s_lshl_b32 s57, {S_WC}, 12"); st.e("s_add_u32 s60, s60, s57")
    st.e(f"s_add_u32 s60, s60, {WS_ZN}")
    st.e("s_add_u32 s61, s60, 7168")
    st.e("s_sub_u32 s62, s60, 1024"); st.e("s_sub_u32 s63, s61, 1024")
    st.e(f"s_cmp_eq_u32 {S_WC}, 1")
    st.e(f"s_cselect_b32 s62, s62, {WS_SIZE}"); st.e(f"s_cselect_b32 s63, s63, {WS_SIZE}")
    st.e("s_mov_b32 s59, 0xffff0000")
    st.wait(lgkm=0)
    k = 0
    for j in (4, 5, 6, 3):
        for i in range(4):
            u = t + 8 + 4 * (k % 4); k += 1
            z = ZP + (j * 4 + i) * 2
            for h in range(2):
                st.e(f"v_lshlrev_b32 v{u+2*h}, 16, v{z+h}")
                st.e(f"v_and_b32 v{u+2*h+1}, s59, v{z+h}")
            for h in range(2):
                st.e(f"v_pk_fma_f32 {vr(u+2*h,2)}, {vr(u+2*h,2)}, {vr(t+2*i,2)}, {vr(t+2*i,2)} op_sel:[0,0,1] op_sel_hi:[1,0,1]")
            for h in range(2):
                st.e(f"v_cvt_pk_bf16_f32 v{(z if j >= 4 else t + 24 + 2 * i) + h}, v{u+2*h}, v{u+2*h+1}")
def zn_stores():
    out = []
    for j in (4, 5, 6, 3):
        for i in range(4):
            src = ZP + (j * 4 + i) * 2 if j >= 4 else AT + 24 + 2 * i
            so = (60 if j >= 4 else 62) + i // 2
            off = (i % 2) * 256 + (j - 4) * 1024 if j >= 4 else (i % 2) * 256
            out.append((f"buffer_store_dwordx2 {vr(src,2)}, v{LNA+2}, {SRD_WS}, s{so} offen offset:{off}{SC}", 'zn'))
    return out

XST = [int(x) for x in os.environ.get('XST', '').split(',') if x]
def att_main(st, hooks, extras, first_unit):
    st.e(f"v_bfe_u32 v{AT}, v1, 4, 1"); st.e(f"v_lshlrev_b32 v{AT}, 2, v{AT}")
    st.e(f"v_and_b32 v{AT+1}, 7, v1")
    st.e(f"v_cmp_eq_u32 vcc, v{AT}, v{AT+1}")
    st.e(f"v_mov_b32 v{AT}, 0x3f803f80")
    st.e(f"v_cndmask_b32 v{SEL}, 0, v{AT}, vcc")
    for k in range(1, 4): st.e(f"v_mov_b32 v{SEL+k}, v{SEL}")
    st.wait(tag=('u', -1))
    st.e(m32(SA, uK(-1, 0), Qf(0, 0), '0')); st.e(m32(SA, uK(-1, 1), Qf(0, 1), SA))
    st.e(m32(SB, uK(-1, 0), Qf(1, 0), '0')); st.e(m32(SB, uK(-1, 1), Qf(1, 1), SB))
    rowmax(st, SA, AT, AT + 1)
    for i in range(16): st.e(f"v_sub_f32 v{CA+i}, 0, v{AT}")
    st.e(m32(SA, uK(-1, 0), Qf(0, 0), CA)); st.e(m32(SA, uK(-1, 1), Qf(0, 1), SA))
    rowmax(st, SB, AT + 2, AT + 3)
    for i in range(16): st.e(f"v_sub_f32 v{CB+i}, 0, v{AT+2}")
    nu = first_unit
    for j in range(64):
        st.mark(('chunk', 'att', RING))
        if j in XST and not os.environ.get('GST'): stamp(st, f'xa{j}')
        if j in hooks: hooks[j](st)
        if j in XST and j in hooks and not os.environ.get('GST'): stamp(st, f'xb{j}')
        ex = list(extras.get(j, []))
        ul = []
        lim = j + RING - 1
        if nu <= lim - 1 and nu < 64 and j >= KVCHK:
            ex = unit_loads(nu) + ex; nu += 1
        mf = [m32(SB, uK(j - 1, 0), Qf(1, 0), CB), m32(SB, uK(j - 1, 1), Qf(1, 1), SB)]
        if j > 0:
            f = (j == 1)
            mf += [m32(OB, uV(j - 1, 0), vr(PB, 4), '0' if f else OB), m16s(LB, PB, f), m32(OB, uV(j - 1, 1), vr(PB + 4, 4), OB), m16s(LB, PB + 4)]
        att_phase(st, mf, softmax_valu(SA, PA), ex)
        assert nu > j
        st.wait(tag=('u', j))
        mf = []
        if j < 63: mf += [m32(SA, uK(j, 0), Qf(0, 0), CA), m32(SA, uK(j, 1), Qf(0, 1), SA)]
        f = (j == 0)
        mf += [m32(OA, uV(j, 0), vr(PA, 4), '0' if f else OA), m16s(LA, PA, f), m32(OA, uV(j, 1), vr(PA + 4, 4), OA), m16s(LA, PA + 4)]
        if nu <= lim and nu < 64 and j >= KVCHK:
            ul = unit_loads(nu); nu += 1
        att_phase(st, mf, softmax_valu(SB, PB), ul)
    st.mark(('endchunks',))
    st.e(m32(OB, uV(63, 0), vr(PB, 4), OB)); st.e(m16s(LB, PB)); st.e(m32(OB, uV(63, 1), vr(PB + 4, 4), OB)); st.e(m16s(LB, PB + 4))
    stamp(st, 'att64')
    t = AT
    st.e(f"s_mul_i32 s56, {S_RB}, {88*8192}")
    st.e(f"s_lshr_b32 s57, {S_HB}, 5"); st.e("s_add_u32 s56, s56, s57")
    st.e(f"s_lshl_b32 s57, {S_WR}, 12"); st.e("s_add_u32 s56, s56, s57")
    st.e(f"s_add_u32 s56, s56, {WS_XF}")
    st.e(f"v_bfe_u32 v{t+4}, v1, 4, 1"); st.e(f"v_lshlrev_b32 v{t+4}, 10, v{t+4}")
    st.e(f"v_lshrrev_b32 v{t+5}, 5, v1"); st.e(f"v_lshl_or_b32 v{t+4}, v{t+5}, 8, v{t+4}")
    st.e(f"v_and_b32 v{t+5}, 15, v1"); st.e(f"v_lshl_or_b32 v{t+4}, v{t+5}, 4, v{t+4}")
    st.e(f"v_max_f32 v{t}, v{LA}, v{LB}")
    st.e(f"v_mul_f32 v{t+2}, 0, v{LA}"); st.e(f"v_mul_f32 v{t+3}, 0, v{LB}")
    for r in range(OA, OA + 32, 2): st.e(f"v_pk_fma_f32 {vr(t+2,2)}, {vr(r,2)}, 0, {vr(t+2,2)}")
    st.e(f"v_add_f32 v{t}, v{t}, v{t+2}")
    st.e(f"v_add_f32 v{t}, v{t}, v{t+3}")
    st.e(f"v_cmp_nge_f32 vcc, {f2u(2.0**30)}, v{t}")
    ok = st.newlabel("ATT_OK")
    st.e(f"s_cbranch_vccz {ok}")
    att_fallback(st)
    st.flush_hazards()
    st.label(ok, soft=True)
    st.e(f"v_rcp_f32 v{t}, v{LA}"); st.e(f"v_rcp_f32 v{t+2}, v{LB}")
    for q, (O, rr) in enumerate(((OA, t), (OB, t + 2))):
        for r in range(0, 16, 2): st.e(f"v_pk_mul_f32 {vr(O+r,2)}, {vr(O+r,2)}, {vr(rr,2)} op_sel_hi:[1,0]")
        P = PA + 8 * q
        for c in range(8): st.e(f"v_cvt_pk_bf16_f32 v{P+c}, v{O+2*c}, v{O+2*c+1}")
        for a in (0, 4):
            st.e(f"v_permlane32_swap_b32 v{P+a}, v{P+a+2}"); st.e(f"v_permlane32_swap_b32 v{P+a+1}, v{P+a+3}")
        for a in (0, 4):
            st.e(f"buffer_store_dwordx4 {vr(P+a,4)}, v{t+4}, {SRD_WS}, s56 offen offset:{q*2048 + a*128}{SC}", tag='o')

def att_fallback(st):
    t = AT
    MA, MB_ = t + 8, t + 9
    st.e("s_waitcnt vmcnt(0)")
    st.e(f"v_mov_b32 v{MA}, {f2u(-3.0e38)}"); st.e(f"v_mov_b32 v{MB_}, {f2u(-3.0e38)}")
    for r in list(range(OA, OA + 32)) + list(range(LA, LA + 8)): st.e(f"v_mov_b32 v{r}, 0")
    st.e(f"s_add_u32 s58, {S_HB}, {63*4096}")
    st.e(f"s_mov_b32 {S_KV}, {S_HB}")
    st.e("s_mov_b32 s59, 64")
    lp = st.newlabel("ATT_FB")
    st.flush_hazards()
    st.label(lp)
    for k in range(2):
        st.e(f"buffer_load_dwordx4 {ar(4*k,4)}, v{V_L16}, {SRD_WS}, s58 offen offset:{2048+1024*k}{SC}", count=False)
        st.e(f"buffer_load_dwordx4 {ar(8+4*k,4)}, v{V_L16}, {SRD_WS}, {S_KV} offen offset:{1024*k}{SC}", count=False)
    st.e(f"s_mov_b32 s58, {S_KV}")
    st.e(f"s_add_u32 {S_KV}, {S_KV}, 4096")
    st.e("s_waitcnt vmcnt(0)")
    for q, (S, O, P, L, M) in enumerate(((SA, OA, PA, LA, MA), (SB, OB, PB, LB, MB_))):
        st.e(m32(S, ar(0, 4), Qf(q, 0), '0')); st.e(m32(S, ar(4, 4), Qf(q, 1), S))
        rowmax(st, S, t, t + 1)
        st.e(f"v_max_f32 v{t}, v{t}, v{M}")
        st.e(f"v_sub_f32 v{t+1}, v{M}, v{t}")
        st.e(f"v_exp_f32 v{t+1}, v{t+1}")
        st.e(f"v_mov_b32 v{M}, v{t}")
        for r in range(16): st.e(f"v_mul_f32 v{O+r}, v{t+1}, v{O+r}")
        st.e(f"v_mul_f32 v{L}, v{t+1}, v{L}")
        for r in range(16): st.e(f"v_sub_f32 v{S+r}, v{S+r}, v{M}")
        for r in range(16): st.e(f"v_exp_f32 v{S+r}, v{S+r}")
        for c in range(8): st.e(f"v_cvt_pk_bf16_f32 v{P+c}, v{S+2*c}, v{S+2*c+1}")
        st.e(m32(O, ar(8, 4), vr(P, 4), O)); st.e(m16s(L, P)); st.e(m32(O, ar(12, 4), vr(P + 4, 4), O)); st.e(m16s(L, P + 4))
    st.flush_hazards()
    st.e("s_sub_u32 s59, s59, 1")
    st.e("s_cmp_lg_u32 s59, 0")
    st.e(f"s_cbranch_scc1 {lp}")

ACC = 88
def accr(n, i, base=ACC): return base + (n * 4 + i) * 4
def ldsaddr(base3, off): return f"v{base3 + (off >> 16)}", off & 0xffff
def copies(st, b):
    st.e(f"v_add_u32 v{b+1}, 0x10000, v{b}"); st.e(f"v_add_u32 v{b+2}, 0x20000, v{b}")
NXT_CAP = env('NXT_CAP', 5); CATCH = env('CATCH', 2)
def gemm(st, name, nst, NB, slotsz, dma, xread, wread, mf, MT, NT, first_stamp=None,
         grp=None, publish=None, at=None, nxt=None, rot=0, PF=1, hold=None):
    at = at or {}
    SETS = PF + 1
    SSZ = 48 if PF == 1 else 32
    XF = lambda p, i: ar(p * SSZ + i * 4, 4)
    WFb = lambda p, n: p * SSZ + 16 + n * 4
    def reads(t):
        if t >= 2 * nst: return []
        s, hh, p = t // 2, t % 2, t % SETS
        slot = ((s + rot) % NB) * slotsz
        wl = [wread(slot, n, hh, WFb(p, n)) for n in range(NT)]
        return wl[0] + [xread(slot, i, hh, XF(p, i)) for i in range(MT)] + flat(wl[1:])
    def mfs(t):
        s, hh, p = t // 2, t % 2, t % SETS
        return [mf(s, hh, n, i, ar(WFb(p, n), 4), XF(p, i)) for n in range(NT) for i in range(MT)]
    q = list(st.bg); st.bg = []
    def issued(s):
        def tg(x):
            if isinstance(x, list): return any(tg(y) for y in x)
            return isinstance(x, tuple) and x[1] == ('st', name, s)
        return not any(tg(x) for x in q)
    while not issued(PF - 1): emit_filler(st, q.pop(0))
    st.wait(tag=('st', name, PF - 1))
    st.e("s_barrier")
    if first_stamp is not None: stamp(st, first_stamp)
    for t in range(PF):
        for r in reads(t): st.e(r)
    G = MT * NT
    D = ndma(dma(0))
    lg = lambda t: sum(len(reads(u)) for u in range(t + 1, t + PF))
    st.wait(lgkm=lg(0))
    def take(n, must=None):
        out = []; c = 0
        while q and (c < n or (must is not None and not issued(must))):
            x = q.pop(0); out.append(x)
            if isdma(x): c += 1
        while q and not isdma(q[0]) and 'm0' not in q[0]: out.append(q.pop(0))
        return out
    nq = NB
    for s in range(nst):
        st.mark(('chunk', grp or name, NB))
        if os.environ.get('GST') == name and s in XST: stamp(st, f'x{s}')
        if (s, 'A') in at: at[(s, 'A')](st)
        extra = CATCH if ndma(q) > D // 2 else 0
        cap = D // 2 + extra if s + NB <= nst else NXT_CAP
        interleave(st, mfs(2 * s), merge(reads(2 * s + PF), take(cap, s + PF), G))
        pub = publish and s == publish[2]
        tags = ([('st', name, s + PF)] if s + PF < nst else []) + (publish[1] if pub else [])
        st.wait(tag=tags or None, lgkm=lg(2 * s + 1))
        st.e("s_barrier")
        if pub: do_publish(st, publish[0])
        if (s, 'B') in at: at[(s, 'B')](st)
        extra = CATCH if ndma(q) > 0 else 0
        while nq <= s + NB and nq < nst and not (hold and nq >= hold[0] and s < hold[1]):
            q += dma(nq); nq += 1
        if nxt and s in nxt:
            assert s + NB >= nst
            it = nxt[s]()
            if it and not isdma(it[0]) and 'm0' not in it[0]:
                assert ndma(q) == 0, "next phase's address registers would clobber pending DMA"
                while q: emit_filler(st, q.pop(0))
                while not isdma(it[0]) and 'm0' not in it[0]: emit_filler(st, it.pop(0))
            q += it
        cap = (D + 1) // 2 + extra if s + NB < nst else NXT_CAP
        interleave(st, mfs(2 * s + 1), merge(reads(2 * s + 1 + PF), take(cap), G))
        if s + 1 < nst: st.wait(lgkm=lg(2 * s + 2))
    st.mark(('endchunks',))
    st.bg = q

P3_SLOT = 30720; P3_NB = 5
V_B = 248; V_G = 8; UO = 152; TMP = 184
P3X = env('P3X', 2)
def p3_x(s, n=4):
    tag = ('st', 'p3', s)
    return [f"s_add_u32 m0, {S_MX}, {(s % P3_NB) * P3_SLOT}"] + \
        [(f"buffer_load_dwordx4 v{V_XD+q}, {SRD_WSP}, {S_SOX} offen offset:{1024*q} lds", tag) for q in range(n)] + \
        [f"s_add_u32 {S_SOX}, {S_SOX}, {0 if NOINC else 128}"]
def p3_w_pro(s):
    tag = ('st', 'p3', s)
    b = [f"s_add_u32 m0, {S_MW}, {(s % P3_NB) * P3_SLOT + 16384}"]
    b += [(f"buffer_load_dwordx4 v{V_WD}, {SRD_WS}, {S_SOW} offen offset:{1024*j}{SC} lds", tag) for j in range(3)]
    b.append(["s_mov_b32 exec_hi, 0", (f"buffer_load_dwordx4 v{V_WD}, {SRD_WS}, {S_SOW} offen offset:3072{SC} lds", tag), "s_mov_b32 exec_hi, -1"])
    b.append(f"s_add_u32 {S_SOW}, {S_SOW}, {0 if NOINC else 14336}")
    return b
def p3_dma_wc1(s):
    slot = (s % P3_NB) * P3_SLOT
    tag = ('st', 'p3', s)
    b = p3_x(s)
    if P3X < 4:
        b.append(f"s_add_u32 m0, s68, {slot}")
        b += [(f"buffer_load_dwordx4 v{V_WD+1+q}, {SRD_WSP}, s67 offen offset:{1024*q} lds", tag) for q in range(P3X, 4)]
        b.append(f"s_add_u32 s67, s67, {0 if NOINC else 128}")
    for h, so in ((0, S_SOW), (1, 's101')):
        b.append(f"s_add_u32 m0, {S_MW}, {slot + 16384 + 4096 * h}")
        b += [(f"buffer_load_dwordx4 v{V_WD}, {SRD_WS}, {so} offen offset:{1024*q}{SC} lds", tag) for q in range(4 - h)]
        b.append(f"s_add_u32 {so}, {so}, {0 if NOINC else 14336}")
    return b
def p3_setup_w(st):
    st.e(f"v_lshlrev_b32 v{V_WD}, 4, v1")
    st.e(f"s_lshl_b32 s56, {S_WC}, 12")
    st.e(f"v_lshlrev_b32 v{V_WR+3}, 3, v1"); st.e(f"v_add_u32 v{V_WR+3}, s56, v{V_WR+3}")
    copies(st, V_WR + 3)
    st.e(f"s_mul_i32 {S_MW}, {S_WAVE}, 3584")
    st.e(f"s_mul_i32 {S_SOW}, {S_CB}, 458752")
    st.e(f"s_add_u32 {S_SOW}, {S_SOW}, {S_MW}"); st.e(f"s_add_u32 {S_SOW}, {S_SOW}, {WS_ZN}")
    st.e(f"s_lshl_b32 s56, {S_RB}, 8"); st.e(f"s_lshl_b32 s57, {S_WR}, 7"); st.e("s_add_u32 s56, s56, s57")
    st.e(f"v_and_b32 v{V_T}, 15, v1"); st.e(f"v_lshlrev_b32 v{V_T}, 1, v{V_T}")
    for i in range(4): st.e(f"buffer_load_ushort v{V_B+i}, v{V_T}, {SRD_BSP}, s56 offen offset:{32*i}", tag='bsp')
def xread_natural(slot, i, hh, dst):
    r, imm = ldsaddr(V_XR + 3 * hh, slot + i * 2048)
    return f"ds_read_b128 {dst}, {r} offset:{imm}"
def p3_wread(slot, n, hh, db):
    out = []
    for sec in range(2):
        r, imm = ldsaddr(V_WR + 3, slot + 16384 + hh * 7168 + n * 1024 + sec * 512)
        out.append(f"ds_read_b64_tr_b16 {ar(db + 2*sec, 2)}, {r} offset:{imm}")
    return out
def p3_mf(s, hh, n, i, wf, xf):
    a = vr(accr(n, i), 4)
    return f"v_mfma_f32_16x16x32_bf16 {a}, {wf}, {xf}, {'0' if (s == 0 and hh == 0) else a}"
def p3_epilogue(st, NT):
    T = V_T
    st.wait(tag='bsp')
    for i in range(4): st.e(f"v_lshlrev_b32 v{V_B+i}, 16, v{V_B+i}")
    st.e(f"v_bfe_u32 v{T}, v1, 4, 1"); st.e(f"v_lshlrev_b32 v{T}, 10, v{T}")
    st.e(f"v_lshrrev_b32 v{T+1}, 5, v1"); st.e(f"v_lshl_or_b32 v{T}, v{T+1}, 8, v{T}")
    st.e(f"v_and_b32 v{T+1}, 15, v1"); st.e(f"v_lshl_or_b32 v{T}, v{T+1}, 4, v{T}")
    st.e(f"s_mul_i32 s61, {S_RB}, {88*8192}")
    st.e(f"s_lshl_b32 s57, {S_WR}, 12"); st.e("s_add_u32 s61, s61, s57")
    st.e(f"s_add_u32 s61, s61, {WS_XF + 32*8192}")
    st.e(f"s_mul_i32 s60, {S_CB}, 7")
    if NT == 3: st.e("s_add_u32 s60, s60, 4")
    for n in range(4):
        if n >= NT:
            st.e(f"s_mov_b32 s{56+n}, {WS_SIZE}")
            continue
        st.e(f"s_add_u32 s{56+n}, s60, {n}")
        st.e(f"s_lshr_b32 s62, s{56+n}, 1"); st.e("s_lshl_b32 s62, s62, 13")
        st.e(f"s_and_b32 s{56+n}, s{56+n}, 1"); st.e(f"s_lshl_b32 s{56+n}, s{56+n}, 9")
        st.e(f"s_add_u32 s{56+n}, s{56+n}, s62"); st.e(f"s_add_u32 s{56+n}, s{56+n}, s61")
    st.e("s_mov_b32 s60, 0xffff0000")
    k = 0
    for n in range(NT):
        for ip in (0, 2):
            u = TMP + 8 * (k % 2); o = UO + 4 * k; k += 1
            for d in range(2):
                i = ip + d; a = accr(n, i); z = ZP + (n * 4 + i) * 2
                for h in range(2):
                    st.e(f"v_lshlrev_b32 v{u+4*d+2*h}, 16, v{z+h}")
                    st.e(f"v_and_b32 v{u+4*d+2*h+1}, s60, v{z+h}")
                bp = V_B + (i // 2) * 2
                sel = "op_sel_hi:[1,0]" if i % 2 == 0 else "op_sel:[0,1] op_sel_hi:[1,1]"
                for h in range(2): st.e(f"v_pk_add_f32 {vr(a+2*h,2)}, {vr(a+2*h,2)}, {vr(bp,2)} {sel}")
                for h in range(2): st.e(f"v_pk_mul_f32 {vr(a+2*h,2)}, {vr(a+2*h,2)}, {vr(u+4*d+2*h,2)}")
                for h in range(2): st.e(f"v_cvt_pk_bf16_f32 v{o+2*d+h}, v{a+2*h}, v{a+2*h+1}")
            st.e(f"v_permlane16_swap_b32 v{o}, v{o+2}"); st.e(f"v_permlane16_swap_b32 v{o+1}, v{o+3}")
            if UEARLY: st.e(u_store(k - 1)[0], tag='u', count=False)
    emit_all(st, st.bg); st.bg = []
UEARLY = env('UEARLY', 1)
def u_store(k): return (f"buffer_store_dwordx4 {vr(UO+4*k,4)}, v{V_T}, {SRD_WS}, s{56+k//2} offen offset:{(k%2)*2048}{SC}", 'u')
def p3_all(st, **kw):
    l1 = st.newlabel("P3_WC1"); le = st.newlabel("P3_END")
    assert not st.bg
    st.e(f"s_cmp_eq_u32 {S_WC}, 1")
    st.e(f"s_cbranch_scc1 {l1}")
    vm0 = list(st.vm); res = []
    for NT in (4, 3):
        st.vm = list(vm0)
        if NT == 4:
            dm = lambda s: p3_x(s, P3X)
        else:
            st.label(l1)
            st.e(f"s_mul_i32 s56, {S_WR}, 7168")
            st.e(f"s_sub_u32 {S_SOW}, {S_SOW}, {S_MW}"); st.e(f"s_add_u32 {S_SOW}, {S_SOW}, s56")
            st.e(f"s_mov_b32 {S_MW}, s56")
            st.e(f"s_add_u32 s101, {S_SOW}, 4096")
            st.e(f"s_mov_b32 s67, {S_SOX}")
            st.e(f"s_sub_u32 s68, {S_MX}, 4096")
            for q in range(P3X, 4): st.e(f"v_subrev_u32 v{V_WD+1+q}, {32*4096}, v{V_XD+q}")
            dm = p3_dma_wc1
        gemm(st, 'p3', 32, P3_NB, P3_SLOT, dm, xread_natural, p3_wread, p3_mf, 4, NT, grp=f"p3_{NT}", **kw)
        st.bg_every = 10 if NT == 4 else 8; st._bgc = 0
        p3_epilogue(st, NT)
        res.append(list(st.vm))
        if NT == 4:
            st.flush_hazards(); st.e(f"s_branch {le}")
    assert res[0] == res[1]
    if UEARLY: st.vm_mark('u')
    st.flush_hazards()
    st.label(le)

P4_SLOT = 24576; P4_NB = 6; P4_ROT = 3
XROT = env('XROT', 1)
def p4_setup_s(st):
    st.e(f"v_lshlrev_b32 v{V_XD}, 4, v1")
    st.e(f"s_mul_i32 s67, {S_RB}, {88*8192}")
    st.e(f"s_add_u32 s67, s67, {S_MX}"); st.e(f"s_add_u32 s67, s67, {WS_XF}")
    st.e(f"s_add_u32 s68, s67, {16*16384}")
    st.e(f"s_lshl_b32 {S_MW}, {S_WAVE}, 11")
    st.e(f"s_and_b32 {S_SOW}, {S_OFF}, {max(ROT4 - 1, 0)}")
    st.e(f"s_lshr_b32 s101, {S_CB}, 2")
    st.e(f"s_mul_i32 s66, s101, {7 * XROT}"); st.e(f"s_add_u32 s66, s66, {S_SOW}")
    st.e(f"s_mul_i32 s101, s101, {4 * XROT}"); st.e(f"s_add_u32 {S_SOW}, {S_SOW}, s101")
    st.e(f"s_lshl_b32 {S_SOX}, {S_SOW}, 14"); st.e(f"s_add_u32 {S_SOX}, {S_SOX}, s67")
    st.e(f"s_lshl_b32 {S_SOW}, {S_SOW}, 17")
def p4_dma(s):
    slot = ((s + P4_ROT) % P4_NB) * P4_SLOT
    tag = ('st', 'p4', s)
    b = [f"s_add_u32 m0, {S_MX}, {slot}"]
    b += [(f"buffer_load_dwordx4 v{V_XD}, {SRD_WS}, {S_SOX} offen offset:{1024*q}{SC} lds", tag) for q in range(4)]
    if s == 15:
        b.append(f"s_mov_b32 s67, s68\ns_add_u32 s68, s68, {28*16384}\ns_lshl_b32 {S_SOX}, s66, 14\ns_add_u32 {S_SOX}, {S_SOX}, s67")
    else:
        b.append(f"s_add_u32 {S_SOX}, {S_SOX}, {0 if NOINC else 16384}")
        b.append(f"s_cmp_eq_u32 {S_SOX}, s68\ns_cselect_b32 {S_SOX}, s67, {S_SOX}")
    b.append(f"s_add_u32 m0, {S_MW}, {slot + 16384}")
    b += [(f"buffer_load_dwordx4 v{V_WD+j}, {SRD_WO if s < 16 else SRD_WOUT}, {S_SOW} offen offset:{1024*j} lds", tag) for j in range(2)]
    if s == 15:
        b.append(f"s_lshl_b32 {S_SOW}, s66, 17")
    else:
        b.append(f"s_add_u32 {S_SOW}, {S_SOW}, {0 if NOINC else 64*2048}")
        b.append(f"s_cmp_eq_u32 {S_SOW}, {(16 if s < 16 else 28) * 64 * 2048}\ns_cselect_b32 {S_SOW}, 0, {S_SOW}")
    return b
def p4_xread(slot, i, hh, dst):
    r, imm = ldsaddr(V_XR, slot + hh * 8192 + i * 1024)
    return f"ds_read_b128 {dst}, {r} offset:{imm}"
def p4_wread(slot, n, hh, db):
    out = []
    for sec in range(2):
        r, imm = ldsaddr(V_WR + 3 * n, slot + 16384 + hh * 4096 + sec * 512)
        out.append(f"ds_read_b64_tr_b16 {ar(db + 2*sec, 2)}, {r} offset:{imm}")
    return out
def p4_mf(s, hh, n, i, wf, xf):
    a = vr(accr(n, i, ACC if s < 16 else ACC + 32), 4)
    return f"v_mfma_f32_16x16x32_bf16 {a}, {wf}, {xf}, {'0' if (s in (0, 16) and hh == 0) else a}"
def p4_gate_load(st):
    st.e(f"s_lshl_b32 s56, {S_RB}, 9"); st.e(f"s_lshl_b32 s57, {S_WR}, 8"); st.e("s_add_u32 s56, s56, s57")
    st.e(f"s_add_u32 s56, s56, {WS_G}")
    st.e(f"v_and_b32 v{V_T+6}, 15, v1"); st.e(f"v_lshlrev_b32 v{V_T+6}, 2, v{V_T+6}")
    for i in range(4): st.e(f"buffer_load_dword v{V_G+i}, v{V_T+6}, {SRD_WS}, s56 offen offset:{64*i}{SC}", tag='gld')
    T = V_T
    st.e(f"v_and_b32 v{T}, 15, v1"); st.e(f"v_lshlrev_b32 v{T}, 11, v{T}")
    st.e(f"v_bfe_u32 v{T+1}, v1, 4, 1"); st.e(f"v_lshl_or_b32 v{T}, v{T+1}, 5, v{T}")
    st.e(f"v_lshrrev_b32 v{T+1}, 5, v1"); st.e(f"v_lshl_or_b32 v{T}, v{T+1}, 4, v{T}")
    st.e(f"s_lshl_b32 s56, {S_RB}, 18"); st.e(f"s_lshl_b32 s57, {S_WR}, 17"); st.e("s_add_u32 s56, s56, s57")
    st.e(f"s_lshl_b32 s57, {S_CB}, 7"); st.e("s_add_u32 s56, s56, s57")
    st.e(f"s_lshl_b32 s57, {S_WC}, 6"); st.e("s_add_u32 s56, s56, s57")
def p4_epilogue(st):
    st.wait(tag='gld')
    for i in range(4):
        u = TMP + 4 * i
        bp = V_G + (i // 2) * 2
        sel = "op_sel_hi:[1,0,1]" if i % 2 == 0 else "op_sel:[0,1,0] op_sel_hi:[1,1,1]"
        for n in range(2):
            a = accr(n, i); b = a + 32
            for h in range(2): st.e(f"v_pk_add_f32 {vr(a+2*h,2)}, {vr(a+2*h,2)}, {vr(b+2*h,2)} neg_lo:[0,1] neg_hi:[0,1]")
            for h in range(2): st.e(f"v_pk_fma_f32 {vr(a+2*h,2)}, {vr(a+2*h,2)}, {vr(bp,2)}, {vr(b+2*h,2)} {sel}")
            for h in range(2): st.e(f"v_cvt_pk_bf16_f32 v{u+2*n+h}, v{a+2*h}, v{a+2*h+1}")
        st.e(f"v_permlane16_swap_b32 v{u}, v{u+2}"); st.e(f"v_permlane16_swap_b32 v{u+1}, v{u+3}")
        st.e(f"buffer_store_dwordx4 {vr(u,4)}, v{V_T}, {SRD_OUT}, s56 offen", tag='out')
        if i < 3: st.e("s_add_u32 s56, s56, 32768")

def stash(st, vregs, a0):
    for k, v in enumerate(vregs): st.e(f"v_accvgpr_write_b32 a{a0+k}, v{v}")
def unstash(vregs, a0): return [f"v_accvgpr_read_b32 v{v}, a{a0+k}" for k, v in enumerate(vregs)]
KVCHK = env('KVCHK', 0); UCHK = env('UCHK', 10); UPUB = env('UPUB', 4); LN0 = env('LN0', 17)

def fused(st):
    stamp(st, 'setup')
    gate_issue(st)
    st.bg = p1a_dma(1) + p1a_dma(2) + p1a_dma(3); st.bg_every = 16
    p1a_setup_reads(st)
    flags_setup(st)
    R = 100; T = 112
    stash(st, [V_XR], A_XR); stash(st, [V_WR], A_4WR)
    p1b_regs(st, R, T); stash(st, range(R, R + 10), A_1BWD)
    xd_natural(st, 4096, R, T); stash(st, range(R, R + 4), A_3XD)
    wd128_lane(st, R, T, 2048)
    st.e(f"s_lshl_b32 s56, {S_WAVE}, 15"); st.e(f"s_lshl_b32 s57, {S_CB}, 7"); st.e("s_add_u32 s56, s56, s57")
    st.e(f"v_xor_b32 v{R+1}, 64, v{R}")
    st.e(f"v_add_u32 v{R}, s56, v{R}")
    st.e(f"s_add_u32 s56, s56, {8*2048 - 1024}")
    st.e(f"v_add_u32 v{R+1}, s56, v{R+1}")
    stash(st, [R, R + 1], A_4WD)
    gate_finish(st)
    stamp(st, 'pre')
    win = lambda p: (lambda st: emit_all(st, sweep_items(SRD_WIN, 1024 * 3584 * 2, p, 4, V_S16, V_TD)))
    at = {(0, 'B'): lambda st: sweep_1a(st, 2), (2, 'B'): lambda st: sweep_1a(st, 3),
          (5, 'A'): win(0), (7, 'B'): win(1), (10, 'A'): win(2), (12, 'B'): win(3),
          (4, 'A'): lambda st: stamp(st, 'y_' + '1a_s4'), (12, 'A'): lambda st: stamp(st, '1a_s12')}
    pre1b = lambda: unstash(range(V_WD, V_WD + 7), A_1BWD) + p1_soff(7168, 7168)
    gemm(st, 'p1a', 16, P1A_NB, P1A_SLOT, p1a_dma, xread_natural, p1a_wread, p1a_mf, 4, 6, first_stamp='1a_first', at=at,
         nxt={13: lambda: pre1b() + p1b_dma(0), 14: lambda: p1b_dma(1), 15: lambda: p1b_dma(2)})
    stamp(st, '1a_main')
    tag_setup(st)
    st.bg_every = 12
    p1_epi_qkv(st)
    for t in unstash([V_WR, V_WR + 3, V_W3], A_1BWR): st.e(t)
    copies(st, V_WR); copies(st, V_WR + 3); copies(st, V_W3)
    stamp(st, '1a_epi')
    pre2 = lambda: [f"v_lshlrev_b32 v{V_L16}, 4, v1"] + rec(kv_start) + flat(unit_loads(u) for u in range(-1, RING - 1))
    gemm(st, 'p1b', 16, P1B_NB, P1B_SLOT, p1b_dma, xread_natural, p1b_wread, p1b_mf, 4, 7, first_stamp='y_' + '1b_first',
         publish=(1, ['kv', 'gst'], 2), nxt={15: pre2},
         at={(4, 'A'): lambda st: stamp(st, 'y_' + '1b_s4'),
             (14, 'A'): lambda st: poll_issue(st, 'cb', 'pkv'), (15, 'A'): lambda st: poll_check(st, 'cb', 'pkv', 1)})
    stamp(st, '1b_main')
    st.bg_every = 16
    p1_epi_z(st, {})
    emit_all(st, st.bg); st.bg = []
    stamp(st, '1b_epi')
    VS = 21
    def sweep2_setup(st):
        st.e(f"v_and_b32 v{VS}, 15, v1"); st.e(f"v_lshlrev_b32 v{VS}, 7, v{VS}")
        for t in unstash(range(V_XD, V_XD + 4), A_3XD): st.e(t)
        st.e(f"s_mov_b32 {S_SOX}, 0")
    hooks = {
        1: lambda st: (stamp(st, 'att1'), sweep2_setup(st)),
        5: lambda st: drain_publish(st, 2, 'stat'),
        LN0 - 3: lambda st: poll_issue(st, 'rb', 'pst'),
        LN0: lambda st: (poll_check(st, 'rb', 'pst', 2), ln_load(st, 0)),
        LN0 + 3: lambda st: (stamp(st, 'att20'), ln_accum(st, 0), ln_load(st, 1)),
        LN0 + 6: lambda st: (ln_accum(st, 1), ln_final(st)),
        LN0 + 18: lambda st: drain_publish(st, 3, 'zn'),
        40: lambda st: stamp(st, 'y_' + 'att40'),
        49: lambda st: poll_issue(st, 'cb', 'pzn'),
        52: lambda st: (poll_check(st, 'cb', 'pzn', 3), p3_setup_w(st)),
    }
    extras = {}
    for p in range(4): extras[4 + 4 * p] = [sweep_items(SRD_WSP, 2048 * 2048 * 2, p, 4, VS, 19)]
    zs = zn_stores()
    for k in range(8): extras[LN0 + 7 + k] = zs[2 * k:2 * k + 2]
    for p in range(2): extras[LN0 + 2 + 14 * p] = [sweep_items(SRD_WOUT, 1792 * 1024 * 2, p, 2, VS, 19)]
    extras[37] = [sweep_items(SRD_WO, 1024 * 1024 * 2, 0, 1, VS, 19)]
    for s_ in range(P3_NB):
        d = p3_x(s_)
        extras[39 + 2 * s_] = [d[0:2], d[2]]; extras[40 + 2 * s_] = [d[3], d[4:6]]
        d = p3_w_pro(s_)
        extras[53 + 2 * s_] = [d[0:2], d[2]]; extras[54 + 2 * s_] = [d[3], d[4:6]]
    if env('ATT_TEST', 0):
        hooks = {8: lambda st: stamp(st, 'att8'), 49: lambda st: stamp(st, 'att49')}; extras = {}
        if env('ATT_TEST', 0) == 2:
            for j in range(9, 49): hooks[j] = (lambda st, j=j: st.e(f"; tile {j}"))
        att_main(st, hooks, extras, RING - 1)
        return
    att_main(st, hooks, extras, RING - 1)
    for t in unstash([V_XR], A_XR): st.e(t)
    st.e(f"v_xor_b32 v{V_XR+3}, 64, v{V_XR}")
    copies(st, V_XR); copies(st, V_XR + 3)
    stamp(st, 'att_epi')
    pre4 = lambda: unstash([V_WD, V_WD + 1], A_4WD) + rec(p4_setup_s)
    p3_all(st, publish=(4, ['o'], 3), first_stamp='y_' + '3_first',
           nxt={28: lambda: pre4() + p4_dma(0) + p4_dma(1), 29: lambda: p4_dma(2), 30: lambda: p4_dma(3), 31: lambda: p4_dma(4) + p4_dma(5)},
           at={(6, 'A'): lambda st: stamp(st, '3_s6'), (26, 'A'): lambda st: stamp(st, '3_s26'),
               (26, 'B'): lambda st: poll_issue(st, 'rb', 'po'), (28, 'A'): lambda st: poll_check(st, 'rb', 'po', 4)})
    stamp(st, '3_epi')
    for t in unstash([V_WR], A_4WR): st.e(t)
    st.e(f"v_xor_b32 v{V_WR+3}, 32, v{V_WR}")
    copies(st, V_WR); copies(st, V_WR + 3)
    st.e(f"s_lshl_b32 s60, {S_WR}, 12")
    st.e(f"v_add_u32 v{V_XR}, s60, v{V_XD}")
    copies(st, V_XR)
    at = {(UCHK - 2, 'B'): lambda st: poll_issue(st, 'rb', 'pu'), (10, 'A'): lambda st: stamp(st, '4_s10'),
          (UCHK, 'B'): lambda st: poll_check(st, 'rb', 'pu', 5), (17, 'A'): lambda st: stamp(st, '4_s17'),
          (36, 'A'): p4_gate_load}
    if not UEARLY:
        emit_all(st, [u_store(0), u_store(1)])
        for k in range(2, 8): at[((k - 2) // 2, 'AB'[k % 2])] = (lambda st, k=k: emit_filler(st, u_store(k)))
    gemm(st, 'p4', 44, P4_NB, P4_SLOT, p4_dma, p4_xread, p4_wread, p4_mf, 4, 2, rot=P4_ROT, PF=2,
         publish=(5, ['u'], UPUB), first_stamp='4_first', at=at, hold=(16, UCHK))
    p4_epilogue(st)
    gen_advance(st)
SWD = env('SWD', 2); KVPUB = env('KVPUB', 7)

def build():
    kname = NAME + "_kernel"
    ref = open(os.path.join(os.path.dirname(os.path.abspath(__file__)), "..", "cdna_kernels", NAME + ".s.ref")).read()
    head = [l for l in ref.splitlines() if l.startswith(";") and "@launch" not in l]
    out = "\n".join(head) + "\n"
    if env('LIST', 0): out += f"; @launch kernel={kname} grid=(256,1,1) block=(256,1,1) lds=163840\n"
    else: out += "; @launch grid=(256,1,1) block=(256,1,1) lds=163840\n"
    out += '.amdgcn_target "amdgcn-amd-amdhsa--gfx950"\n.text\n'
    st = Stream()
    st.endlabel = "KERNEL_END"
    st.stamp_names = ['start']
    if STAMPS: st.e("s_memtime s[98:99]" if CYC else "s_memrealtime s[98:99]")
    setup(st)
    if STAMPS: st.e("s_mov_b32 s70, s98")
    fused(st)
    write_stamps(st)
    st.label(st.endlabel)
    st.e("s_endpgm")
    sys.stderr.write(f"{len(st.ins)} instrs (unrolled), nops added {st.nops_added}\n")
    out += f".globl {kname}\n.p2align 8\n.type {kname},@function\n{kname}:\n" + st.text()
    out += f"\n.set CODE_BYTES, ({st.endlabel} - {kname} - 512) & 0xffffff00\n"
    out += f""".section .rodata,"a"
.p2align 6
.amdhsa_kernel {kname}
  .amdhsa_next_free_vgpr 512
  .amdhsa_next_free_sgpr 102
  .amdhsa_accum_offset 256
  .amdhsa_group_segment_fixed_size 0
  .amdhsa_kernarg_size 96
  .amdhsa_user_sgpr_count 2
  .amdhsa_user_sgpr_kernarg_segment_ptr 1
  .amdhsa_system_sgpr_workgroup_id_x 1
  .amdhsa_float_denorm_mode_32 3
.end_amdhsa_kernel
"""
    return out

if __name__ == "__main__":
    open(sys.argv[1], "w").write(build())
```

```python
import sys, os, math, struct
sys.path.insert(0, os.path.dirname(os.path.abspath(__file__)))
from asmlib import *

NAME = "gated_mix__mha_block__mixer_gmlp__prompt"
MB = 1 << 20
WS_KV = 0
WS_ZN = 16 * MB
WS_XF = 24 * MB
WS_ST = 36 * MB
WS_G = 37 * MB
WS_TS = 38 * MB
WS_SIZE = 40 * MB
env = lambda k, d: int(os.environ.get(k, d))
STAMPS = env('STAMPS', 0); CYC = env('CYC', 0); NOINC = env('NOINC', 0); NOTOUCH = env('NOTOUCH', 0)
ROT = env('ROT', 2); ROT3 = 0; ROT4 = env('ROT4', 4)
SC = ' sc1'

def f2u(x): return struct.unpack('<I', struct.pack('<f', x))[0]
def vr(b, n): return f"v[{b}:{b+n-1}]"
def ar(b, n): return f"a[{b}:{b+n-1}]"

S_WAVE, S_WR, S_WC, S_RB, S_CB = 's3', 's4', 's5', 's6', 's7'
SRD_X, SRD_WQKV, SRD_WIN, SRD_WSP, SRD_WO, SRD_WOUT, SRD_WS, SRD_OUT, SRD_BSP, SRD_GATE, SRD_DBG = [f"s[{8+4*i}:{11+4*i}]" for i in range(11)]
S_SOX, S_SOW, S_MX, S_MW = 's52', 's53', 's54', 's55'
S_KV, S_HB, S_OFF, S_G = 's64', 's65', 's69', 's100'

def isdma(d): return not (isinstance(d, str) and d.startswith(("s_", "v_")))
def ndma(items): return sum(1 for x in items if isdma(x))
def emit_all(st, items):
    for x in items: emit_filler(st, x)
def flat(items):
    out = []
    for s_ in items: out += s_
    return out
class Rec:
    def __init__(self): self.l = []
    def e(self, text, tag=None, count=True): self.l.append((text, tag) if tag is not None else text)
def rec(fn, *a, main=None):
    r = Rec(); r.main = main; fn(r, *a); return r.l

NSTAMP = 21
def stamp(st, name):
    if not STAMPS: return
    sel = os.environ.get('STAMPSET')
    if sel and not (name.startswith(tuple(sel.split(','))) or name == 'end'): return
    if not sel and name.startswith(('x', 'y')): return
    names = st.stamp_names
    if name not in names: names.append(name)
    idx = names.index(name)
    assert idx < NSTAMP
    st.nobg(True)
    st.e("s_memtime s[96:97]" if CYC else "s_memrealtime s[96:97]")
    st.e("s_waitcnt lgkmcnt(0)")
    st.e(f"s_mov_b32 s{70+idx}, s96")
    st.nobg(False)
def write_stamps(st):
    if not STAMPS: return
    st.e("s_waitcnt vmcnt(0)")
    stamp(st, 'end')
    st.e(f"s_lshl_b32 s56, {S_G}, 7")
    st.e(f"s_add_u32 s56, s56, {WS_TS}")
    st.e("v_mov_b32 v2, 0")
    for i in range(len(st.stamp_names)):
        st.e(f"v_mov_b32 v3, s{70+i}")
        st.e(f"buffer_store_dword v3, v2, {SRD_WS}, s56 offen offset:{4*i}")
    open(sys.argv[1] + ".names", "w").write(",".join(st.stamp_names) + "\n")

def merge(reads, dm, G):
    gaps = [[] for _ in range(G)]
    nd = ndma(dm)
    pos = [min(G - 1, (2 * k + 1) * G // (2 * nd)) for k in range(nd)] if nd else []
    k = 0; last = 0
    dg = set(pos)
    post = [[] for _ in range(G)]
    for d in dm:
        if isdma(d):
            post[pos[k]].append(d); last = pos[k]; k += 1
        elif 'm0' in d:
            g = max(pos[k] - 1, last) if k < nd else G - 1
            post[g].append(d); last = g
        else:
            g = min(last + 1, G - 1) if (k < nd and last + 1 < pos[k]) or k >= nd else last
            post[g].append(d); last = g
    free = [g for g in range(G) if g not in dg]
    R = len(reads)
    if R <= len(free):
        for r, g in zip(reads, free): gaps[g].append(r)
    else:
        for j, r in enumerate(reads): gaps[j * G // R].append(r)
    return [gaps[g] + post[g] for g in range(G)]

def setup(st):
    st.e("s_cmp_ge_u32 s2, 256")
    st.e("s_cbranch_scc1 " + st.endlabel)
    st.e("s_load_dwordx16 s[64:79], s[0:1], 0")
    st.e("s_load_dwordx8 s[80:87], s[0:1], 64")
    st.e("v_lshrrev_b32 v2, 6, v0")
    st.e("v_and_b32 v1, 63, v0")
    st.e(f"v_readfirstlane_b32 {S_WAVE}, v2")
    st.e("s_and_b32 s56, s2, 1"); st.e("s_lshl_b32 s56, s56, 3")
    st.e("s_bfe_u32 s57, s2, 0x30003")
    st.e(f"s_or_b32 {S_RB}, s56, s57")
    st.e("s_bfe_u32 s56, s2, 0x20001"); st.e("s_lshl_b32 s56, s56, 2")
    st.e("s_lshr_b32 s58, s2, 6")
    st.e(f"s_or_b32 {S_CB}, s56, s58")
    st.e("s_add_u32 s101, s57, s58")
    st.e(f"s_lshr_b32 {S_WR}, {S_WAVE}, 1")
    st.e(f"s_and_b32 {S_WC}, {S_WAVE}, 1")
    st.e(f"s_lshl_b32 {S_G}, s2, 2"); st.e(f"s_add_u32 {S_G}, {S_G}, {S_WAVE}")
    st.e(f"s_lshl_b32 {S_MX}, {S_WAVE}, 12")
    sweep_setup(st)
    st.e("s_waitcnt lgkmcnt(0)")
    def srd(base, ptr, size):
        st.e(f"s_mov_b32 s{base}, s{ptr}")
        st.e(f"s_and_b32 s{base+1}, s{ptr+1}, 0xffff")
        st.e(f"s_mov_b32 s{base+2}, {size}")
        st.e(f"s_mov_b32 s{base+3}, 0x20000")
    srd(8, 64, 2048 * 1024 * 2)
    srd(12, 66, 1024 * 3072 * 2)
    st.e("s_mov_b32 s63, s69")
    st.e(f"s_mov_b32 {S_OFF}, s101")
    p1a_setup(st)
    emit_all(st, p1a_dma(0))
    for e in range(SW0): sweep_1a(st, e)
    touch_code(st)
    srd(16, 72, 1024 * 3584 * 2)
    srd(20, 74, 2048 * 2048 * 2)
    st.e("s_mov_b32 s24, s68"); st.e("s_and_b32 s25, s63, 0xffff"); st.e(f"s_mov_b32 s26, {1024*1024*2}"); st.e("s_mov_b32 s27, 0x20000")
    srd(28, 78, 1792 * 1024 * 2)
    srd(32, 86, WS_SIZE)
    srd(36, 82, 2048 * 1024 * 2)
    srd(40, 76, 4096)
    srd(44, 80, 2048)
    gen_load(st)
SWFIRST = env('SWFIRST', 0); VPER = env('VPER', 16); PRE1 = env('PRE1', 1); GLATE = env('GLATE', 1)

SW0 = env('SW0', 3); SWW = env('SWW', 0); BG0 = env('BG0', 12); EPIBG = env('EPIBG', 1000); SW1A = env('SW1A', 1)
V_S16, V_TX, V_TD = 240, 241, 242
def sweep_setup(st):
    st.e(f"v_and_b32 v{V_S16}, 15, v1"); st.e(f"v_lshlrev_b32 v{V_S16}, 7, v{V_S16}")
    st.e(f"v_bfe_u32 v{V_TX}, v1, 1, 1"); st.e(f"v_lshlrev_b32 v{V_TX}, 11, v{V_TX}")
    st.e(f"v_and_b32 v{V_TD}, 1, v1"); st.e(f"v_lshl_add_u32 v{V_TX}, v{V_TD}, 7, v{V_TX}")
    st.e(f"v_and_b32 v243, 7, v1"); st.e(f"v_min_u32 v243, 5, v243"); st.e(f"v_lshlrev_b32 v243, 7, v243")
def sweep_items(srd, nbytes, piece, npieces, va, vd):
    if NOTOUCH: return []
    pc = nbytes // npieces
    return [f"s_mul_i32 s62, {S_G}, {pc // 1024}", f"s_add_u32 s62, s62, {piece * pc}",
            (f"buffer_load_dword v{vd}, v{va}, {srd}, s62 offen", 'touch')]
def sweep_1a(st, e):
    if NOTOUCH: return
    st.e(f"s_lshl_b32 s62, {S_G}, 12")
    st.e(f"buffer_load_dword v{V_TD}, v{V_TX}, {SRD_X}, s62 offen offset:{e * 256}", tag=('sw', e))
    st.e(f"s_mul_i32 s62, {S_G}, 768"); st.e(f"s_add_u32 s62, s62, {e * 128 * 6144}")
    st.e(f"buffer_load_dword v{V_TD}, v243, {SRD_WQKV}, s62 offen", tag=('sw', e))
def touch_code(st):
    if NOTOUCH: return
    st.e("s_getpc_b64 s[58:59]")
    st.e("s_and_b32 s58, s58, 0xffffff00")
    st.e("s_lshr_b32 s56, s2, 3"); st.e("s_lshl_b32 s56, s56, 2")
    st.e(f"s_add_u32 s56, s56, {S_WAVE}")
    st.e("s_lshl_b32 s56, s56, 10")
    st.e("s_min_u32 s56, s56, CODE_BYTES - 1024")
    st.e("v_lshlrev_b32 v244, 4, v1")
    st.e("v_add_u32 v244, s56, v244")
    st.e(f"global_load_dword v{V_TD}, v244, s[58:59]", tag='touch')

WS_FL = 37 * MB + 65536
S_TAG, S_GEN = 's94', 's95'
def gen_load(st):
    st.e(f"s_add_u32 s86, s86, {WS_FL + 8192}"); st.e("s_addc_u32 s87, s87, 0")
    st.e(f"s_load_dword {S_GEN}, s[86:87], 0")
def flags_setup(st):
    st.e("v_and_b32 v252, 15, v1"); st.e("v_lshlrev_b32 v252, 2, v252")
    st.e(f"s_lshl_b32 s56, {S_RB}, 7"); st.e(f"s_add_u32 s56, s56, {WS_FL}")
    st.e("v_add_u32 v253, s56, v252")
    st.e(f"s_lshl_b32 s57, {S_CB}, 2"); st.e("s_add_u32 s92, s56, s57")
    st.e(f"s_lshl_b32 s56, {S_CB}, 7"); st.e(f"s_add_u32 s56, s56, {WS_FL + 4096}")
    st.e("v_add_u32 v254, s56, v252")
    st.e(f"s_lshl_b32 s57, {S_RB}, 2"); st.e("s_add_u32 s93, s56, s57")
    st.e("v_mov_b32 v255, 0")
def tag_setup(st):
    st.e(f"s_mul_i32 {S_TAG}, {S_GEN}, 0x9e3779b1"); st.e(f"s_add_u32 {S_TAG}, {S_TAG}, 0x7f4a7c15")
    st.e(f"s_and_b32 {S_TAG}, {S_TAG}, 0xfffffff8")
def do_publish(st, val):
    l = st.newlabel("PUB")
    st.nobg(True)
    st.e(f"s_cmp_lg_u32 {S_WAVE}, {PUBW}")
    st.e(f"s_cbranch_scc1 {l}")
    st.e(f"s_add_u32 s99, {S_TAG}, {val}")
    st.e("v_mov_b32 v0, s99")
    st.e("s_mov_b64 exec, 1")
    st.e(f"buffer_store_dword v0, v255, {SRD_WS}, {'s93' if val in (1, 3) else 's92'} offen sc1", count=False)
    st.e("s_mov_b64 exec, -1")
    st.label(l, soft=True)
    st.nobg(False)
PUBW = env('PUBW', 1)
def gen_advance(st):
    l = st.newlabel("GEN")
    st.e(f"s_cmp_lg_u32 {S_G}, 0")
    st.e(f"s_cbranch_scc1 {l}")
    st.e(f"s_add_u32 s99, {S_GEN}, 1")
    st.e("v_mov_b32 v0, s99")
    st.e(f"s_mov_b32 s99, {WS_FL + 8192}")
    st.e("s_mov_b64 exec, 1")
    st.e(f"buffer_store_dword v0, v255, {SRD_WS}, s99 offen sc1", count=False)
    st.e("s_mov_b64 exec, -1")
    st.label(l, soft=True)
def drain_publish(st, val, tag):
    st.wait(tag=tag)
    st.e("s_barrier")
    do_publish(st, val)
def poll_issue(st, grp, tag):
    st.e(f"buffer_load_dword v252, v{253 if grp == 'rb' else 254}, {SRD_WS}, 0 offen sc1", tag=tag)
def poll_check(st, grp, tag, val):
    st.wait(tag=tag)
    ok = st.newlabel("POK"); lp = st.newlabel("PSPIN")
    st.nobg(True)
    st.e(f"s_add_u32 s91, {S_TAG}, {val}")
    st.e("v_subrev_u32 v252, s91, v252")
    st.e(f"v_cmp_lt_u32 vcc, {7 - val}, v252")
    st.e(f"s_cbranch_vccz {ok}")
    st.e("s_mov_b32 s99, 0x8000")
    st.label(lp, soft=True)
    st.e("s_sleep 2")
    st.e(f"buffer_load_dword v252, v{253 if grp == 'rb' else 254}, {SRD_WS}, 0 offen sc1", count=False)
    st.e("s_sub_u32 s99, s99, 1")
    st.e(f"s_cbranch_scc1 {ok}")
    st.e("s_waitcnt vmcnt(0)")
    st.e("v_subrev_u32 v252, s91, v252")
    st.e(f"v_cmp_lt_u32 vcc, {7 - val}, v252")
    st.e(f"s_cbranch_vccnz {lp}")
    st.label(ok, soft=True)
    st.nobg(False)

def xd_natural(st, rowstride, D, T):
    st.e(f"s_lshl_b32 s56, {S_RB}, 7"); st.e(f"s_lshl_b32 s57, {S_WAVE}, 5"); st.e("s_add_u32 s56, s56, s57")
    st.e(f"v_lshrrev_b32 v{T}, 3, v1")
    st.e(f"v_add_u32 v{T}, s56, v{T}")
    st.e(f"v_lshlrev_b32 v{T}, {rowstride.bit_length() - 1}, v{T}")
    st.e(f"v_lshrrev_b32 v{T+1}, 4, v1")
    st.e(f"v_and_b32 v{T+2}, 7, v1")
    st.e(f"v_xor_b32 v{T+1}, v{T+1}, v{T+2}")
    st.e(f"v_lshlrev_b32 v{T+1}, 4, v{T+1}")
    st.e(f"v_add_u32 v{D}, v{T}, v{T+1}")
    st.e(f"v_xor_b32 v{T+1}, 64, v{T+1}")
    st.e(f"v_add_u32 v{T+1}, v{T}, v{T+1}")
    st.e(f"v_add_u32 v{D+1}, {8*rowstride - 1024}, v{T+1}")
    st.e(f"v_add_u32 v{D+2}, {16*rowstride - 2048}, v{D}")
    st.e(f"v_add_u32 v{D+3}, {24*rowstride - 3072}, v{T+1}")
def xr_natural(st, D, T):
    st.e(f"v_and_b32 v{T}, 15, v1")
    st.e(f"v_lshrrev_b32 v{T+1}, 1, v{T}")
    st.e(f"v_lshrrev_b32 v{T+2}, 4, v1")
    st.e(f"v_xor_b32 v{T+1}, v{T+1}, v{T+2}")
    st.e(f"v_lshlrev_b32 v{T+1}, 4, v{T+1}")
    st.e(f"v_lshl_add_u32 v{T+1}, v{T}, 7, v{T+1}")
    st.e(f"s_lshl_b32 s56, {S_WR}, 13")
    st.e(f"v_add_u32 v{D}, s56, v{T+1}")
def wr128(st, D, T, gstride, base):
    st.e(f"v_lshrrev_b32 v{T}, 4, v1")
    st.e(f"v_bfe_u32 v{T+1}, v1, 2, 2")
    st.e(f"v_mul_u32_u24 v{T+2}, {gstride}, v{T}")
    st.e(f"v_lshl_add_u32 v{T+2}, v{T+1}, 7, v{T+2}")
    st.e(f"v_and_b32 v{T+3}, 3, v1")
    st.e(f"v_lshl_add_u32 v{T+2}, v{T+3}, 3, v{T+2}")
    st.e(f"v_lshrrev_b32 v{T+1}, 1, v{T+1}")
    st.e(f"v_and_b32 v{T}, 1, v{T}")
    st.e(f"v_lshl_or_b32 v{T}, v{T}, 1, v{T+1}")
    st.e(f"s_lshl_b32 s56, {S_WC}, 1")
    st.e(f"v_xor_b32 v{T}, s56, v{T}")
    st.e(f"v_lshl_add_u32 v{D}, v{T}, 5, v{T+2}")
    if base: st.e(f"v_add_u32 v{D}, {base}, v{D}")
def wd128_lane(st, D, T, rowstride):
    st.e(f"v_lshrrev_b32 v{T}, 3, v1")
    st.e(f"v_mul_u32_u24 v{T}, {rowstride}, v{T}")
    st.e(f"v_bfe_u32 v{T+1}, v1, 1, 2")
    st.e(f"v_bfe_u32 v{T+2}, v1, 4, 1")
    st.e(f"v_xor_b32 v{T+1}, v{T+1}, v{T+2}")
    st.e(f"v_lshl_add_u32 v{T}, v{T+1}, 5, v{T}")
    st.e(f"v_and_b32 v{T+1}, 1, v1")
    st.e(f"v_lshl_add_u32 v{D}, v{T+1}, 4, v{T}")

V_XD, V_WD, V_XR, V_WR, V_T = 2, 6, 13, 19, 25
V_W3 = 28
P_T = V_T + 1
ACC1 = 32
def acc1(n, i): return ACC1 + (n * 4 + i) * 4
ZP = 32
AQ = 176
AST = 192
A_3XD, A_XR, A_4WD, A_4WR, A_1BWD, A_1BWR = AST, AST + 4, AST + 5, AST + 7, AST + 8, AST + 15
P1A_SLOT = 40960; P1A_NB = 4
P1B_SLOT = 45056; P1B_NB = 3

def adv(reg, inc, wrap):
    it = [f"s_add_u32 {reg}, {reg}, {0 if NOINC else inc}"]
    if wrap and ROT > 1:
        it.append(f"s_and_b32 {reg}, {reg}, {wrap-1}" if wrap & (wrap - 1) == 0 else f"s_cmp_eq_u32 {reg}, {wrap}\ns_cselect_b32 {reg}, 0, {reg}")
    return it
def p1_dma(name, NB, slotsz, srd, rowbytes, n):
    def f(s):
        slot = (s % NB) * slotsz; tag = ('st', name, s)
        b = [f"s_add_u32 m0, {S_MX}, {slot}"]
        b += [(f"buffer_load_dwordx4 v{V_XD+q}, {SRD_X}, {S_SOX} offen offset:{1024*q} lds", tag) for q in range(4)] + adv(S_SOX, 128, 2048)
        for j in range(n):
            if j % 4 == 0: b.append(f"s_add_u32 m0, {S_MW}, {slot + 16384 + 1024 * j}")
            b.append((f"buffer_load_dwordx4 v{V_WD+j}, {srd}, {S_SOW} offen offset:{1024*(j%4)} lds", tag))
        return b + adv(S_SOW, 64 * rowbytes, 1024 * rowbytes)
    return f
p1a_dma = p1_dma('p1a', P1A_NB, P1A_SLOT, SRD_WQKV, 6144, 6)
p1b_dma = p1_dma('p1b', P1B_NB, P1B_SLOT, SRD_WIN, 7168, 7)
def p1_soff(rowbytes, mw):
    return [f"s_and_b32 s56, {S_OFF}, {max(ROT - 1, 0)}", f"s_lshl_b32 {S_SOX}, s56, 7", f"s_mul_i32 {S_SOW}, s56, {64*rowbytes}", f"s_mul_i32 {S_MW}, {S_WAVE}, {mw}"]

def p1a_setup(st):
    T = V_T
    xd_natural(st, 2048, V_XD, T)
    wd128_lane(st, T + 3, T, 6144)
    st.e(f"v_xor_b32 v{T+4}, 64, v{T+3}")
    st.e(f"s_mul_i32 s56, {S_WAVE}, 6")
    st.e(f"s_lshl_b32 s58, {S_CB}, 7")
    for j in range(6):
        st.e(f"s_add_u32 s57, s56, {j}")
        st.e("s_lshr_b32 s59, s57, 3"); st.e("s_lshl_b32 s59, s59, 11")
        st.e("s_and_b32 s57, s57, 7"); st.e(f"s_mul_i32 s57, s57, {8*6144}")
        st.e("s_add_u32 s57, s57, s59"); st.e("s_add_u32 s57, s57, s58")
        if j % 4: st.e(f"s_sub_u32 s57, s57, {1024*(j%4)}")
        st.e(f"v_add_u32 v{V_WD+j}, s57, v{T + 3 + (j & 1)}")
    emit_all(st, p1_soff(6144, 6144))
def p1a_setup_reads(st):
    T = V_T
    xr_natural(st, V_XR, T)
    st.e(f"v_xor_b32 v{V_XR+3}, 64, v{V_XR}")
    copies(st, V_XR); copies(st, V_XR + 3)
    wr128(st, V_WR, T, 1024, 0)
    st.e(f"v_xor_b32 v{V_WR+3}, 32, v{V_WR}")
    copies(st, V_WR); copies(st, V_WR + 3)
def p1b_regs(st, D, T):
    st.e(f"s_mul_i32 s56, {S_WAVE}, {7*64}")
    st.e(f"s_mul_i32 s58, {S_CB}, 224")
    st.e("s_mov_b32 s59, 18725")
    st.e(f"v_mov_b32 v{T+5}, 3360")
    for j in range(7):
        d = D + j
        st.e(f"s_add_u32 s57, s56, {64*j}")
        st.e(f"v_add_u32 v{T}, s57, v1")
        st.e(f"v_mul_u32_u24 v{T+1}, s59, v{T}")
        st.e(f"v_lshrrev_b32 v{T+1}, 19, v{T+1}")
        st.e(f"v_mul_u32_u24 v{T+2}, 28, v{T+1}")
        st.e(f"v_sub_u32 v{T+2}, v{T}, v{T+2}")
        st.e(f"v_lshrrev_b32 v{T+3}, 1, v{T+2}")
        st.e(f"v_bfe_u32 v{T+4}, v{T+1}, 3, 1")
        st.e(f"v_xor_b32 v{T+3}, v{T+3}, v{T+4}")
        st.e(f"v_cmp_lt_u32 vcc, 6, v{T+3}")
        st.e(f"v_mul_u32_u24 v{d}, 7168, v{T+1}")
        st.e(f"v_lshl_add_u32 v{d}, v{T+3}, 5, v{d}")
        st.e(f"v_and_b32 v{T+2}, 1, v{T+2}")
        st.e(f"v_lshl_add_u32 v{d}, v{T+2}, 4, v{d}")
        st.e(f"v_cndmask_b32 v{T+4}, 0, v{T+5}, vcc")
        st.e(f"s_sub_u32 s57, s58, {1024*(j%4)}")
        st.e(f"v_add3_u32 v{d}, v{d}, v{T+4}, s57")
    st.e(f"v_lshrrev_b32 v{T}, 4, v1")
    st.e(f"v_bfe_u32 v{T+1}, v1, 2, 2")
    st.e(f"v_lshl_add_u32 v{T+2}, v{T}, 3, v{T+1}")
    st.e(f"v_mul_u32_u24 v{T+2}, 448, v{T+2}")
    st.e(f"v_and_b32 v{T+3}, 3, v1")
    st.e(f"v_lshl_add_u32 v{T+2}, v{T+3}, 3, v{T+2}")
    st.e(f"v_and_b32 v{T}, 1, v{T}")
    st.e(f"s_mul_i32 s57, {S_WC}, 7"); st.e("s_add_u32 s57, s57, 3")
    st.e(f"v_xor_b32 v{T+1}, s57, v{T}")
    st.e(f"v_lshl_add_u32 v{D+9}, v{T+1}, 5, v{T+2}")
    st.e(f"s_lshl_b32 s56, {S_WC}, 7")
    st.e(f"v_add_u32 v{T+2}, s56, v{T+2}")
    st.e(f"v_lshl_add_u32 v{D+7}, v{T}, 5, v{T+2}")
    st.e(f"v_lshlrev_b32 v{T+1}, 5, v{T}")
    st.e(f"v_sub_u32 v{D+8}, v{T+2}, v{T+1}")
    st.e(f"v_add_u32 v{D+8}, 32, v{D+8}")
def p1a_wread(slot, n, hh, db):
    out = []
    for sec in range(2):
        r, imm = ldsaddr(V_WR + 3 * (n % 2), slot + 16384 + (n // 2) * 8192 + hh * 4096 + sec * 512)
        out.append(f"ds_read_b64_tr_b16 {ar(db + 2*sec, 2)}, {r} offset:{imm}")
    return out
def p1b_wread(slot, n, hh, db):
    out = []
    u0 = [0, 1, 2, 3, 7, 8, 9][n]
    for sec in range(2):
        off = slot + 16384 + hh * 14336 + sec * 1792
        if n == 3: r, imm = ldsaddr(V_W3, off)
        elif u0 % 2 == 0: r, imm = ldsaddr(V_WR, off + u0 * 32)
        else: r, imm = ldsaddr(V_WR + 3, off + u0 * 32 - 32)
        out.append(f"ds_read_b64_tr_b16 {ar(db + 2*sec, 2)}, {r} offset:{imm}")
    return out
def p1a_mf(s, hh, n, i, wf, xf):
    a = vr(acc1(n, i), 4); c = "0" if (s == 0 and hh == 0) else a
    return f"v_mfma_f32_16x16x32_bf16 {a}, {xf}, {wf}, {c}" if n >= 4 else f"v_mfma_f32_16x16x32_bf16 {a}, {wf}, {xf}, {c}"
def p1b_mf(s, hh, n, i, wf, xf):
    a = vr(acc1(6 + n, i), 4)
    return f"v_mfma_f32_16x16x32_bf16 {a}, {wf}, {xf}, {'0' if (s == 0 and hh == 0) else a}"

QSCALE = math.log2(math.e) / math.sqrt(32.0)
def p1_epi_qkv(st):
    T = P_T
    st.e(f"s_lshl_b32 s56, {S_CB}, 1"); st.e(f"s_add_u32 s56, s56, {S_WC}")
    st.e(f"s_lshl_b32 {S_HB}, s56, 18")
    st.e(f"s_lshl_b32 s56, {S_RB}, 2"); st.e(f"s_lshl_b32 s57, {S_WR}, 1"); st.e("s_add_u32 s56, s56, s57")
    st.e("s_lshl_b32 s56, s56, 12")
    st.e("s_sub_u32 s58, s56, 4096"); st.e("s_and_b32 s58, s58, 0x3ffff")
    st.e(f"s_add_u32 s58, s58, {S_HB}")
    st.e(f"s_add_u32 s56, s56, {S_HB}")
    st.e("s_add_u32 s57, s56, 4096")
    st.e(f"v_lshlrev_b32 v{T}, 4, v1")
    st.e(f"v_and_b32 v{T+1}, 0x33, v1")
    st.e(f"v_bfe_u32 v{T+2}, v1, 2, 1"); st.e(f"v_lshl_or_b32 v{T+1}, v{T+2}, 3, v{T+1}")
    st.e(f"v_bfe_u32 v{T+2}, v1, 3, 1"); st.e(f"v_lshl_or_b32 v{T+1}, v{T+2}, 2, v{T+1}")
    st.e(f"v_lshlrev_b32 v{T+1}, 4, v{T+1}")
    def frag(t, x, y):
        st.e(f"v_cvt_pk_bf16_f32 v{t}, v{x}, v{x+1}"); st.e(f"v_cvt_pk_bf16_f32 v{t+1}, v{x+2}, v{x+3}")
        st.e(f"v_cvt_pk_bf16_f32 v{t+2}, v{y}, v{y+1}"); st.e(f"v_cvt_pk_bf16_f32 v{t+3}, v{y+2}, v{y+3}")
    def swaps(t):
        st.e(f"v_permlane16_swap_b32 v{t}, v{t+2}"); st.e(f"v_permlane16_swap_b32 v{t+1}, v{t+3}")
    K = [(128 + 4 * (a * 2 + ks), a, ks) for a in range(2) for ks in range(2)]
    for t, a, ks in K: frag(t, acc1(2 + ks, 2 * a), acc1(2 + ks, 2 * a + 1))
    for t, a, ks in K: swaps(t)
    for t, a, ks in K: st.e(f"buffer_store_dwordx4 {vr(t,4)}, v{T+1}, {SRD_WS}, {'s58' if a == 0 else 's56'} offen offset:{2048+1024*ks}{SC}", tag='kv')
    V = [(acc1(2, 0) + 4 * i, i) for i in range(4)]
    for t, i in V: frag(t, acc1(4, i), acc1(5, i))
    for t, i in V: swaps(t)
    for t, i in V: st.e(f"buffer_store_dwordx4 {vr(t,4)}, v{T}, {SRD_WS}, s{56+i//2} offen offset:{1024*(i%2)}{SC}", tag='kv')
    st.e(f"s_mov_b32 s58, {f2u(QSCALE)}"); st.e("s_mov_b32 s59, s58")
    for r in range(ACC1, ACC1 + 32, 2): st.e(f"v_pk_mul_f32 {vr(r,2)}, {vr(r,2)}, s[58:59]")
    Q = [(acc1(3, 0) + 4 * (a * 2 + ks), a, ks) for a in range(2) for ks in range(2)]
    for t, a, ks in Q: frag(t, acc1(ks, 2 * a), acc1(ks, 2 * a + 1))
    for t, a, ks in Q: swaps(t)
    for t, a, ks in Q:
        for j in range(4): st.e(f"v_accvgpr_write_b32 a{AQ + (a*2+ks)*4 + j}, v{t+j}")

GC1 = -2.0 * math.sqrt(2.0 / math.pi) * math.log2(math.e)
GC2 = GC1 * 0.044715
def xreduce(st, regs, temps):
    for w in (16, 32):
        for r, t in zip(regs, temps): st.e(f"v_mov_b32 v{t}, v{r}")
        for r, t in zip(regs, temps): st.e(f"v_permlane{w}_swap_b32 v{r}, v{t}")
        for r, t in zip(regs, temps): st.e(f"v_add_f32 v{r}, v{r}, v{t}")
def p1_epi_z(st, at):
    T = 26; TB = 96
    za = lambda j, i: acc1(6 + j, i)
    st.e(f"s_mov_b32 s56, {f2u(GC1)}")
    st.e(f"s_mov_b32 s58, {f2u(GC2)}"); st.e("s_mov_b32 s59, s58")
    st.e("s_mov_b32 s60, 1.0"); st.e("s_mov_b32 s61, 1.0")
    st.e(f"v_mov_b32 v{T}, s56"); st.e(f"v_mov_b32 v{T+1}, s56")
    pairs = [za(j, i) + 2 * h for j in range(7) for i in range(4) for h in range(2)]
    G = 4
    for gi, g0 in enumerate(range(0, len(pairs), G)):
        if gi in at: at[gi](st)
        grp = pairs[g0:g0 + G]
        tb = TB + (gi % 2) * 8
        for k, p in enumerate(grp): st.e(f"v_pk_mul_f32 {vr(tb+2*k,2)}, {vr(p,2)}, {vr(p,2)}")
        for k, p in enumerate(grp): st.e(f"v_pk_fma_f32 {vr(tb+2*k,2)}, {vr(tb+2*k,2)}, s[58:59], {vr(T,2)}")
        for k, p in enumerate(grp): st.e(f"v_pk_mul_f32 {vr(tb+2*k,2)}, {vr(tb+2*k,2)}, {vr(p,2)}")
        for k in range(2 * G): st.e(f"v_exp_f32 v{tb+k}, v{tb+k}")
        for k, p in enumerate(grp): st.e(f"v_pk_add_f32 {vr(tb+2*k,2)}, {vr(tb+2*k,2)}, s[60:61]")
        for k in range(2 * G): st.e(f"v_rcp_f32 v{tb+k}, v{tb+k}")
        for k, p in enumerate(grp): st.e(f"v_pk_mul_f32 {vr(p,2)}, {vr(tb+2*k,2)}, {vr(p,2)}")
        for k, p in enumerate(grp): st.e(f"v_cvt_pk_bf16_f32 v{ZP + (p - za(0, 0))//2}, v{p}, v{p+1}")
    st.e(f"s_mov_b32 s59, {f2u(-1.0/48)}")
    st.e(f"s_cmp_eq_u32 {S_WC}, 1")
    st.e("s_cselect_b32 s56, 1.0, 0"); st.e("s_mov_b32 s57, s56")
    st.e(f"s_cselect_b32 s58, {f2u(-1.0/64)}, s59")
    MEAN = TB; M2 = TB + 4; A = TB + 8; D = TB + 16
    ps = lambda i: [za(j, i) + 2 * h for j in (4, 5, 6) for h in range(2)]
    for i in range(4): st.e(f"v_pk_add_f32 {vr(A+2*i,2)}, {vr(za(3,i),2)}, {vr(za(3,i)+2,2)}")
    for i in range(4): st.e(f"v_pk_fma_f32 {vr(A+2*i,2)}, {vr(A+2*i,2)}, s[56:57], {vr(ps(i)[0],2)}")
    for k in range(1, 6):
        for i in range(4): st.e(f"v_pk_add_f32 {vr(A+2*i,2)}, {vr(A+2*i,2)}, {vr(ps(i)[k],2)}")
    for i in range(4): st.e(f"v_add_f32 v{MEAN+i}, v{A+2*i}, v{A+2*i+1}")
    xreduce(st, [MEAN + i for i in range(4)], [D + i for i in range(4)])
    for i in range(4): st.e(f"v_mul_f32 v{D+2*i}, s58, v{MEAN+i}")
    for i in range(4): st.e(f"v_sub_f32 v{MEAN+i}, 0, v{D+2*i}")
    for i in range(4):
        for p in [za(3, i), za(3, i) + 2] + ps(i): st.e(f"v_pk_add_f32 {vr(p,2)}, {vr(p,2)}, {vr(D+2*i,2)} op_sel_hi:[1,0]")
    for i in range(4): st.e(f"v_pk_mul_f32 {vr(A+2*i,2)}, {vr(za(3,i),2)}, {vr(za(3,i),2)}")
    for i in range(4): st.e(f"v_pk_fma_f32 {vr(A+2*i,2)}, {vr(za(3,i)+2,2)}, {vr(za(3,i)+2,2)}, {vr(A+2*i,2)}")
    for i in range(4): st.e(f"v_pk_mul_f32 {vr(A+2*i,2)}, {vr(A+2*i,2)}, s[56:57]")
    for k in range(6):
        for i in range(4): st.e(f"v_pk_fma_f32 {vr(A+2*i,2)}, {vr(ps(i)[k],2)}, {vr(ps(i)[k],2)}, {vr(A+2*i,2)}")
    for i in range(4): st.e(f"v_add_f32 v{M2+i}, v{A+2*i}, v{A+2*i+1}")
    xreduce(st, [M2 + i for i in range(4)], [D + i for i in range(4)])
    st.e(f"v_lshrrev_b32 v{T}, 4, v1")
    for i in range(1, 4):
        st.e(f"v_cmp_eq_u32 vcc, {i}, v{T}")
        st.e(f"v_cndmask_b32 v{MEAN}, v{MEAN}, v{MEAN+i}, vcc")
        st.e(f"v_cndmask_b32 v{M2}, v{M2}, v{M2+i}, vcc")
    st.e(f"s_lshl_b32 s56, {S_RB}, 4"); st.e(f"s_add_u32 s56, s56, {S_CB}"); st.e("s_lshl_b32 s56, s56, 11")
    st.e(f"s_lshl_b32 s57, {S_WR}, 10"); st.e("s_add_u32 s56, s56, s57")
    st.e(f"s_lshl_b32 s57, {S_WC}, 2"); st.e("s_add_u32 s56, s56, s57")
    st.e(f"s_add_u32 s56, s56, {WS_ST}")
    st.e(f"buffer_store_dword v{MEAN}, v{V_L16}, {SRD_WS}, s56 offen{SC}", tag='stat')
    st.e(f"buffer_store_dword v{M2}, v{V_L16}, {SRD_WS}, s56 offen offset:8{SC}", tag='stat')

LOG2E = math.log2(math.e)
def gate_issue(st):
    T = 128
    st.e(f"s_lshl_b32 s60, {S_RB}, 7"); st.e(f"s_lshl_b32 s61, {S_CB}, 3"); st.e("s_add_u32 s60, s60, s61")
    st.e(f"s_lshl_b32 s61, {S_WAVE}, 1"); st.e("s_add_u32 s66, s60, s61")
    st.e("s_lshl_b32 s60, s66, 11")
    st.e(f"v_lshlrev_b32 v{T+32}, 6, v1")
    st.e(f"v_and_b32 v{T+33}, 0x7ff, v{T+32}")
    for k in range(4):
        st.e(f"buffer_load_dwordx4 {vr(T+4*k,4)}, v{T+32}, {SRD_X}, s60 offen offset:{16*k}", tag='gate')
        st.e(f"buffer_load_dwordx4 {vr(T+16+4*k,4)}, v{T+33}, {SRD_GATE}, 0 offen offset:{16*k}", tag='gate')
def gate_finish(st):
    T = 128
    st.wait(tag='gate')
    a = T + 34
    st.e(f"v_mov_b32 v{a}, 0"); st.e(f"v_mov_b32 v{a+1}, 0")
    for k in range(16): st.e(f"v_dot2_f32_bf16 v{a + k % 2}, v{T+k}, v{T+16+k}, v{a + k % 2}")
    st.e(f"v_add_f32 v{a}, v{a}, v{a+1}")
    for m in ("quad_perm:[1,0,3,2]", "quad_perm:[2,3,0,1]", "row_half_mirror", "row_mirror"):
        st.e(f"v_add_f32_dpp v{a}, v{a}, v{a} {m} row_mask:0xf bank_mask:0xf")
    st.e(f"v_mov_b32 v{a+1}, v{a}")
    st.e(f"v_permlane16_swap_b32 v{a}, v{a+1}")
    st.e(f"v_add_f32 v{a}, v{a}, v{a+1}")
    st.e(f"v_mul_f32 v{a}, {f2u(-LOG2E)}, v{a}")
    st.e(f"v_exp_f32 v{a}, v{a}")
    st.e(f"v_add_f32 v{a}, 1.0, v{a}")
    st.e(f"v_rcp_f32 v{a}, v{a}")
    st.e(f"v_lshrrev_b32 v{a+1}, 5, v1"); st.e(f"v_lshlrev_b32 v{a+1}, 2, v{a+1}")
    st.e("s_lshl_b32 s56, s66, 2"); st.e(f"s_add_u32 s56, s56, {WS_G}")
    st.e(f"buffer_store_dword v{a}, v{a+1}, {SRD_WS}, s56 offen{SC}", tag='gst')

SA, SB, CA, CB, OA, OB, PA, PB, LA, LB, SEL, AT = 88, 104, 120, 136, 152, 168, 184, 192, 200, 204, 208, 212
V_L16 = 20
RING = 8
def m32(d, a, b, c): return f"v_mfma_f32_32x32x16_bf16 {vr(d,16)}, {a}, {b}, {c if c == '0' else vr(c,16)}"
def m16s(l, p, first=False): return f"v_mfma_f32_16x16x32_bf16 {vr(l,4)}, {vr(SEL,4)}, {vr(p,4)}, {'0' if first else vr(l,4)}"
def ubase(u):
    u %= RING
    return 16 * u if u < 3 else 96 + 16 * (u - 3)
def uK(u, ks): return ar(ubase(u) + 8 + 4 * ks, 4)
def uV(u, kk): return ar(ubase(u) + 4 * kk, 4)
def Qf(t, ks): return ar(AQ + (t * 2 + ks) * 4, 4)
V_KV = 18
KVSC = SC if env('KVSC', 0) else ''
KV_ADV = f"s_add_u32 {S_KV}, {S_KV}, 4096\ns_and_b32 {S_KV}, {S_KV}, 0x3ffff" if env("KVROT", 1) else f"s_add_u32 {S_KV}, {S_KV}, 4096"
def unit_loads(u):
    ks = range(2, 4) if u < 0 else range(4 if u < 63 else 2)
    return [(f"buffer_load_dwordx4 {ar(ubase(u)+4*k,4)}, v{V_KV}, {SRD_WS}, {S_KV} offen offset:{1024*k}{KVSC}", ('u', u)) for k in ks] + [KV_ADV]
def kv_start(st):
    st.e(f"s_lshl_b32 {S_KV}, {S_RB}, 14"); st.e(f"s_sub_u32 {S_KV}, {S_KV}, 4096"); st.e(f"s_and_b32 {S_KV}, {S_KV}, 0x3ffff")
    st.e(f"v_add_u32 v{V_KV}, {S_HB}, v{V_L16}")
def softmax_valu(S, P):
    out = []
    for i in range(16):
        out.append(f"v_exp_f32 v{S+i}, v{S+i}")
        if i >= 3 and i % 2 == 1:
            c = (i - 3) // 2
            out.append(f"v_cvt_pk_bf16_f32 v{P+c}, v{S+2*c}, v{S+2*c+1}")
    out.append(f"v_cvt_pk_bf16_f32 v{P+7}, v{S+14}, v{S+15}")
    return out
def att_phase(st, mf, valu, extra):
    extra = list(extra)
    nv = len(valu); G = len(mf)
    pos = [k * nv // G for k in range(G)]
    k = 0
    for c, v in enumerate(valu):
        while k < G and pos[k] <= c:
            st.e(mf[k]); k += 1
            if extra: emit_filler(st, extra.pop(0))
        st.e(v)
    for x in extra: emit_filler(st, x)
def rowmax(st, S, d, t):
    st.e(f"v_max3_f32 v{d}, v{S}, v{S+1}, v{S+2}")
    for i in range(3, 15, 2): st.e(f"v_max3_f32 v{d}, v{S+i}, v{S+i+1}, v{d}")
    st.e(f"v_max_f32 v{d}, v{S+15}, v{d}")
    st.e(f"v_mov_b32 v{t}, v{d}")
    st.e(f"v_permlane32_swap_b32 v{d}, v{t}")
    st.e(f"v_max_f32 v{d}, v{d}, v{t}")

def ln_load(st, batch):
    st.e(f"s_lshl_b32 s56, {S_RB}, 15"); st.e(f"s_lshl_b32 s57, {S_WR}, 10"); st.e("s_add_u32 s56, s56, s57")
    st.e(f"s_add_u32 s56, s56, {WS_ST + batch * 8 * 2048}")
    for k in range(8):
        if k in (2, 4, 6): st.e("s_add_u32 s56, s56, 4096")
        st.e(f"buffer_load_dwordx4 {vr(AT+4*k,4)}, v{V_L16}, {SRD_WS}, s56 offen offset:{2048*(k%2)}{SC}", tag=('ln', batch))
LNA = 26
def ln_accum(st, batch):
    st.wait(tag=('ln', batch))
    if batch == 0:
        st.e(f"v_sub_f32 v24, 0, v{AT}")
        for r in range(LNA, LNA + 6): st.e(f"v_mov_b32 v{r}, 0")
    for k in range(8): st.e(f"v_pk_add_f32 {vr(AT+4*k,2)}, {vr(AT+4*k,2)}, v[24:25] op_sel_hi:[1,0]")
    for k in range(8):
        st.e(f"v_pk_add_f32 {vr(LNA,2)}, {vr(LNA,2)}, {vr(AT+4*k,2)}")
        st.e(f"v_pk_fma_f32 {vr(LNA+2,2)}, {vr(AT+4*k,2)}, {vr(AT+4*k,2)}, {vr(LNA+2,2)}")
        st.e(f"v_pk_add_f32 {vr(LNA+4,2)}, {vr(LNA+4,2)}, {vr(AT+4*k+2,2)}")
def ln_final(st):
    A, B, M = LNA, LNA + 2, LNA + 4
    t = AT
    st.e(f"v_mul_f32 v{A}, {f2u(48.0)}, v{A}"); st.e(f"v_fmac_f32 v{A}, {f2u(64.0)}, v{A+1}")
    st.e(f"v_mul_f32 v{B}, {f2u(48.0)}, v{B}"); st.e(f"v_fmac_f32 v{B}, {f2u(64.0)}, v{B+1}")
    st.e(f"v_add_f32 v{M}, v{M}, v{M+1}")
    st.e(f"v_add_f32 v{M}, v{M}, v{B}")
    st.e(f"v_mul_f32 v{A+1}, {f2u(1.0/1792)}, v{A}")
    st.e(f"v_fma_f32 v{M}, -v{A}, v{A+1}, v{M}")
    st.e(f"v_mul_f32 v{M}, {f2u(1.0/1792)}, v{M}")
    st.e(f"v_max_f32 v{M}, 0, v{M}")
    st.e(f"v_add_f32 v{M}, {f2u(1e-5)}, v{M}")
    st.e(f"v_rsq_f32 v{M}, v{M}")
    st.e(f"v_sub_f32 v{A}, v24, v{A+1}")
    st.e(f"v_mul_f32 v{A}, v{A}, v{M}")
    st.e(f"v_and_b32 v{B}, 15, v1"); st.e(f"v_lshlrev_b32 v{B}, 2, v{B}")
    for i in range(4):
        st.e(f"ds_bpermute_b32 v{t+2*i}, v{B}, v{M} offset:{64*i}")
        st.e(f"ds_bpermute_b32 v{t+2*i+1}, v{B}, v{A} offset:{64*i}")
    st.e(f"v_bfe_u32 v{B}, v1, 2, 1"); st.e(f"v_lshlrev_b32 v{B}, 9, v{B}")
    st.e(f"v_bfe_u32 v{B+1}, v1, 3, 1"); st.e(f"v_lshl_or_b32 v{B}, v{B+1}, 7, v{B}")
    st.e(f"v_and_b32 v{B+1}, 3, v1"); st.e(f"v_lshl_or_b32 v{B}, v{B+1}, 5, v{B}")
    st.e(f"v_lshrrev_b32 v{B+1}, 4, v1"); st.e(f"v_lshl_or_b32 v{B}, v{B+1}, 3, v{B}")
    st.e(f"s_mul_i32 s60, {S_CB}, 458752")
    st.e(f"s_lshl_b32 s57, {S_RB}, 1"); st.e(f"s_add_u32 s57, s57, {S_WR}"); st.e("s_mul_i32 s57, s57, 14336")
    st.e("s_add_u32 s60, s60, s57")
    st.e(f"s_lshl_b32 s57, {S_WC}, 12"); st.e("s_add_u32 s60, s60, s57")
    st.e(f"s_add_u32 s60, s60, {WS_ZN}")
    st.e("s_add_u32 s61, s60, 7168")
    st.e("s_sub_u32 s62, s60, 1024"); st.e("s_sub_u32 s63, s61, 1024")
    st.e(f"s_cmp_eq_u32 {S_WC}, 1")
    st.e(f"s_cselect_b32 s62, s62, {WS_SIZE}"); st.e(f"s_cselect_b32 s63, s63, {WS_SIZE}")
    st.e("s_mov_b32 s59, 0xffff0000")
    st.wait(lgkm=0)
    k = 0
    for j in (4, 5, 6, 3):
        for i in range(4):
            u = t + 8 + 4 * (k % 4); k += 1
            z = ZP + (j * 4 + i) * 2
            for h in range(2):
                st.e(f"v_lshlrev_b32 v{u+2*h}, 16, v{z+h}")
                st.e(f"v_and_b32 v{u+2*h+1}, s59, v{z+h}")
            for h in range(2):
                st.e(f"v_pk_fma_f32 {vr(u+2*h,2)}, {vr(u+2*h,2)}, {vr(t+2*i,2)}, {vr(t+2*i,2)} op_sel:[0,0,1] op_sel_hi:[1,0,1]")
            for h in range(2):
                st.e(f"v_cvt_pk_bf16_f32 v{(z if j >= 4 else t + 24 + 2 * i) + h}, v{u+2*h}, v{u+2*h+1}")
def zn_stores():
    out = []
    for j in (4, 5, 6, 3):
        for i in range(4):
            src = ZP + (j * 4 + i) * 2 if j >= 4 else AT + 24 + 2 * i
            so = (60 if j >= 4 else 62) + i // 2
            off = (i % 2) * 256 + (j - 4) * 1024 if j >= 4 else (i % 2) * 256
            out.append((f"buffer_store_dwordx2 {vr(src,2)}, v{LNA+2}, {SRD_WS}, s{so} offen offset:{off}{SC}", 'zn'))
    return out

XST = [int(x) for x in os.environ.get('XST', '').split(',') if x]
def att_main(st, hooks, extras, first_unit):
    st.e(f"v_bfe_u32 v{AT}, v1, 4, 1"); st.e(f"v_lshlrev_b32 v{AT}, 2, v{AT}")
    st.e(f"v_and_b32 v{AT+1}, 7, v1")
    st.e(f"v_cmp_eq_u32 vcc, v{AT}, v{AT+1}")
    st.e(f"v_mov_b32 v{AT}, 0x3f803f80")
    st.e(f"v_cndmask_b32 v{SEL}, 0, v{AT}, vcc")
    for k in range(1, 4): st.e(f"v_mov_b32 v{SEL+k}, v{SEL}")
    st.wait(tag=('u', -1))
    st.e(m32(SA, uK(-1, 0), Qf(0, 0), '0')); st.e(m32(SA, uK(-1, 1), Qf(0, 1), SA))
    st.e(m32(SB, uK(-1, 0), Qf(1, 0), '0')); st.e(m32(SB, uK(-1, 1), Qf(1, 1), SB))
    rowmax(st, SA, AT, AT + 1)
    for i in range(16): st.e(f"v_sub_f32 v{CA+i}, 0, v{AT}")
    st.e(m32(SA, uK(-1, 0), Qf(0, 0), CA)); st.e(m32(SA, uK(-1, 1), Qf(0, 1), SA))
    rowmax(st, SB, AT + 2, AT + 3)
    for i in range(16): st.e(f"v_sub_f32 v{CB+i}, 0, v{AT+2}")
    nu = first_unit
    for j in range(64):
        st.mark(('chunk', 'att', RING))
        if j in XST and not os.environ.get('GST'): stamp(st, f'xa{j}')
        if j in hooks: hooks[j](st)
        if j in XST and j in hooks and not os.environ.get('GST'): stamp(st, f'xb{j}')
        ex = list(extras.get(j, []))
        ul = []
        lim = j + RING - 1
        if nu <= lim - 1 and nu < 64 and j >= KVCHK:
            ex = unit_loads(nu) + ex; nu += 1
        mf = [m32(SB, uK(j - 1, 0), Qf(1, 0), CB), m32(SB, uK(j - 1, 1), Qf(1, 1), SB)]
        if j > 0:
            f = (j == 1)
            mf += [m32(OB, uV(j - 1, 0), vr(PB, 4), '0' if f else OB), m16s(LB, PB, f), m32(OB, uV(j - 1, 1), vr(PB + 4, 4), OB), m16s(LB, PB + 4)]
        att_phase(st, mf, softmax_valu(SA, PA), ex)
        assert nu > j
        st.wait(tag=('u', j))
        mf = []
        if j < 63: mf += [m32(SA, uK(j, 0), Qf(0, 0), CA), m32(SA, uK(j, 1), Qf(0, 1), SA)]
        f = (j == 0)
        mf += [m32(OA, uV(j, 0), vr(PA, 4), '0' if f else OA), m16s(LA, PA, f), m32(OA, uV(j, 1), vr(PA + 4, 4), OA), m16s(LA, PA + 4)]
        if nu <= lim and nu < 64 and j >= KVCHK:
            ul = unit_loads(nu); nu += 1
        att_phase(st, mf, softmax_valu(SB, PB), ul)
    st.mark(('endchunks',))
    st.e(m32(OB, uV(63, 0), vr(PB, 4), OB)); st.e(m16s(LB, PB)); st.e(m32(OB, uV(63, 1), vr(PB + 4, 4), OB)); st.e(m16s(LB, PB + 4))
    stamp(st, 'att64')
    t = AT
    st.e(f"s_mul_i32 s56, {S_RB}, {88*8192}")
    st.e(f"s_lshr_b32 s57, {S_HB}, 5"); st.e("s_add_u32 s56, s56, s57")
    st.e(f"s_lshl_b32 s57, {S_WR}, 12"); st.e("s_add_u32 s56, s56, s57")
    st.e(f"s_add_u32 s56, s56, {WS_XF}")
    st.e(f"v_bfe_u32 v{t+4}, v1, 4, 1"); st.e(f"v_lshlrev_b32 v{t+4}, 10, v{t+4}")
    st.e(f"v_lshrrev_b32 v{t+5}, 5, v1"); st.e(f"v_lshl_or_b32 v{t+4}, v{t+5}, 8, v{t+4}")
    st.e(f"v_and_b32 v{t+5}, 15, v1"); st.e(f"v_lshl_or_b32 v{t+4}, v{t+5}, 4, v{t+4}")
    st.e(f"v_max_f32 v{t}, v{LA}, v{LB}")
    st.e(f"v_mul_f32 v{t+2}, 0, v{LA}"); st.e(f"v_mul_f32 v{t+3}, 0, v{LB}")
    for r in range(OA, OA + 32, 2): st.e(f"v_pk_fma_f32 {vr(t+2,2)}, {vr(r,2)}, 0, {vr(t+2,2)}")
    st.e(f"v_add_f32 v{t}, v{t}, v{t+2}")
    st.e(f"v_add_f32 v{t}, v{t}, v{t+3}")
    st.e(f"v_cmp_nge_f32 vcc, {f2u(2.0**30)}, v{t}")
    ok = st.newlabel("ATT_OK")
    st.e(f"s_cbranch_vccz {ok}")
    att_fallback(st)
    st.flush_hazards()
    st.label(ok, soft=True)
    st.e(f"v_rcp_f32 v{t}, v{LA}"); st.e(f"v_rcp_f32 v{t+2}, v{LB}")
    for q, (O, rr) in enumerate(((OA, t), (OB, t + 2))):
        for r in range(0, 16, 2): st.e(f"v_pk_mul_f32 {vr(O+r,2)}, {vr(O+r,2)}, {vr(rr,2)} op_sel_hi:[1,0]")
        P = PA + 8 * q
        for c in range(8): st.e(f"v_cvt_pk_bf16_f32 v{P+c}, v{O+2*c}, v{O+2*c+1}")
        for a in (0, 4):
            st.e(f"v_permlane32_swap_b32 v{P+a}, v{P+a+2}"); st.e(f"v_permlane32_swap_b32 v{P+a+1}, v{P+a+3}")
        for a in (0, 4):
            st.e(f"buffer_store_dwordx4 {vr(P+a,4)}, v{t+4}, {SRD_WS}, s56 offen offset:{q*2048 + a*128}{SC}", tag='o')

def att_fallback(st):
    t = AT
    MA, MB_ = t + 8, t + 9
    st.e("s_waitcnt vmcnt(0)")
    st.e(f"v_mov_b32 v{MA}, {f2u(-3.0e38)}"); st.e(f"v_mov_b32 v{MB_}, {f2u(-3.0e38)}")
    for r in list(range(OA, OA + 32)) + list(range(LA, LA + 8)): st.e(f"v_mov_b32 v{r}, 0")
    st.e(f"s_add_u32 s58, {S_HB}, {63*4096}")
    st.e(f"s_mov_b32 {S_KV}, {S_HB}")
    st.e("s_mov_b32 s59, 64")
    lp = st.newlabel("ATT_FB")
    st.flush_hazards()
    st.label(lp)
    for k in range(2):
        st.e(f"buffer_load_dwordx4 {ar(4*k,4)}, v{V_L16}, {SRD_WS}, s58 offen offset:{2048+1024*k}{SC}", count=False)
        st.e(f"buffer_load_dwordx4 {ar(8+4*k,4)}, v{V_L16}, {SRD_WS}, {S_KV} offen offset:{1024*k}{SC}", count=False)
    st.e(f"s_mov_b32 s58, {S_KV}")
    st.e(f"s_add_u32 {S_KV}, {S_KV}, 4096")
    st.e("s_waitcnt vmcnt(0)")
    for q, (S, O, P, L, M) in enumerate(((SA, OA, PA, LA, MA), (SB, OB, PB, LB, MB_))):
        st.e(m32(S, ar(0, 4), Qf(q, 0), '0')); st.e(m32(S, ar(4, 4), Qf(q, 1), S))
        rowmax(st, S, t, t + 1)
        st.e(f"v_max_f32 v{t}, v{t}, v{M}")
        st.e(f"v_sub_f32 v{t+1}, v{M}, v{t}")
        st.e(f"v_exp_f32 v{t+1}, v{t+1}")
        st.e(f"v_mov_b32 v{M}, v{t}")
        for r in range(16): st.e(f"v_mul_f32 v{O+r}, v{t+1}, v{O+r}")
        st.e(f"v_mul_f32 v{L}, v{t+1}, v{L}")
        for r in range(16): st.e(f"v_sub_f32 v{S+r}, v{S+r}, v{M}")
        for r in range(16): st.e(f"v_exp_f32 v{S+r}, v{S+r}")
        for c in range(8): st.e(f"v_cvt_pk_bf16_f32 v{P+c}, v{S+2*c}, v{S+2*c+1}")
        st.e(m32(O, ar(8, 4), vr(P, 4), O)); st.e(m16s(L, P)); st.e(m32(O, ar(12, 4), vr(P + 4, 4), O)); st.e(m16s(L, P + 4))
    st.flush_hazards()
    st.e("s_sub_u32 s59, s59, 1")
    st.e("s_cmp_lg_u32 s59, 0")
    st.e(f"s_cbranch_scc1 {lp}")

ACC = 88
def accr(n, i, base=ACC): return base + (n * 4 + i) * 4
def ldsaddr(base3, off): return f"v{base3 + (off >> 16)}", off & 0xffff
def copies(st, b):
    st.e(f"v_add_u32 v{b+1}, 0x10000, v{b}"); st.e(f"v_add_u32 v{b+2}, 0x20000, v{b}")
NXT_CAP = env('NXT_CAP', 5); CATCH = env('CATCH', 2)
def gemm(st, name, nst, NB, slotsz, dma, xread, wread, mf, MT, NT, first_stamp=None,
         grp=None, publish=None, at=None, nxt=None, rot=0, PF=1, hold=None, vbg=None, vper=24):
    at = at or {}
    SETS = PF + 1
    SSZ = 48 if PF == 1 else 32
    XF = lambda p, i: ar(p * SSZ + i * 4, 4)
    WFb = lambda p, n: p * SSZ + 16 + n * 4
    def reads(t):
        if t >= 2 * nst: return []
        s, hh, p = t // 2, t % 2, t % SETS
        slot = ((s + rot) % NB) * slotsz
        wl = [wread(slot, n, hh, WFb(p, n)) for n in range(NT)]
        return wl[0] + [xread(slot, i, hh, XF(p, i)) for i in range(MT)] + flat(wl[1:])
    def mfs(t):
        s, hh, p = t // 2, t % 2, t % SETS
        return [mf(s, hh, n, i, ar(WFb(p, n), 4), XF(p, i)) for n in range(NT) for i in range(MT)]
    q = list(st.bg); st.bg = []
    def issued(s):
        def tg(x):
            if isinstance(x, list): return any(tg(y) for y in x)
            return isinstance(x, tuple) and x[1] == ('st', name, s)
        return not any(tg(x) for x in q)
    while not issued(PF - 1): emit_filler(st, q.pop(0))
    st.wait(tag=('st', name, PF - 1))
    st.e("s_barrier")
    if first_stamp is not None: stamp(st, first_stamp)
    for t in range(PF):
        for r in reads(t): st.e(r)
    G = MT * NT
    D = ndma(dma(0))
    lg = lambda t: sum(len(reads(u)) for u in range(t + 1, t + PF))
    st.wait(lgkm=lg(0))
    def take(n, must=None):
        out = []; c = 0
        while q and (c < n or (must is not None and not issued(must))):
            x = q.pop(0); out.append(x)
            if isdma(x): c += 1
        while q and not isdma(q[0]) and 'm0' not in q[0]: out.append(q.pop(0))
        return out
    vbg = list(vbg or [])
    def addv(gaps):
        n = min(vper, len(vbg))
        if n == 0: return gaps
        idx = sorted(sorted(range(len(gaps)), key=lambda g: (len(gaps[g]), g))[:n])
        for g in idx: gaps[g] = gaps[g] + [vbg.pop(0)]
        return gaps
    nq = NB
    for s in range(nst):
        st.mark(('chunk', grp or name, NB))
        if os.environ.get('GST') == name and s in XST: stamp(st, f'x{s}')
        if (s, 'A') in at: at[(s, 'A')](st)
        extra = CATCH if ndma(q) > D // 2 else 0
        cap = D // 2 + extra if s + NB <= nst else NXT_CAP
        interleave(st, mfs(2 * s), addv(merge(reads(2 * s + PF), take(cap, s + PF), G)))
        pub = publish and s == publish[2]
        tags = ([('st', name, s + PF)] if s + PF < nst else []) + (publish[1] if pub else [])
        st.wait(tag=tags or None, lgkm=lg(2 * s + 1))
        st.e("s_barrier")
        if pub: do_publish(st, publish[0])
        if (s, 'B') in at: at[(s, 'B')](st)
        extra = CATCH if ndma(q) > 0 else 0
        while nq <= s + NB and nq < nst and not (hold and nq >= hold[0] and s < hold[1]):
            q += dma(nq); nq += 1
        if nxt and s in nxt:
            assert s + NB >= nst
            it = nxt[s]()
            if it and not isdma(it[0]) and 'm0' not in it[0]:
                assert ndma(q) == 0, "next phase's address registers would clobber pending DMA"
                while q: emit_filler(st, q.pop(0))
                while not isdma(it[0]) and 'm0' not in it[0]: emit_filler(st, it.pop(0))
            q += it
        cap = (D + 1) // 2 + extra if s + NB < nst else NXT_CAP
        interleave(st, mfs(2 * s + 1), addv(merge(reads(2 * s + 1 + PF), take(cap), G)))
        if s + 1 < nst: st.wait(lgkm=lg(2 * s + 2))
    st.mark(('endchunks',))
    assert not vbg
    st.bg = q

P3_SLOT = 30720; P3_NB = 5
V_B = 248; V_G = 8; UO = 152; TMP = 184
P3X = env('P3X', 2)
def p3_x(s, n=4):
    tag = ('st', 'p3', s)
    return [f"s_add_u32 m0, {S_MX}, {(s % P3_NB) * P3_SLOT}"] + \
        [(f"buffer_load_dwordx4 v{V_XD+q}, {SRD_WSP}, {S_SOX} offen offset:{1024*q} lds", tag) for q in range(n)] + \
        [f"s_add_u32 {S_SOX}, {S_SOX}, {0 if NOINC else 128}"] + ([f"s_and_b32 {S_SOX}, {S_SOX}, 4095"] if ROT3 else [])
def p3_wadv(so):
    return [f"s_add_u32 {so}, {so}, {0 if NOINC else 14336}"] + ([f"s_cmp_eq_u32 {so}, 458752\ns_cselect_b32 {so}, 0, {so}"] if ROT3 else [])
def p3_w_pro(s):
    tag = ('st', 'p3', s)
    b = [f"s_add_u32 m0, {S_MW}, {(s % P3_NB) * P3_SLOT + 16384}"]
    b += [(f"buffer_load_dwordx4 v{V_WD}, {SRD_WS}, {S_SOW} offen offset:{1024*j}{SC} lds", tag) for j in range(3)]
    b.append(["s_mov_b32 exec_hi, 0", (f"buffer_load_dwordx4 v{V_WD}, {SRD_WS}, {S_SOW} offen offset:3072{SC} lds", tag), "s_mov_b32 exec_hi, -1"])
    return b + p3_wadv(S_SOW)
def p3_dma_wc1(s):
    slot = (s % P3_NB) * P3_SLOT
    tag = ('st', 'p3', s)
    b = p3_x(s)
    if P3X < 4:
        k = 5
        b[k:k] = [f"s_add_u32 m0, s68, {slot}"] + [(f"buffer_load_dwordx4 v{V_WD+2+q}, {SRD_WSP}, {S_SOX} offen offset:{1024*q} lds", tag) for q in range(P3X, 4)]
    for h in range(2):
        b.append(f"s_add_u32 m0, {S_MW}, {slot + 16384 + 4096 * h}")
        b += [(f"buffer_load_dwordx4 v{V_WD+h}, {SRD_WS}, {S_SOW} offen offset:{1024*q}{SC} lds", tag) for q in range(4 - h)]
    return b + p3_wadv(S_SOW)
def p3_setup_w(st):
    st.e(f"s_mul_i32 {S_MW}, {S_WAVE}, 3584")
    st.e(f"s_mul_i32 s56, {S_CB}, 458752"); st.e(f"s_add_u32 s56, s56, {WS_ZN}")
    st.e(f"v_lshlrev_b32 v{V_WD}, 4, v1"); st.e(f"v_add_u32 v{V_WD}, s56, v{V_WD}")
    st.e(f"v_add_u32 v{V_WD}, {S_MW}, v{V_WD}")
    st.e(f"s_lshl_b32 s56, {S_WC}, 12")
    st.e(f"v_lshlrev_b32 v{V_WR+3}, 3, v1"); st.e(f"v_add_u32 v{V_WR+3}, s56, v{V_WR+3}")
    copies(st, V_WR + 3)
    st.e(f"s_mul_i32 {S_SOW}, {S_OFF}, {2 * 14336 * ROT3}")
    st.e(f"s_lshl_b32 s56, {S_RB}, 8"); st.e(f"s_lshl_b32 s57, {S_WR}, 7"); st.e("s_add_u32 s56, s56, s57")
    st.e(f"v_and_b32 v{V_T}, 15, v1"); st.e(f"v_lshlrev_b32 v{V_T}, 1, v{V_T}")
    for i in range(4): st.e(f"buffer_load_ushort v{V_B+i}, v{V_T}, {SRD_BSP}, s56 offen offset:{32*i}", tag='bsp')
def xread_natural(slot, i, hh, dst):
    r, imm = ldsaddr(V_XR + 3 * hh, slot + i * 2048)
    return f"ds_read_b128 {dst}, {r} offset:{imm}"
def p3_wread(slot, n, hh, db):
    out = []
    for sec in range(2):
        r, imm = ldsaddr(V_WR + 3, slot + 16384 + hh * 7168 + n * 1024 + sec * 512)
        out.append(f"ds_read_b64_tr_b16 {ar(db + 2*sec, 2)}, {r} offset:{imm}")
    return out
def p3_mf(s, hh, n, i, wf, xf):
    a = vr(accr(n, i), 4)
    return f"v_mfma_f32_16x16x32_bf16 {a}, {wf}, {xf}, {'0' if (s == 0 and hh == 0) else a}"
def p3_epilogue(st, NT):
    T = V_T
    st.wait(tag='bsp')
    for i in range(4): st.e(f"v_lshlrev_b32 v{V_B+i}, 16, v{V_B+i}")
    st.e(f"v_bfe_u32 v{T}, v1, 4, 1"); st.e(f"v_lshlrev_b32 v{T}, 10, v{T}")
    st.e(f"v_lshrrev_b32 v{T+1}, 5, v1"); st.e(f"v_lshl_or_b32 v{T}, v{T+1}, 8, v{T}")
    st.e(f"v_and_b32 v{T+1}, 15, v1"); st.e(f"v_lshl_or_b32 v{T}, v{T+1}, 4, v{T}")
    st.e(f"s_mul_i32 s61, {S_RB}, {88*8192}")
    st.e(f"s_lshl_b32 s57, {S_WR}, 12"); st.e("s_add_u32 s61, s61, s57")
    st.e(f"s_add_u32 s61, s61, {WS_XF + 32*8192}")
    st.e(f"s_mul_i32 s60, {S_CB}, 7")
    if NT == 3: st.e("s_add_u32 s60, s60, 4")
    for n in range(4):
        if n >= NT:
            st.e(f"s_mov_b32 s{56+n}, {WS_SIZE}")
            continue
        st.e(f"s_add_u32 s{56+n}, s60, {n}")
        st.e(f"s_lshr_b32 s62, s{56+n}, 1"); st.e("s_lshl_b32 s62, s62, 13")
        st.e(f"s_and_b32 s{56+n}, s{56+n}, 1"); st.e(f"s_lshl_b32 s{56+n}, s{56+n}, 9")
        st.e(f"s_add_u32 s{56+n}, s{56+n}, s62"); st.e(f"s_add_u32 s{56+n}, s{56+n}, s61")
    st.e("s_mov_b32 s60, 0xffff0000")
    k = 0
    for n in range(NT):
        for ip in (0, 2):
            u = TMP + 8 * (k % 2); o = UO + 4 * k; k += 1
            for d in range(2):
                i = ip + d; a = accr(n, i); z = ZP + (n * 4 + i) * 2
                for h in range(2):
                    st.e(f"v_lshlrev_b32 v{u+4*d+2*h}, 16, v{z+h}")
                    st.e(f"v_and_b32 v{u+4*d+2*h+1}, s60, v{z+h}")
                bp = V_B + (i // 2) * 2
                sel = "op_sel_hi:[1,0]" if i % 2 == 0 else "op_sel:[0,1] op_sel_hi:[1,1]"
                for h in range(2): st.e(f"v_pk_add_f32 {vr(a+2*h,2)}, {vr(a+2*h,2)}, {vr(bp,2)} {sel}")
                for h in range(2): st.e(f"v_pk_mul_f32 {vr(a+2*h,2)}, {vr(a+2*h,2)}, {vr(u+4*d+2*h,2)}")
                for h in range(2): st.e(f"v_cvt_pk_bf16_f32 v{o+2*d+h}, v{a+2*h}, v{a+2*h+1}")
            st.e(f"v_permlane16_swap_b32 v{o}, v{o+2}"); st.e(f"v_permlane16_swap_b32 v{o+1}, v{o+3}")
            if UEARLY: st.e(u_store(k - 1)[0], tag='u', count=False)
    emit_all(st, st.bg); st.bg = []
UEARLY = env('UEARLY', 1)
def u_store(k): return (f"buffer_store_dwordx4 {vr(UO+4*k,4)}, v{V_T}, {SRD_WS}, s{56+k//2} offen offset:{(k%2)*2048}{SC}", 'u')
def p3_all(st, **kw):
    l1 = st.newlabel("P3_WC1"); le = st.newlabel("P3_END")
    assert not st.bg
    st.e(f"s_cmp_eq_u32 {S_WC}, 1")
    st.e(f"s_cbranch_scc1 {l1}")
    vm0 = list(st.vm); res = []
    for NT in (4, 3):
        st.vm = list(vm0)
        if NT == 4:
            dm = lambda s: p3_x(s, P3X)
        else:
            st.label(l1)
            st.e(f"s_mul_i32 s56, {S_WR}, 7168")
            st.e(f"v_subrev_u32 v{V_WD}, {S_MW}, v{V_WD}"); st.e(f"v_add_u32 v{V_WD}, s56, v{V_WD}")
            st.e(f"v_add_u32 v{V_WD+1}, 4096, v{V_WD}")
            st.e(f"s_mov_b32 {S_MW}, s56")
            st.e(f"s_sub_u32 s68, {S_MX}, 4096")
            for q in range(P3X, 4): st.e(f"v_subrev_u32 v{V_WD+2+q}, {32*4096}, v{V_XD+q}")
            dm = p3_dma_wc1
        gemm(st, 'p3', 32, P3_NB, P3_SLOT, dm, xread_natural, p3_wread, p3_mf, 4, NT, grp=f"p3_{NT}", **kw)
        st.bg_every = 10 if NT == 4 else 8; st._bgc = 0
        p3_epilogue(st, NT)
        res.append(list(st.vm))
        if NT == 4:
            st.flush_hazards(); st.e(f"s_branch {le}")
    assert res[0] == res[1]
    if UEARLY: st.vm_mark('u')
    st.flush_hazards()
    st.label(le)

P4_SLOT = 24576; P4_NB = 6; P4_ROT = 3
XROT = env('XROT', 1)
def p4_setup_s(st):
    st.e(f"v_lshlrev_b32 v{V_XD}, 4, v1")
    st.e(f"s_mul_i32 s67, {S_RB}, {88*8192}")
    st.e(f"s_add_u32 s67, s67, {S_MX}"); st.e(f"s_add_u32 s67, s67, {WS_XF}")
    st.e(f"s_add_u32 s68, s67, {16*16384}")
    st.e(f"s_lshl_b32 {S_MW}, {S_WAVE}, 11")
    st.e(f"s_and_b32 {S_SOW}, {S_OFF}, {max(ROT4 - 1, 0)}")
    st.e(f"s_mov_b32 s66, {S_SOW}")
    st.e(f"s_lshl_b32 {S_SOX}, {S_SOW}, 14"); st.e(f"s_add_u32 {S_SOX}, {S_SOX}, s67")
    st.e(f"s_lshl_b32 {S_SOW}, {S_SOW}, 17")
def p4_dma(s):
    slot = ((s + P4_ROT) % P4_NB) * P4_SLOT
    tag = ('st', 'p4', s)
    b = [f"s_add_u32 m0, {S_MX}, {slot}"]
    b += [(f"buffer_load_dwordx4 v{V_XD}, {SRD_WS}, {S_SOX} offen offset:{1024*q}{SC} lds", tag) for q in range(4)]
    if s == 15:
        b.append(f"s_mov_b32 s67, s68\ns_add_u32 s68, s68, {28*16384}\ns_lshl_b32 {S_SOX}, s66, 14\ns_add_u32 {S_SOX}, {S_SOX}, s67")
    else:
        b.append(f"s_add_u32 {S_SOX}, {S_SOX}, {0 if NOINC else 16384}")
        b.append(f"s_cmp_eq_u32 {S_SOX}, s68\ns_cselect_b32 {S_SOX}, s67, {S_SOX}")
    b.append(f"s_add_u32 m0, {S_MW}, {slot + 16384}")
    b += [(f"buffer_load_dwordx4 v{V_WD+j}, {SRD_WO if s < 16 else SRD_WOUT}, {S_SOW} offen offset:{1024*j} lds", tag) for j in range(2)]
    if s == 15:
        b.append(f"s_lshl_b32 {S_SOW}, s66, 17")
    else:
        b.append(f"s_add_u32 {S_SOW}, {S_SOW}, {0 if NOINC else 64*2048}")
        b.append(f"s_cmp_eq_u32 {S_SOW}, {(16 if s < 16 else 28) * 64 * 2048}\ns_cselect_b32 {S_SOW}, 0, {S_SOW}")
    return b
def p4_xread(slot, i, hh, dst):
    r, imm = ldsaddr(V_XR, slot + hh * 8192 + i * 1024)
    return f"ds_read_b128 {dst}, {r} offset:{imm}"
def p4_wread(slot, n, hh, db):
    out = []
    for sec in range(2):
        r, imm = ldsaddr(V_WR + 3 * n, slot + 16384 + hh * 4096 + sec * 512)
        out.append(f"ds_read_b64_tr_b16 {ar(db + 2*sec, 2)}, {r} offset:{imm}")
    return out
def p4_mf(s, hh, n, i, wf, xf):
    a = vr(accr(n, i, ACC if s < 16 else ACC + 32), 4)
    return f"v_mfma_f32_16x16x32_bf16 {a}, {wf}, {xf}, {'0' if (s in (0, 16) and hh == 0) else a}"
def p4_gate_load(st):
    st.e(f"s_lshl_b32 s56, {S_RB}, 9"); st.e(f"s_lshl_b32 s57, {S_WR}, 8"); st.e("s_add_u32 s56, s56, s57")
    st.e(f"s_add_u32 s56, s56, {WS_G}")
    st.e(f"v_and_b32 v{V_T+6}, 15, v1"); st.e(f"v_lshlrev_b32 v{V_T+6}, 2, v{V_T+6}")
    for i in range(4): st.e(f"buffer_load_dword v{V_G+i}, v{V_T+6}, {SRD_WS}, s56 offen offset:{64*i}{SC}", tag='gld')
    T = V_T
    st.e(f"v_and_b32 v{T}, 15, v1"); st.e(f"v_lshlrev_b32 v{T}, 11, v{T}")
    st.e(f"v_bfe_u32 v{T+1}, v1, 4, 1"); st.e(f"v_lshl_or_b32 v{T}, v{T+1}, 5, v{T}")
    st.e(f"v_lshrrev_b32 v{T+1}, 5, v1"); st.e(f"v_lshl_or_b32 v{T}, v{T+1}, 4, v{T}")
    st.e(f"s_lshl_b32 s56, {S_RB}, 18"); st.e(f"s_lshl_b32 s57, {S_WR}, 17"); st.e("s_add_u32 s56, s56, s57")
    st.e(f"s_lshl_b32 s57, {S_CB}, 7"); st.e("s_add_u32 s56, s56, s57")
    st.e(f"s_lshl_b32 s57, {S_WC}, 6"); st.e("s_add_u32 s56, s56, s57")
def p4_epilogue(st):
    st.wait(tag='gld')
    for i in range(4):
        u = TMP + 4 * i
        bp = V_G + (i // 2) * 2
        sel = "op_sel_hi:[1,0,1]" if i % 2 == 0 else "op_sel:[0,1,0] op_sel_hi:[1,1,1]"
        for n in range(2):
            a = accr(n, i); b = a + 32
            for h in range(2): st.e(f"v_pk_add_f32 {vr(a+2*h,2)}, {vr(a+2*h,2)}, {vr(b+2*h,2)} neg_lo:[0,1] neg_hi:[0,1]")
            for h in range(2): st.e(f"v_pk_fma_f32 {vr(a+2*h,2)}, {vr(a+2*h,2)}, {vr(bp,2)}, {vr(b+2*h,2)} {sel}")
            for h in range(2): st.e(f"v_cvt_pk_bf16_f32 v{u+2*n+h}, v{a+2*h}, v{a+2*h+1}")
        st.e(f"v_permlane16_swap_b32 v{u}, v{u+2}"); st.e(f"v_permlane16_swap_b32 v{u+1}, v{u+3}")
        st.e(f"buffer_store_dwordx4 {vr(u,4)}, v{V_T}, {SRD_OUT}, s56 offen", tag='out')
        if i < 3: st.e("s_add_u32 s56, s56, 32768")

def stash(st, vregs, a0):
    for k, v in enumerate(vregs): st.e(f"v_accvgpr_write_b32 a{a0+k}, v{v}")
def unstash(vregs, a0): return [f"v_accvgpr_read_b32 v{v}, a{a0+k}" for k, v in enumerate(vregs)]
KVCHK = env('KVCHK', 0); UCHK = env('UCHK', 10); UPUB = env('UPUB', 4); LN0 = env('LN0', 17)

def chk_retired(st, tag):
    assert st.vmcnt_for(tag)[0] is None, tag
def precompute(st):
    R = 170; T = 182
    stash(st, [V_XR], A_XR); stash(st, [V_WR], A_4WR)
    p1b_regs(st, R, T); stash(st, range(R, R + 10), A_1BWD)
    flags_setup(st)
    xd_natural(st, 4096, R, T); stash(st, range(R, R + 4), A_3XD)
    wd128_lane(st, R, T, 2048)
    st.e(f"s_lshl_b32 s56, {S_WAVE}, 15"); st.e(f"s_lshl_b32 s57, {S_CB}, 7"); st.e("s_add_u32 s56, s56, s57")
    st.e(f"v_xor_b32 v{R+1}, 64, v{R}")
    st.e(f"v_add_u32 v{R}, s56, v{R}")
    st.e(f"s_add_u32 s56, s56, {8*2048 - 1024}")
    st.e(f"v_add_u32 v{R+1}, s56, v{R+1}")
    stash(st, [R, R + 1], A_4WD)
    gate_finish(st)
def fused(st):
    stamp(st, 'setup')
    gate_issue(st)
    st.bg = flat(p1a_dma(k) for k in range(1, 4)); st.bg_every = BG0
    p1a_setup_reads(st)
    precompute(st)
    stamp(st, 'pre')
    win = lambda p: (lambda st: emit_all(st, sweep_items(SRD_WIN, 1024 * 3584 * 2, p, 4, V_S16, V_TD)))
    at = {}
    def add(key, f):
        g = at.get(key)
        at[key] = (lambda st: (g(st), f(st))) if g else f
    for e in range(SW0, 8 if SW1A else 0): add((2 * (e - SW0), 'B'), lambda st, e=e: sweep_1a(st, e))
    if SWW:
        for s_ in range(0, 12): add((s_, 'B'), lambda st, s_=s_: st.wait(tag=('sw', min(7, (s_ + 4 + ROT - 1) // 2))))
    for p, key in enumerate([(7, 'A'), (9, 'A'), (11, 'A'), (13, 'A')]): add(key, win(p))
    add((12, 'A'), lambda st: stamp(st, '1a_s12'))
    pre1b = lambda: unstash(range(V_WD, V_WD + 7), A_1BWD) + p1_soff(7168, 7168)
    gemm(st, 'p1a', 16, P1A_NB, P1A_SLOT, p1a_dma, xread_natural, p1a_wread, p1a_mf, 4, 6, first_stamp='1a_first', at=at,
         nxt={13: lambda: pre1b() + p1b_dma(0), 14: lambda: p1b_dma(1), 15: lambda: p1b_dma(2)})
    stamp(st, '1a_main')
    tag_setup(st)
    st.bg_every = EPIBG
    p1_epi_qkv(st)
    for t in unstash([V_WR, V_WR + 3, V_W3], A_1BWR): st.e(t)
    copies(st, V_WR); copies(st, V_WR + 3); copies(st, V_W3)
    stamp(st, '1a_epi')
    pre2 = lambda: [f"v_lshlrev_b32 v{V_L16}, 4, v1"] + rec(kv_start) + flat(unit_loads(u) for u in range(-1, RING - 1))
    gemm(st, 'p1b', 16, P1B_NB, P1B_SLOT, p1b_dma, xread_natural, p1b_wread, p1b_mf, 4, 7, first_stamp='y_' + '1b_first',
         publish=(1, ['kv', 'gst'], 2), nxt={15: pre2},
         at={(4, 'A'): lambda st: stamp(st, 'y_' + '1b_s4'),
             (13, 'A'): lambda st: poll_issue(st, 'cb', 'pkv'), (15, 'A'): lambda st: poll_check(st, 'cb', 'pkv', 1)})
    stamp(st, '1b_main')
    st.bg_every = 16
    p1_epi_z(st, {})
    emit_all(st, st.bg); st.bg = []
    stamp(st, '1b_epi')
    VS = 21
    def sweep2_setup(st):
        st.e(f"v_and_b32 v{VS}, 15, v1"); st.e(f"v_lshlrev_b32 v{VS}, 7, v{VS}")
        for t in unstash(range(V_XD, V_XD + 4), A_3XD): st.e(t)
        st.e(f"s_mul_i32 {S_SOX}, {S_OFF}, {256 * ROT3}")
    hooks = {
        1: lambda st: (stamp(st, 'att1'), sweep2_setup(st)),
        5: lambda st: drain_publish(st, 2, 'stat'),
        LN0 - 3: lambda st: poll_issue(st, 'rb', 'pst'),
        LN0: lambda st: (poll_check(st, 'rb', 'pst', 2), ln_load(st, 0)),
        LN0 + 3: lambda st: (stamp(st, 'att20'), ln_accum(st, 0), ln_load(st, 1)),
        LN0 + 6: lambda st: (ln_accum(st, 1), ln_final(st)),
        LN0 + 18: lambda st: drain_publish(st, 3, 'zn'),
        40: lambda st: stamp(st, 'y_' + 'att40'),
        49: lambda st: poll_issue(st, 'cb', 'pzn'),
        52: lambda st: (poll_check(st, 'cb', 'pzn', 3), p3_setup_w(st)),
    }
    extras = {}
    for p in range(4): extras[4 + 4 * p] = [sweep_items(SRD_WSP, 2048 * 2048 * 2, p, 4, VS, 19)]
    zs = zn_stores()
    for k in range(8): extras[LN0 + 7 + k] = zs[2 * k:2 * k + 2]
    for p in range(2): extras[LN0 + 2 + 14 * p] = [sweep_items(SRD_WOUT, 1792 * 1024 * 2, p, 2, VS, 19)]
    extras[37] = [sweep_items(SRD_WO, 1024 * 1024 * 2, 0, 1, VS, 19)]
    for s_ in range(P3_NB):
        d = p3_x(s_)
        extras[39 + 2 * s_] = [d[0:2], d[2]]; extras[40 + 2 * s_] = [d[3], d[4:]]
        d = p3_w_pro(s_)
        extras[53 + 2 * s_] = [d[0:2], d[2]]; extras[54 + 2 * s_] = [d[3], d[4:]]
    if env('ATT_TEST', 0):
        hooks = {8: lambda st: stamp(st, 'att8'), 49: lambda st: stamp(st, 'att49')}; extras = {}
        if env('ATT_TEST', 0) == 2:
            for j in range(9, 49): hooks[j] = (lambda st, j=j: st.e(f"; tile {j}"))
        att_main(st, hooks, extras, RING - 1)
        return
    att_main(st, hooks, extras, RING - 1)
    for t in unstash([V_XR], A_XR): st.e(t)
    st.e(f"v_xor_b32 v{V_XR+3}, 64, v{V_XR}")
    copies(st, V_XR); copies(st, V_XR + 3)
    stamp(st, 'att_epi')
    pre4 = lambda: unstash([V_WD, V_WD + 1], A_4WD) + rec(p4_setup_s)
    p3_all(st, publish=(4, ['o'], 3), first_stamp='y_' + '3_first',
           nxt={28: lambda: pre4() + p4_dma(0) + p4_dma(1), 29: lambda: p4_dma(2), 30: lambda: p4_dma(3), 31: lambda: p4_dma(4) + p4_dma(5)},
           at={(6, 'A'): lambda st: stamp(st, '3_s6'), (26, 'A'): lambda st: stamp(st, '3_s26'),
               (26, 'B'): lambda st: poll_issue(st, 'rb', 'po'), (28, 'A'): lambda st: poll_check(st, 'rb', 'po', 4)})
    stamp(st, '3_epi')
    for t in unstash([V_WR], A_4WR): st.e(t)
    st.e(f"v_xor_b32 v{V_WR+3}, 32, v{V_WR}")
    copies(st, V_WR); copies(st, V_WR + 3)
    st.e(f"s_lshl_b32 s60, {S_WR}, 12")
    st.e(f"v_add_u32 v{V_XR}, s60, v{V_XD}")
    copies(st, V_XR)
    at = {(UCHK - 2, 'B'): lambda st: poll_issue(st, 'rb', 'pu'), (10, 'A'): lambda st: stamp(st, '4_s10'),
          (UCHK, 'B'): lambda st: poll_check(st, 'rb', 'pu', 5), (17, 'A'): lambda st: stamp(st, '4_s17'),
          (36, 'A'): p4_gate_load}
    if not UEARLY:
        emit_all(st, [u_store(0), u_store(1)])
        for k in range(2, 8): at[((k - 2) // 2, 'AB'[k % 2])] = (lambda st, k=k: emit_filler(st, u_store(k)))
    gemm(st, 'p4', 44, P4_NB, P4_SLOT, p4_dma, p4_xread, p4_wread, p4_mf, 4, 2, rot=P4_ROT, PF=2,
         publish=(5, ['u'], UPUB), first_stamp='4_first', at=at, hold=(16, UCHK))
    p4_epilogue(st)
    gen_advance(st)
SWD = env('SWD', 2); KVPUB = env('KVPUB', 7)

def build():
    kname = NAME + "_kernel"
    ref = open(os.path.join(os.path.dirname(os.path.abspath(__file__)), "..", "cdna_kernels", NAME + ".s.ref")).read()
    head = [l for l in ref.splitlines() if l.startswith(";") and "@launch" not in l]
    out = "\n".join(head) + "\n"
    if env('LIST', 0): out += f"; @launch kernel={kname} grid=(256,1,1) block=(256,1,1) lds=163840\n"
    else: out += "; @launch grid=(256,1,1) block=(256,1,1) lds=163840\n"
    out += '.amdgcn_target "amdgcn-amd-amdhsa--gfx950"\n.text\n'
    st = Stream()
    st.endlabel = "KERNEL_END"
    st.stamp_names = ['start']
    if STAMPS: st.e("s_memtime s[98:99]" if CYC else "s_memrealtime s[98:99]")
    setup(st)
    if STAMPS: st.e("s_mov_b32 s70, s98")
    fused(st)
    write_stamps(st)
    st.label(st.endlabel)
    st.e("s_endpgm")
    sys.stderr.write(f"{len(st.ins)} instrs (unrolled), nops added {st.nops_added}\n")
    out += f".globl {kname}\n.p2align 8\n.type {kname},@function\n{kname}:\n" + st.text()
    out += f"\n.set CODE_BYTES, ({st.endlabel} - {kname} - 512) & 0xffffff00\n"
    out += f""".section .rodata,"a"
.p2align 6
.amdhsa_kernel {kname}
  .amdhsa_next_free_vgpr 512
  .amdhsa_next_free_sgpr 102
  .amdhsa_accum_offset 256
  .amdhsa_group_segment_fixed_size 0
  .amdhsa_kernarg_size 96
  .amdhsa_user_sgpr_count 2
  .amdhsa_user_sgpr_kernarg_segment_ptr 1
  .amdhsa_system_sgpr_workgroup_id_x 1
  .amdhsa_float_denorm_mode_32 3
.end_amdhsa_kernel
"""
    return out

if __name__ == "__main__":
    open(sys.argv[1], "w").write(build())
```

```python
import sys, os, math, struct
sys.path.insert(0, os.path.dirname(os.path.abspath(__file__)))
from asmlib import *

NAME = "gated_mix__mha_block__mixer_gmlp__prompt"
MB = 1 << 20
WS_KV = 0
WS_ZN = 16 * MB
WS_XF = 24 * MB
WS_ST = 36 * MB
WS_G = 37 * MB
WS_TS = 38 * MB
WS_SIZE = 40 * MB
env = lambda k, d: int(os.environ.get(k, d))
STAMPS = env('STAMPS', 0); CYC = env('CYC', 0); NOINC = env('NOINC', 0); NOTOUCH = env('NOTOUCH', 0)
ROT = env('ROT', 2); ROT3 = 0; ROT4 = env('ROT4', 4)
SC = ' sc1'

def f2u(x): return struct.unpack('<I', struct.pack('<f', x))[0]
def vr(b, n): return f"v[{b}:{b+n-1}]"
def ar(b, n): return f"a[{b}:{b+n-1}]"

S_WAVE, S_WR, S_WC, S_RB, S_CB = 's3', 's4', 's5', 's6', 's7'
SRD_X, SRD_WQKV, SRD_WIN, SRD_WSP, SRD_WO, SRD_WOUT, SRD_WS, SRD_OUT, SRD_BSP, SRD_GATE, SRD_DBG = [f"s[{8+4*i}:{11+4*i}]" for i in range(11)]
S_SOX, S_SOW, S_MX, S_MW = 's52', 's53', 's54', 's55'
S_KV, S_HB, S_OFF, S_G = 's64', 's65', 's69', 's100'

def isdma(d): return not (isinstance(d, str) and d.startswith(("s_", "v_")))
def ndma(items): return sum(1 for x in items if isdma(x))
def emit_all(st, items):
    for x in items: emit_filler(st, x)
def flat(items):
    out = []
    for s_ in items: out += s_
    return out
class Rec:
    def __init__(self): self.l = []
    def e(self, text, tag=None, count=True): self.l.append((text, tag) if tag is not None else text)
def rec(fn, *a, main=None):
    r = Rec(); r.main = main; fn(r, *a); return r.l

NSTAMP = 21
def stamp(st, name):
    if not STAMPS: return
    sel = os.environ.get('STAMPSET')
    if sel and not (name.startswith(tuple(sel.split(','))) or name == 'end'): return
    if not sel and name.startswith(('x', 'y')): return
    names = st.stamp_names
    if name not in names: names.append(name)
    idx = names.index(name)
    assert idx < NSTAMP
    st.nobg(True)
    st.e("s_memtime s[96:97]" if CYC else "s_memrealtime s[96:97]")
    st.e("s_waitcnt lgkmcnt(0)")
    st.e(f"s_mov_b32 s{70+idx}, s96")
    st.nobg(False)
def write_stamps(st):
    if not STAMPS: return
    st.e("s_waitcnt vmcnt(0)")
    stamp(st, 'end')
    st.e(f"s_lshl_b32 s56, {S_G}, 7")
    st.e(f"s_add_u32 s56, s56, {WS_TS}")
    st.e("v_mov_b32 v2, 0")
    for i in range(len(st.stamp_names)):
        st.e(f"v_mov_b32 v3, s{70+i}")
        st.e(f"buffer_store_dword v3, v2, {SRD_WS}, s56 offen offset:{4*i}")
    open(sys.argv[1] + ".names", "w").write(",".join(st.stamp_names) + "\n")

def merge(reads, dm, G):
    gaps = [[] for _ in range(G)]
    nd = ndma(dm)
    pos = [min(G - 1, (2 * k + 1) * G // (2 * nd)) for k in range(nd)] if nd else []
    k = 0; last = 0
    dg = set(pos)
    post = [[] for _ in range(G)]
    for d in dm:
        if isdma(d):
            post[pos[k]].append(d); last = pos[k]; k += 1
        elif 'm0' in d:
            g = max(pos[k] - 1, last) if k < nd else G - 1
            post[g].append(d); last = g
        else:
            g = min(last + 1, G - 1) if (k < nd and last + 1 < pos[k]) or k >= nd else last
            post[g].append(d); last = g
    free = [g for g in range(G) if g not in dg]
    R = len(reads)
    if R <= len(free):
        for r, g in zip(reads, free): gaps[g].append(r)
    else:
        for j, r in enumerate(reads): gaps[j * G // R].append(r)
    return [gaps[g] + post[g] for g in range(G)]

def setup(st):
    st.e("s_cmp_ge_u32 s2, 256")
    st.e("s_cbranch_scc1 " + st.endlabel)
    st.e("s_load_dwordx16 s[64:79], s[0:1], 0")
    st.e("s_load_dwordx8 s[80:87], s[0:1], 64")
    st.e("v_lshrrev_b32 v2, 6, v0")
    st.e("v_and_b32 v1, 63, v0")
    st.e(f"v_readfirstlane_b32 {S_WAVE}, v2")
    st.e("s_and_b32 s56, s2, 1"); st.e("s_lshl_b32 s56, s56, 3")
    st.e("s_bfe_u32 s57, s2, 0x30003")
    st.e(f"s_or_b32 {S_RB}, s56, s57")
    st.e("s_bfe_u32 s56, s2, 0x20001"); st.e("s_lshl_b32 s56, s56, 2")
    st.e("s_lshr_b32 s58, s2, 6")
    st.e(f"s_or_b32 {S_CB}, s56, s58")
    st.e("s_add_u32 s101, s57, s58")
    st.e(f"s_lshr_b32 {S_WR}, {S_WAVE}, 1")
    st.e(f"s_and_b32 {S_WC}, {S_WAVE}, 1")
    st.e(f"s_lshl_b32 {S_G}, s2, 2"); st.e(f"s_add_u32 {S_G}, {S_G}, {S_WAVE}")
    st.e(f"s_lshl_b32 {S_MX}, {S_WAVE}, 12")
    sweep_setup(st)
    st.e("s_waitcnt lgkmcnt(0)")
    def srd(base, ptr, size):
        st.e(f"s_mov_b32 s{base}, s{ptr}")
        st.e(f"s_and_b32 s{base+1}, s{ptr+1}, 0xffff")
        st.e(f"s_mov_b32 s{base+2}, {size}")
        st.e(f"s_mov_b32 s{base+3}, 0x20000")
    srd(8, 64, 2048 * 1024 * 2)
    srd(12, 66, 1024 * 3072 * 2)
    st.e("s_mov_b32 s63, s69")
    st.e(f"s_mov_b32 {S_OFF}, s101")
    p1a_setup(st)
    emit_all(st, p1a_dma(0))
    for e in range(SW0): sweep_1a(st, e)
    touch_code(st)
    srd(16, 72, 1024 * 3584 * 2)
    srd(20, 74, 2048 * 2048 * 2)
    st.e("s_mov_b32 s24, s68"); st.e("s_and_b32 s25, s63, 0xffff"); st.e(f"s_mov_b32 s26, {1024*1024*2}"); st.e("s_mov_b32 s27, 0x20000")
    srd(28, 78, 1792 * 1024 * 2)
    srd(32, 86, WS_SIZE)
    srd(36, 82, 2048 * 1024 * 2)
    srd(40, 76, 4096)
    srd(44, 80, 2048)
    gen_load(st)
SWFIRST = env('SWFIRST', 0); VPER = env('VPER', 16); PRE1 = env('PRE1', 1); GLATE = env('GLATE', 1)

SW0 = env('SW0', 3); SWW = env('SWW', 0); BG0 = env('BG0', 12); EPIBG = env('EPIBG', 1000); SW1A = env('SW1A', 1)
V_S16, V_TX, V_TD = 240, 241, 242
def sweep_setup(st):
    st.e(f"v_and_b32 v{V_S16}, 15, v1"); st.e(f"v_lshlrev_b32 v{V_S16}, 7, v{V_S16}")
    st.e(f"v_bfe_u32 v{V_TX}, v1, 1, 1"); st.e(f"v_lshlrev_b32 v{V_TX}, 11, v{V_TX}")
    st.e(f"v_and_b32 v{V_TD}, 1, v1"); st.e(f"v_lshl_add_u32 v{V_TX}, v{V_TD}, 7, v{V_TX}")
    st.e(f"v_and_b32 v243, 7, v1"); st.e(f"v_min_u32 v243, 5, v243"); st.e(f"v_lshlrev_b32 v243, 7, v243")
def sweep_items(srd, nbytes, piece, npieces, va, vd):
    if NOTOUCH: return []
    pc = nbytes // npieces
    return [f"s_mul_i32 s62, {S_G}, {pc // 1024}", f"s_add_u32 s62, s62, {piece * pc}",
            (f"buffer_load_dword v{vd}, v{va}, {srd}, s62 offen", 'touch')]
def sweep_1a(st, e):
    if NOTOUCH: return
    st.e(f"s_lshl_b32 s62, {S_G}, 12")
    st.e(f"buffer_load_dword v{V_TD}, v{V_TX}, {SRD_X}, s62 offen offset:{e * 256}", tag=('sw', e))
    st.e(f"s_mul_i32 s62, {S_G}, 768"); st.e(f"s_add_u32 s62, s62, {e * 128 * 6144}")
    st.e(f"buffer_load_dword v{V_TD}, v243, {SRD_WQKV}, s62 offen", tag=('sw', e))
def touch_code(st):
    if NOTOUCH: return
    st.e("s_getpc_b64 s[58:59]")
    st.e("s_and_b32 s58, s58, 0xffffff00")
    st.e("s_lshr_b32 s56, s2, 3"); st.e("s_lshl_b32 s56, s56, 2")
    st.e(f"s_add_u32 s56, s56, {S_WAVE}")
    st.e("s_lshl_b32 s56, s56, 10")
    st.e("s_min_u32 s56, s56, CODE_BYTES - 1024")
    st.e("v_lshlrev_b32 v244, 4, v1")
    st.e("v_add_u32 v244, s56, v244")
    st.e(f"global_load_dword v{V_TD}, v244, s[58:59]", tag='touch')

WS_FL = 37 * MB + 65536
S_TAG, S_GEN = 's94', 's95'
def gen_load(st):
    st.e(f"s_add_u32 s86, s86, {WS_FL + 8192}"); st.e("s_addc_u32 s87, s87, 0")
    st.e(f"s_load_dword {S_GEN}, s[86:87], 0")
def flags_setup(st):
    st.e("v_and_b32 v252, 15, v1"); st.e("v_lshlrev_b32 v252, 2, v252")
    st.e(f"s_lshl_b32 s56, {S_RB}, 7"); st.e(f"s_add_u32 s56, s56, {WS_FL}")
    st.e("v_add_u32 v253, s56, v252")
    st.e(f"s_lshl_b32 s57, {S_CB}, 2"); st.e("s_add_u32 s92, s56, s57")
    st.e(f"s_lshl_b32 s56, {S_CB}, 7"); st.e(f"s_add_u32 s56, s56, {WS_FL + 4096}")
    st.e("v_add_u32 v254, s56, v252")
    st.e(f"s_lshl_b32 s57, {S_RB}, 2"); st.e("s_add_u32 s93, s56, s57")
    st.e("v_mov_b32 v255, 0")
def tag_setup(st):
    st.e(f"s_mul_i32 {S_TAG}, {S_GEN}, 0x9e3779b1"); st.e(f"s_add_u32 {S_TAG}, {S_TAG}, 0x7f4a7c15")
    st.e(f"s_and_b32 {S_TAG}, {S_TAG}, 0xfffffff8")
def do_publish(st, val):
    l = st.newlabel("PUB")
    st.nobg(True)
    st.e(f"s_cmp_lg_u32 {S_WAVE}, {PUBW}")
    st.e(f"s_cbranch_scc1 {l}")
    st.e(f"s_add_u32 s99, {S_TAG}, {val}")
    st.e("v_mov_b32 v0, s99")
    st.e("s_mov_b64 exec, 1")
    st.e(f"buffer_store_dword v0, v255, {SRD_WS}, {'s93' if val in (1, 3) else 's92'} offen sc1", count=False)
    st.e("s_mov_b64 exec, -1")
    st.label(l, soft=True)
    st.nobg(False)
PUBW = env('PUBW', 1)
def gen_advance(st):
    l = st.newlabel("GEN")
    st.e(f"s_cmp_lg_u32 {S_G}, 0")
    st.e(f"s_cbranch_scc1 {l}")
    st.e(f"s_add_u32 s99, {S_GEN}, 1")
    st.e("v_mov_b32 v0, s99")
    st.e(f"s_mov_b32 s99, {WS_FL + 8192}")
    st.e("s_mov_b64 exec, 1")
    st.e(f"buffer_store_dword v0, v255, {SRD_WS}, s99 offen sc1", count=False)
    st.e("s_mov_b64 exec, -1")
    st.label(l, soft=True)
def drain_publish(st, val, tag):
    st.wait(tag=tag)
    st.e("s_barrier")
    do_publish(st, val)
def poll_issue(st, grp, tag):
    st.e(f"buffer_load_dword v252, v{253 if grp == 'rb' else 254}, {SRD_WS}, 0 offen sc1", tag=tag)
def poll_check(st, grp, tag, val):
    st.wait(tag=tag)
    ok = st.newlabel("POK"); lp = st.newlabel("PSPIN")
    st.nobg(True)
    st.e(f"s_add_u32 s91, {S_TAG}, {val}")
    st.e("v_subrev_u32 v252, s91, v252")
    st.e(f"v_cmp_lt_u32 vcc, {7 - val}, v252")
    st.e(f"s_cbranch_vccz {ok}")
    st.e("s_mov_b32 s99, 0x8000")
    st.label(lp, soft=True)
    st.e("s_sleep 2")
    st.e(f"buffer_load_dword v252, v{253 if grp == 'rb' else 254}, {SRD_WS}, 0 offen sc1", count=False)
    st.e("s_sub_u32 s99, s99, 1")
    st.e(f"s_cbranch_scc1 {ok}")
    st.e("s_waitcnt vmcnt(0)")
    st.e("v_subrev_u32 v252, s91, v252")
    st.e(f"v_cmp_lt_u32 vcc, {7 - val}, v252")
    st.e(f"s_cbranch_vccnz {lp}")
    st.label(ok, soft=True)
    st.nobg(False)

def xd_natural(st, rowstride, D, T):
    st.e(f"s_lshl_b32 s56, {S_RB}, 7"); st.e(f"s_lshl_b32 s57, {S_WAVE}, 5"); st.e("s_add_u32 s56, s56, s57")
    st.e(f"v_lshrrev_b32 v{T}, 3, v1")
    st.e(f"v_add_u32 v{T}, s56, v{T}")
    st.e(f"v_lshlrev_b32 v{T}, {rowstride.bit_length() - 1}, v{T}")
    st.e(f"v_lshrrev_b32 v{T+1}, 4, v1")
    st.e(f"v_and_b32 v{T+2}, 7, v1")
    st.e(f"v_xor_b32 v{T+1}, v{T+1}, v{T+2}")
    st.e(f"v_lshlrev_b32 v{T+1}, 4, v{T+1}")
    st.e(f"v_add_u32 v{D}, v{T}, v{T+1}")
    st.e(f"v_xor_b32 v{T+1}, 64, v{T+1}")
    st.e(f"v_add_u32 v{T+1}, v{T}, v{T+1}")
    st.e(f"v_add_u32 v{D+1}, {8*rowstride - 1024}, v{T+1}")
    st.e(f"v_add_u32 v{D+2}, {16*rowstride - 2048}, v{D}")
    st.e(f"v_add_u32 v{D+3}, {24*rowstride - 3072}, v{T+1}")
def xr_natural(st, D, T):
    st.e(f"v_and_b32 v{T}, 15, v1")
    st.e(f"v_lshrrev_b32 v{T+1}, 1, v{T}")
    st.e(f"v_lshrrev_b32 v{T+2}, 4, v1")
    st.e(f"v_xor_b32 v{T+1}, v{T+1}, v{T+2}")
    st.e(f"v_lshlrev_b32 v{T+1}, 4, v{T+1}")
    st.e(f"v_lshl_add_u32 v{T+1}, v{T}, 7, v{T+1}")
    st.e(f"s_lshl_b32 s56, {S_WR}, 13")
    st.e(f"v_add_u32 v{D}, s56, v{T+1}")
def wr128(st, D, T, gstride, base):
    st.e(f"v_lshrrev_b32 v{T}, 4, v1")
    st.e(f"v_bfe_u32 v{T+1}, v1, 2, 2")
    st.e(f"v_mul_u32_u24 v{T+2}, {gstride}, v{T}")
    st.e(f"v_lshl_add_u32 v{T+2}, v{T+1}, 7, v{T+2}")
    st.e(f"v_and_b32 v{T+3}, 3, v1")
    st.e(f"v_lshl_add_u32 v{T+2}, v{T+3}, 3, v{T+2}")
    st.e(f"v_lshrrev_b32 v{T+1}, 1, v{T+1}")
    st.e(f"v_and_b32 v{T}, 1, v{T}")
    st.e(f"v_lshl_or_b32 v{T}, v{T}, 1, v{T+1}")
    st.e(f"s_lshl_b32 s56, {S_WC}, 1")
    st.e(f"v_xor_b32 v{T}, s56, v{T}")
    st.e(f"v_lshl_add_u32 v{D}, v{T}, 5, v{T+2}")
    if base: st.e(f"v_add_u32 v{D}, {base}, v{D}")
def wd128_lane(st, D, T, rowstride):
    st.e(f"v_lshrrev_b32 v{T}, 3, v1")
    st.e(f"v_mul_u32_u24 v{T}, {rowstride}, v{T}")
    st.e(f"v_bfe_u32 v{T+1}, v1, 1, 2")
    st.e(f"v_bfe_u32 v{T+2}, v1, 4, 1")
    st.e(f"v_xor_b32 v{T+1}, v{T+1}, v{T+2}")
    st.e(f"v_lshl_add_u32 v{T}, v{T+1}, 5, v{T}")
    st.e(f"v_and_b32 v{T+1}, 1, v1")
    st.e(f"v_lshl_add_u32 v{D}, v{T+1}, 4, v{T}")

V_XD, V_WD, V_XR, V_WR, V_T = 2, 6, 13, 19, 25
V_W3 = 28
P_T = V_T + 1
ACC1 = 32
def acc1(n, i): return ACC1 + (n * 4 + i) * 4
ZP = 32
AQ = 176
AST = 192
A_3XD, A_XR, A_4WD, A_4WR, A_1BWD, A_1BWR = AST, AST + 4, AST + 5, AST + 7, AST + 8, AST + 15
P1A_SLOT = 40960; P1A_NB = 4
P1B_SLOT = 45056; P1B_NB = 3

def adv(reg, inc, wrap):
    it = [f"s_add_u32 {reg}, {reg}, {0 if NOINC else inc}"]
    if wrap and ROT > 1:
        it.append(f"s_and_b32 {reg}, {reg}, {wrap-1}" if wrap & (wrap - 1) == 0 else f"s_cmp_eq_u32 {reg}, {wrap}\ns_cselect_b32 {reg}, 0, {reg}")
    return it
def p1_dma(name, NB, slotsz, srd, rowbytes, n):
    def f(s):
        slot = (s % NB) * slotsz; tag = ('st', name, s)
        b = [f"s_add_u32 m0, {S_MX}, {slot}"]
        b += [(f"buffer_load_dwordx4 v{V_XD+q}, {SRD_X}, {S_SOX} offen offset:{1024*q} lds", tag) for q in range(4)] + adv(S_SOX, 128, 2048)
        for j in range(n):
            if j % 4 == 0: b.append(f"s_add_u32 m0, {S_MW}, {slot + 16384 + 1024 * j}")
            b.append((f"buffer_load_dwordx4 v{V_WD+j}, {srd}, {S_SOW} offen offset:{1024*(j%4)} lds", tag))
        return b + adv(S_SOW, 64 * rowbytes, 1024 * rowbytes)
    return f
p1a_dma = p1_dma('p1a', P1A_NB, P1A_SLOT, SRD_WQKV, 6144, 6)
p1b_dma = p1_dma('p1b', P1B_NB, P1B_SLOT, SRD_WIN, 7168, 7)
def p1_soff(rowbytes, mw):
    return [f"s_and_b32 s56, {S_OFF}, {max(ROT - 1, 0)}", f"s_lshl_b32 {S_SOX}, s56, 7", f"s_mul_i32 {S_SOW}, s56, {64*rowbytes}", f"s_mul_i32 {S_MW}, {S_WAVE}, {mw}"]

def p1a_setup(st):
    T = V_T
    xd_natural(st, 2048, V_XD, T)
    wd128_lane(st, T + 3, T, 6144)
    st.e(f"v_xor_b32 v{T+4}, 64, v{T+3}")
    st.e(f"s_mul_i32 s56, {S_WAVE}, 6")
    st.e(f"s_lshl_b32 s58, {S_CB}, 7")
    for j in range(6):
        st.e(f"s_add_u32 s57, s56, {j}")
        st.e("s_lshr_b32 s59, s57, 3"); st.e("s_lshl_b32 s59, s59, 11")
        st.e("s_and_b32 s57, s57, 7"); st.e(f"s_mul_i32 s57, s57, {8*6144}")
        st.e("s_add_u32 s57, s57, s59"); st.e("s_add_u32 s57, s57, s58")
        if j % 4: st.e(f"s_sub_u32 s57, s57, {1024*(j%4)}")
        st.e(f"v_add_u32 v{V_WD+j}, s57, v{T + 3 + (j & 1)}")
    emit_all(st, p1_soff(6144, 6144))
def p1a_setup_reads(st):
    T = V_T
    xr_natural(st, V_XR, T)
    st.e(f"v_xor_b32 v{V_XR+3}, 64, v{V_XR}")
    copies(st, V_XR); copies(st, V_XR + 3)
    wr128(st, V_WR, T, 1024, 0)
    st.e(f"v_xor_b32 v{V_WR+3}, 32, v{V_WR}")
    copies(st, V_WR); copies(st, V_WR + 3)
def p1b_regs(st, D, T):
    st.e(f"s_mul_i32 s56, {S_WAVE}, {7*64}")
    st.e(f"s_mul_i32 s58, {S_CB}, 224")
    st.e("s_mov_b32 s59, 18725")
    st.e(f"v_mov_b32 v{T+5}, 3360")
    for j in range(7):
        d = D + j
        st.e(f"s_add_u32 s57, s56, {64*j}")
        st.e(f"v_add_u32 v{T}, s57, v1")
        st.e(f"v_mul_u32_u24 v{T+1}, s59, v{T}")
        st.e(f"v_lshrrev_b32 v{T+1}, 19, v{T+1}")
        st.e(f"v_mul_u32_u24 v{T+2}, 28, v{T+1}")
        st.e(f"v_sub_u32 v{T+2}, v{T}, v{T+2}")
        st.e(f"v_lshrrev_b32 v{T+3}, 1, v{T+2}")
        st.e(f"v_bfe_u32 v{T+4}, v{T+1}, 3, 1")
        st.e(f"v_xor_b32 v{T+3}, v{T+3}, v{T+4}")
        st.e(f"v_cmp_lt_u32 vcc, 6, v{T+3}")
        st.e(f"v_mul_u32_u24 v{d}, 7168, v{T+1}")
        st.e(f"v_lshl_add_u32 v{d}, v{T+3}, 5, v{d}")
        st.e(f"v_and_b32 v{T+2}, 1, v{T+2}")
        st.e(f"v_lshl_add_u32 v{d}, v{T+2}, 4, v{d}")
        st.e(f"v_cndmask_b32 v{T+4}, 0, v{T+5}, vcc")
        st.e(f"s_sub_u32 s57, s58, {1024*(j%4)}")
        st.e(f"v_add3_u32 v{d}, v{d}, v{T+4}, s57")
    st.e(f"v_lshrrev_b32 v{T}, 4, v1")
    st.e(f"v_bfe_u32 v{T+1}, v1, 2, 2")
    st.e(f"v_lshl_add_u32 v{T+2}, v{T}, 3, v{T+1}")
    st.e(f"v_mul_u32_u24 v{T+2}, 448, v{T+2}")
    st.e(f"v_and_b32 v{T+3}, 3, v1")
    st.e(f"v_lshl_add_u32 v{T+2}, v{T+3}, 3, v{T+2}")
    st.e(f"v_and_b32 v{T}, 1, v{T}")
    st.e(f"s_mul_i32 s57, {S_WC}, 7"); st.e("s_add_u32 s57, s57, 3")
    st.e(f"v_xor_b32 v{T+1}, s57, v{T}")
    st.e(f"v_lshl_add_u32 v{D+9}, v{T+1}, 5, v{T+2}")
    st.e(f"s_lshl_b32 s56, {S_WC}, 7")
    st.e(f"v_add_u32 v{T+2}, s56, v{T+2}")
    st.e(f"v_lshl_add_u32 v{D+7}, v{T}, 5, v{T+2}")
    st.e(f"v_lshlrev_b32 v{T+1}, 5, v{T}")
    st.e(f"v_sub_u32 v{D+8}, v{T+2}, v{T+1}")
    st.e(f"v_add_u32 v{D+8}, 32, v{D+8}")
def p1a_wread(slot, n, hh, db):
    out = []
    for sec in range(2):
        r, imm = ldsaddr(V_WR + 3 * (n % 2), slot + 16384 + (n // 2) * 8192 + hh * 4096 + sec * 512)
        out.append(f"ds_read_b64_tr_b16 {ar(db + 2*sec, 2)}, {r} offset:{imm}")
    return out
def p1b_wread(slot, n, hh, db):
    out = []
    u0 = [0, 1, 2, 3, 7, 8, 9][n]
    for sec in range(2):
        off = slot + 16384 + hh * 14336 + sec * 1792
        if n == 3: r, imm = ldsaddr(V_W3, off)
        elif u0 % 2 == 0: r, imm = ldsaddr(V_WR, off + u0 * 32)
        else: r, imm = ldsaddr(V_WR + 3, off + u0 * 32 - 32)
        out.append(f"ds_read_b64_tr_b16 {ar(db + 2*sec, 2)}, {r} offset:{imm}")
    return out
def p1a_mf(s, hh, n, i, wf, xf):
    a = vr(acc1(n, i), 4); c = "0" if (s == 0 and hh == 0) else a
    return f"v_mfma_f32_16x16x32_bf16 {a}, {xf}, {wf}, {c}" if n >= 4 else f"v_mfma_f32_16x16x32_bf16 {a}, {wf}, {xf}, {c}"
def p1b_mf(s, hh, n, i, wf, xf):
    a = vr(acc1(6 + n, i), 4)
    return f"v_mfma_f32_16x16x32_bf16 {a}, {wf}, {xf}, {'0' if (s == 0 and hh == 0) else a}"

QSCALE = math.log2(math.e) / math.sqrt(32.0)
def p1_epi_qkv(st):
    T = P_T
    st.e(f"s_lshl_b32 s56, {S_CB}, 1"); st.e(f"s_add_u32 s56, s56, {S_WC}")
    st.e(f"s_lshl_b32 {S_HB}, s56, 18")
    st.e(f"s_lshl_b32 s56, {S_RB}, 2"); st.e(f"s_lshl_b32 s57, {S_WR}, 1"); st.e("s_add_u32 s56, s56, s57")
    st.e("s_lshl_b32 s56, s56, 12")
    st.e("s_sub_u32 s58, s56, 4096"); st.e("s_and_b32 s58, s58, 0x3ffff")
    st.e(f"s_add_u32 s58, s58, {S_HB}")
    st.e(f"s_add_u32 s56, s56, {S_HB}")
    st.e("s_add_u32 s57, s56, 4096")
    st.e(f"v_lshlrev_b32 v{T}, 4, v1")
    st.e(f"v_and_b32 v{T+1}, 0x33, v1")
    st.e(f"v_bfe_u32 v{T+2}, v1, 2, 1"); st.e(f"v_lshl_or_b32 v{T+1}, v{T+2}, 3, v{T+1}")
    st.e(f"v_bfe_u32 v{T+2}, v1, 3, 1"); st.e(f"v_lshl_or_b32 v{T+1}, v{T+2}, 2, v{T+1}")
    st.e(f"v_lshlrev_b32 v{T+1}, 4, v{T+1}")
    def frag(t, x, y):
        st.e(f"v_cvt_pk_bf16_f32 v{t}, v{x}, v{x+1}"); st.e(f"v_cvt_pk_bf16_f32 v{t+1}, v{x+2}, v{x+3}")
        st.e(f"v_cvt_pk_bf16_f32 v{t+2}, v{y}, v{y+1}"); st.e(f"v_cvt_pk_bf16_f32 v{t+3}, v{y+2}, v{y+3}")
    def swaps(t):
        st.e(f"v_permlane16_swap_b32 v{t}, v{t+2}"); st.e(f"v_permlane16_swap_b32 v{t+1}, v{t+3}")
    K = [(128 + 4 * (a * 2 + ks), a, ks) for a in range(2) for ks in range(2)]
    for t, a, ks in K: frag(t, acc1(2 + ks, 2 * a), acc1(2 + ks, 2 * a + 1))
    for t, a, ks in K: swaps(t)
    for t, a, ks in K: st.e(f"buffer_store_dwordx4 {vr(t,4)}, v{T+1}, {SRD_WS}, {'s58' if a == 0 else 's56'} offen offset:{2048+1024*ks}{SC}", tag='kv')
    V = [(acc1(2, 0) + 4 * i, i) for i in range(4)]
    for t, i in V: frag(t, acc1(4, i), acc1(5, i))
    for t, i in V: swaps(t)
    for t, i in V: st.e(f"buffer_store_dwordx4 {vr(t,4)}, v{T}, {SRD_WS}, s{56+i//2} offen offset:{1024*(i%2)}{SC}", tag='kv')
    st.e(f"s_mov_b32 s58, {f2u(QSCALE)}"); st.e("s_mov_b32 s59, s58")
    for r in range(ACC1, ACC1 + 32, 2): st.e(f"v_pk_mul_f32 {vr(r,2)}, {vr(r,2)}, s[58:59]")
    Q = [(acc1(3, 0) + 4 * (a * 2 + ks), a, ks) for a in range(2) for ks in range(2)]
    for t, a, ks in Q: frag(t, acc1(ks, 2 * a), acc1(ks, 2 * a + 1))
    for t, a, ks in Q: swaps(t)
    for t, a, ks in Q:
        for j in range(4): st.e(f"v_accvgpr_write_b32 a{AQ + (a*2+ks)*4 + j}, v{t+j}")

GC1 = -2.0 * math.sqrt(2.0 / math.pi) * math.log2(math.e)
GC2 = GC1 * 0.044715
def xreduce(st, regs, temps):
    for w in (16, 32):
        for r, t in zip(regs, temps): st.e(f"v_mov_b32 v{t}, v{r}")
        for r, t in zip(regs, temps): st.e(f"v_permlane{w}_swap_b32 v{r}, v{t}")
        for r, t in zip(regs, temps): st.e(f"v_add_f32 v{r}, v{r}, v{t}")
def p1_epi_z(st, at):
    T = 26; TB = 96
    za = lambda j, i: acc1(6 + j, i)
    st.e(f"s_mov_b32 s56, {f2u(GC1)}")
    st.e(f"s_mov_b32 s58, {f2u(GC2)}"); st.e("s_mov_b32 s59, s58")
    st.e("s_mov_b32 s60, 1.0"); st.e("s_mov_b32 s61, 1.0")
    st.e(f"v_mov_b32 v{T}, s56"); st.e(f"v_mov_b32 v{T+1}, s56")
    pairs = [za(j, i) + 2 * h for j in range(7) for i in range(4) for h in range(2)]
    G = 4
    for gi, g0 in enumerate(range(0, len(pairs), G)):
        if gi in at: at[gi](st)
        grp = pairs[g0:g0 + G]
        tb = TB + (gi % 2) * 8
        for k, p in enumerate(grp): st.e(f"v_pk_mul_f32 {vr(tb+2*k,2)}, {vr(p,2)}, {vr(p,2)}")
        for k, p in enumerate(grp): st.e(f"v_pk_fma_f32 {vr(tb+2*k,2)}, {vr(tb+2*k,2)}, s[58:59], {vr(T,2)}")
        for k, p in enumerate(grp): st.e(f"v_pk_mul_f32 {vr(tb+2*k,2)}, {vr(tb+2*k,2)}, {vr(p,2)}")
        for k in range(2 * G): st.e(f"v_exp_f32 v{tb+k}, v{tb+k}")
        for k, p in enumerate(grp): st.e(f"v_pk_add_f32 {vr(tb+2*k,2)}, {vr(tb+2*k,2)}, s[60:61]")
        for k in range(2 * G): st.e(f"v_rcp_f32 v{tb+k}, v{tb+k}")
        for k, p in enumerate(grp): st.e(f"v_pk_mul_f32 {vr(p,2)}, {vr(tb+2*k,2)}, {vr(p,2)}")
        for k, p in enumerate(grp): st.e(f"v_cvt_pk_bf16_f32 v{ZP + (p - za(0, 0))//2}, v{p}, v{p+1}")
    st.e(f"s_mov_b32 s59, {f2u(-1.0/48)}")
    st.e(f"s_cmp_eq_u32 {S_WC}, 1")
    st.e("s_cselect_b32 s56, 1.0, 0"); st.e("s_mov_b32 s57, s56")
    st.e(f"s_cselect_b32 s58, {f2u(-1.0/64)}, s59")
    MEAN = TB; M2 = TB + 4; A = TB + 8; D = TB + 16
    ps = lambda i: [za(j, i) + 2 * h for j in (4, 5, 6) for h in range(2)]
    for i in range(4): st.e(f"v_pk_add_f32 {vr(A+2*i,2)}, {vr(za(3,i),2)}, {vr(za(3,i)+2,2)}")
    for i in range(4): st.e(f"v_pk_fma_f32 {vr(A+2*i,2)}, {vr(A+2*i,2)}, s[56:57], {vr(ps(i)[0],2)}")
    for k in range(1, 6):
        for i in range(4): st.e(f"v_pk_add_f32 {vr(A+2*i,2)}, {vr(A+2*i,2)}, {vr(ps(i)[k],2)}")
    for i in range(4): st.e(f"v_add_f32 v{MEAN+i}, v{A+2*i}, v{A+2*i+1}")
    xreduce(st, [MEAN + i for i in range(4)], [D + i for i in range(4)])
    for i in range(4): st.e(f"v_mul_f32 v{D+2*i}, s58, v{MEAN+i}")
    for i in range(4): st.e(f"v_sub_f32 v{MEAN+i}, 0, v{D+2*i}")
    for i in range(4):
        for p in [za(3, i), za(3, i) + 2] + ps(i): st.e(f"v_pk_add_f32 {vr(p,2)}, {vr(p,2)}, {vr(D+2*i,2)} op_sel_hi:[1,0]")
    for i in range(4): st.e(f"v_pk_mul_f32 {vr(A+2*i,2)}, {vr(za(3,i),2)}, {vr(za(3,i),2)}")
    for i in range(4): st.e(f"v_pk_fma_f32 {vr(A+2*i,2)}, {vr(za(3,i)+2,2)}, {vr(za(3,i)+2,2)}, {vr(A+2*i,2)}")
    for i in range(4): st.e(f"v_pk_mul_f32 {vr(A+2*i,2)}, {vr(A+2*i,2)}, s[56:57]")
    for k in range(6):
        for i in range(4): st.e(f"v_pk_fma_f32 {vr(A+2*i,2)}, {vr(ps(i)[k],2)}, {vr(ps(i)[k],2)}, {vr(A+2*i,2)}")
    for i in range(4): st.e(f"v_add_f32 v{M2+i}, v{A+2*i}, v{A+2*i+1}")
    xreduce(st, [M2 + i for i in range(4)], [D + i for i in range(4)])
    st.e(f"v_lshrrev_b32 v{T}, 4, v1")
    for i in range(1, 4):
        st.e(f"v_cmp_eq_u32 vcc, {i}, v{T}")
        st.e(f"v_cndmask_b32 v{MEAN}, v{MEAN}, v{MEAN+i}, vcc")
        st.e(f"v_cndmask_b32 v{M2}, v{M2}, v{M2+i}, vcc")
    st.e(f"s_lshl_b32 s56, {S_RB}, 4"); st.e(f"s_add_u32 s56, s56, {S_CB}"); st.e("s_lshl_b32 s56, s56, 11")
    st.e(f"s_lshl_b32 s57, {S_WR}, 10"); st.e("s_add_u32 s56, s56, s57")
    st.e(f"s_lshl_b32 s57, {S_WC}, 2"); st.e("s_add_u32 s56, s56, s57")
    st.e(f"s_add_u32 s56, s56, {WS_ST}")
    st.e(f"buffer_store_dword v{MEAN}, v{V_L16}, {SRD_WS}, s56 offen{SC}", tag='stat')
    st.e(f"buffer_store_dword v{M2}, v{V_L16}, {SRD_WS}, s56 offen offset:8{SC}", tag='stat')

LOG2E = math.log2(math.e)
def gate_issue(st):
    T = 128
    st.e(f"s_lshl_b32 s60, {S_RB}, 7"); st.e(f"s_lshl_b32 s61, {S_CB}, 3"); st.e("s_add_u32 s60, s60, s61")
    st.e(f"s_lshl_b32 s61, {S_WAVE}, 1"); st.e("s_add_u32 s66, s60, s61")
    st.e("s_lshl_b32 s60, s66, 11")
    st.e(f"v_lshlrev_b32 v{T+32}, 6, v1")
    st.e(f"v_and_b32 v{T+33}, 0x7ff, v{T+32}")
    for k in range(4):
        st.e(f"buffer_load_dwordx4 {vr(T+4*k,4)}, v{T+32}, {SRD_X}, s60 offen offset:{16*k}", tag='gate')
        st.e(f"buffer_load_dwordx4 {vr(T+16+4*k,4)}, v{T+33}, {SRD_GATE}, 0 offen offset:{16*k}", tag='gate')
def gate_finish(st):
    T = 128
    st.wait(tag='gate')
    a = T + 34
    st.e(f"v_mov_b32 v{a}, 0"); st.e(f"v_mov_b32 v{a+1}, 0")
    for k in range(16): st.e(f"v_dot2_f32_bf16 v{a + k % 2}, v{T+k}, v{T+16+k}, v{a + k % 2}")
    st.e(f"v_add_f32 v{a}, v{a}, v{a+1}")
    for m in ("quad_perm:[1,0,3,2]", "quad_perm:[2,3,0,1]", "row_half_mirror", "row_mirror"):
        st.e(f"v_add_f32_dpp v{a}, v{a}, v{a} {m} row_mask:0xf bank_mask:0xf")
    st.e(f"v_mov_b32 v{a+1}, v{a}")
    st.e(f"v_permlane16_swap_b32 v{a}, v{a+1}")
    st.e(f"v_add_f32 v{a}, v{a}, v{a+1}")
    st.e(f"v_mul_f32 v{a}, {f2u(-LOG2E)}, v{a}")
    st.e(f"v_exp_f32 v{a}, v{a}")
    st.e(f"v_add_f32 v{a}, 1.0, v{a}")
    st.e(f"v_rcp_f32 v{a}, v{a}")
    st.e(f"v_lshrrev_b32 v{a+1}, 5, v1"); st.e(f"v_lshlrev_b32 v{a+1}, 2, v{a+1}")
    st.e("s_lshl_b32 s56, s66, 2"); st.e(f"s_add_u32 s56, s56, {WS_G}")
    st.e(f"buffer_store_dword v{a}, v{a+1}, {SRD_WS}, s56 offen{SC}", tag='gst')

SA, SB, CA, CB, OA, OB, PA, PB, LA, LB, SEL, AT = 88, 104, 120, 136, 152, 168, 184, 192, 200, 204, 208, 212
V_L16 = 20
RING = 8
def m32(d, a, b, c): return f"v_mfma_f32_32x32x16_bf16 {vr(d,16)}, {a}, {b}, {c if c == '0' else vr(c,16)}"
def m16s(l, p, first=False): return f"v_mfma_f32_16x16x32_bf16 {vr(l,4)}, {vr(SEL,4)}, {vr(p,4)}, {'0' if first else vr(l,4)}"
def ubase(u):
    u %= RING
    return 16 * u if u < 3 else 96 + 16 * (u - 3)
def uK(u, ks): return ar(ubase(u) + 8 + 4 * ks, 4)
def uV(u, kk): return ar(ubase(u) + 4 * kk, 4)
def Qf(t, ks): return ar(AQ + (t * 2 + ks) * 4, 4)
V_KV = 18
KVSC = SC if env('KVSC', 0) else ''
KV_ADV = f"s_add_u32 {S_KV}, {S_KV}, 4096\ns_and_b32 {S_KV}, {S_KV}, 0x3ffff" if env("KVROT", 1) else f"s_add_u32 {S_KV}, {S_KV}, 4096"
def unit_loads(u):
    ks = range(2, 4) if u < 0 else range(4 if u < 63 else 2)
    return [(f"buffer_load_dwordx4 {ar(ubase(u)+4*k,4)}, v{V_KV}, {SRD_WS}, {S_KV} offen offset:{1024*k}{KVSC}", ('u', u)) for k in ks] + [KV_ADV]
def kv_start(st):
    st.e(f"s_lshl_b32 {S_KV}, {S_RB}, 14"); st.e(f"s_sub_u32 {S_KV}, {S_KV}, 4096"); st.e(f"s_and_b32 {S_KV}, {S_KV}, 0x3ffff")
    st.e(f"v_add_u32 v{V_KV}, {S_HB}, v{V_L16}")
def softmax_valu(S, P):
    out = []
    for i in range(16):
        out.append(f"v_exp_f32 v{S+i}, v{S+i}")
        if i >= 3 and i % 2 == 1:
            c = (i - 3) // 2
            out.append(f"v_cvt_pk_bf16_f32 v{P+c}, v{S+2*c}, v{S+2*c+1}")
    out.append(f"v_cvt_pk_bf16_f32 v{P+7}, v{S+14}, v{S+15}")
    return out
def att_phase(st, mf, valu, extra):
    extra = list(extra)
    nv = len(valu); G = len(mf)
    pos = [k * nv // G for k in range(G)]
    k = 0
    for c, v in enumerate(valu):
        while k < G and pos[k] <= c:
            st.e(mf[k]); k += 1
            if extra: emit_filler(st, extra.pop(0))
        st.e(v)
    for x in extra: emit_filler(st, x)
def rowmax(st, S, d, t):
    st.e(f"v_max3_f32 v{d}, v{S}, v{S+1}, v{S+2}")
    for i in range(3, 15, 2): st.e(f"v_max3_f32 v{d}, v{S+i}, v{S+i+1}, v{d}")
    st.e(f"v_max_f32 v{d}, v{S+15}, v{d}")
    st.e(f"v_mov_b32 v{t}, v{d}")
    st.e(f"v_permlane32_swap_b32 v{d}, v{t}")
    st.e(f"v_max_f32 v{d}, v{d}, v{t}")

def ln_load(st, batch):
    st.e(f"s_lshl_b32 s56, {S_RB}, 15"); st.e(f"s_lshl_b32 s57, {S_WR}, 10"); st.e("s_add_u32 s56, s56, s57")
    st.e(f"s_add_u32 s56, s56, {WS_ST + batch * 8 * 2048}")
    for k in range(8):
        if k in (2, 4, 6): st.e("s_add_u32 s56, s56, 4096")
        st.e(f"buffer_load_dwordx4 {vr(AT+4*k,4)}, v{V_L16}, {SRD_WS}, s56 offen offset:{2048*(k%2)}{SC}", tag=('ln', batch))
LNA = 26
def ln_accum(st, batch):
    st.wait(tag=('ln', batch))
    if batch == 0:
        st.e(f"v_sub_f32 v24, 0, v{AT}")
        for r in range(LNA, LNA + 6): st.e(f"v_mov_b32 v{r}, 0")
    for k in range(8): st.e(f"v_pk_add_f32 {vr(AT+4*k,2)}, {vr(AT+4*k,2)}, v[24:25] op_sel_hi:[1,0]")
    for k in range(8):
        st.e(f"v_pk_add_f32 {vr(LNA,2)}, {vr(LNA,2)}, {vr(AT+4*k,2)}")
        st.e(f"v_pk_fma_f32 {vr(LNA+2,2)}, {vr(AT+4*k,2)}, {vr(AT+4*k,2)}, {vr(LNA+2,2)}")
        st.e(f"v_pk_add_f32 {vr(LNA+4,2)}, {vr(LNA+4,2)}, {vr(AT+4*k+2,2)}")
def ln_final(st):
    A, B, M = LNA, LNA + 2, LNA + 4
    t = AT
    st.e(f"v_mul_f32 v{A}, {f2u(48.0)}, v{A}"); st.e(f"v_fmac_f32 v{A}, {f2u(64.0)}, v{A+1}")
    st.e(f"v_mul_f32 v{B}, {f2u(48.0)}, v{B}"); st.e(f"v_fmac_f32 v{B}, {f2u(64.0)}, v{B+1}")
    st.e(f"v_add_f32 v{M}, v{M}, v{M+1}")
    st.e(f"v_add_f32 v{M}, v{M}, v{B}")
    st.e(f"v_mul_f32 v{A+1}, {f2u(1.0/1792)}, v{A}")
    st.e(f"v_fma_f32 v{M}, -v{A}, v{A+1}, v{M}")
    st.e(f"v_mul_f32 v{M}, {f2u(1.0/1792)}, v{M}")
    st.e(f"v_max_f32 v{M}, 0, v{M}")
    st.e(f"v_add_f32 v{M}, {f2u(1e-5)}, v{M}")
    st.e(f"v_rsq_f32 v{M}, v{M}")
    st.e(f"v_sub_f32 v{A}, v24, v{A+1}")
    st.e(f"v_mul_f32 v{A}, v{A}, v{M}")
    st.e(f"v_and_b32 v{B}, 15, v1"); st.e(f"v_lshlrev_b32 v{B}, 2, v{B}")
    for i in range(4):
        st.e(f"ds_bpermute_b32 v{t+2*i}, v{B}, v{M} offset:{64*i}")
        st.e(f"ds_bpermute_b32 v{t+2*i+1}, v{B}, v{A} offset:{64*i}")
    st.e(f"v_bfe_u32 v{B}, v1, 2, 1"); st.e(f"v_lshlrev_b32 v{B}, 9, v{B}")
    st.e(f"v_bfe_u32 v{B+1}, v1, 3, 1"); st.e(f"v_lshl_or_b32 v{B}, v{B+1}, 7, v{B}")
    st.e(f"v_and_b32 v{B+1}, 3, v1"); st.e(f"v_lshl_or_b32 v{B}, v{B+1}, 5, v{B}")
    st.e(f"v_lshrrev_b32 v{B+1}, 4, v1"); st.e(f"v_lshl_or_b32 v{B}, v{B+1}, 3, v{B}")
    st.e(f"s_mul_i32 s60, {S_CB}, 458752")
    st.e(f"s_lshl_b32 s57, {S_RB}, 1"); st.e(f"s_add_u32 s57, s57, {S_WR}"); st.e("s_mul_i32 s57, s57, 14336")
    st.e("s_add_u32 s60, s60, s57")
    st.e(f"s_lshl_b32 s57, {S_WC}, 12"); st.e("s_add_u32 s60, s60, s57")
    st.e(f"s_add_u32 s60, s60, {WS_ZN}")
    st.e("s_add_u32 s61, s60, 7168")
    st.e("s_sub_u32 s62, s60, 1024"); st.e("s_sub_u32 s63, s61, 1024")
    st.e(f"s_cmp_eq_u32 {S_WC}, 1")
    st.e(f"s_cselect_b32 s62, s62, {WS_SIZE}"); st.e(f"s_cselect_b32 s63, s63, {WS_SIZE}")
    st.e("s_mov_b32 s59, 0xffff0000")
    st.wait(lgkm=0)
    k = 0
    for j in (4, 5, 6, 3):
        for i in range(4):
            u = t + 8 + 4 * (k % 4); k += 1
            z = ZP + (j * 4 + i) * 2
            for h in range(2):
                st.e(f"v_lshlrev_b32 v{u+2*h}, 16, v{z+h}")
                st.e(f"v_and_b32 v{u+2*h+1}, s59, v{z+h}")
            for h in range(2):
                st.e(f"v_pk_fma_f32 {vr(u+2*h,2)}, {vr(u+2*h,2)}, {vr(t+2*i,2)}, {vr(t+2*i,2)} op_sel:[0,0,1] op_sel_hi:[1,0,1]")
            for h in range(2):
                st.e(f"v_cvt_pk_bf16_f32 v{(z if j >= 4 else t + 24 + 2 * i) + h}, v{u+2*h}, v{u+2*h+1}")
def zn_stores():
    out = []
    for j in (4, 5, 6, 3):
        for i in range(4):
            src = ZP + (j * 4 + i) * 2 if j >= 4 else AT + 24 + 2 * i
            so = (60 if j >= 4 else 62) + i // 2
            off = (i % 2) * 256 + (j - 4) * 1024 if j >= 4 else (i % 2) * 256
            out.append((f"buffer_store_dwordx2 {vr(src,2)}, v{LNA+2}, {SRD_WS}, s{so} offen offset:{off}{SC}", 'zn'))
    return out

XST = [int(x) for x in os.environ.get('XST', '').split(',') if x]
def att_main(st, hooks, extras, first_unit):
    st.e(f"v_bfe_u32 v{AT}, v1, 4, 1"); st.e(f"v_lshlrev_b32 v{AT}, 2, v{AT}")
    st.e(f"v_and_b32 v{AT+1}, 7, v1")
    st.e(f"v_cmp_eq_u32 vcc, v{AT}, v{AT+1}")
    st.e(f"v_mov_b32 v{AT}, 0x3f803f80")
    st.e(f"v_cndmask_b32 v{SEL}, 0, v{AT}, vcc")
    for k in range(1, 4): st.e(f"v_mov_b32 v{SEL+k}, v{SEL}")
    st.wait(tag=('u', -1))
    st.e(m32(SA, uK(-1, 0), Qf(0, 0), '0')); st.e(m32(SA, uK(-1, 1), Qf(0, 1), SA))
    st.e(m32(SB, uK(-1, 0), Qf(1, 0), '0')); st.e(m32(SB, uK(-1, 1), Qf(1, 1), SB))
    rowmax(st, SA, AT, AT + 1)
    for i in range(16): st.e(f"v_sub_f32 v{CA+i}, 0, v{AT}")
    st.e(m32(SA, uK(-1, 0), Qf(0, 0), CA)); st.e(m32(SA, uK(-1, 1), Qf(0, 1), SA))
    rowmax(st, SB, AT + 2, AT + 3)
    for i in range(16): st.e(f"v_sub_f32 v{CB+i}, 0, v{AT+2}")
    nu = first_unit
    for j in range(64):
        st.mark(('chunk', 'att', RING))
        if j in XST and not os.environ.get('GST'): stamp(st, f'xa{j}')
        if j in hooks: hooks[j](st)
        if j in XST and j in hooks and not os.environ.get('GST'): stamp(st, f'xb{j}')
        ex = list(extras.get(j, []))
        ul = []
        lim = j + RING - 1
        if nu <= lim - 1 and nu < 64 and j >= KVCHK:
            ex = unit_loads(nu) + ex; nu += 1
        mf = [m32(SB, uK(j - 1, 0), Qf(1, 0), CB), m32(SB, uK(j - 1, 1), Qf(1, 1), SB)]
        if j > 0:
            f = (j == 1)
            mf += [m32(OB, uV(j - 1, 0), vr(PB, 4), '0' if f else OB), m16s(LB, PB, f), m32(OB, uV(j - 1, 1), vr(PB + 4, 4), OB), m16s(LB, PB + 4)]
        att_phase(st, mf, softmax_valu(SA, PA), ex)
        assert nu > j
        st.wait(tag=('u', j))
        mf = []
        if j < 63: mf += [m32(SA, uK(j, 0), Qf(0, 0), CA), m32(SA, uK(j, 1), Qf(0, 1), SA)]
        f = (j == 0)
        mf += [m32(OA, uV(j, 0), vr(PA, 4), '0' if f else OA), m16s(LA, PA, f), m32(OA, uV(j, 1), vr(PA + 4, 4), OA), m16s(LA, PA + 4)]
        if nu <= lim and nu < 64 and j >= KVCHK:
            ul = unit_loads(nu); nu += 1
        att_phase(st, mf, softmax_valu(SB, PB), ul)
    st.mark(('endchunks',))
    st.e(m32(OB, uV(63, 0), vr(PB, 4), OB)); st.e(m16s(LB, PB)); st.e(m32(OB, uV(63, 1), vr(PB + 4, 4), OB)); st.e(m16s(LB, PB + 4))
    stamp(st, 'att64')
    t = AT
    st.e(f"s_mul_i32 s56, {S_RB}, {88*8192}")
    st.e(f"s_lshr_b32 s57, {S_HB}, 5"); st.e("s_add_u32 s56, s56, s57")
    st.e(f"s_lshl_b32 s57, {S_WR}, 12"); st.e("s_add_u32 s56, s56, s57")
    st.e(f"s_add_u32 s56, s56, {WS_XF}")
    st.e(f"v_bfe_u32 v{t+4}, v1, 4, 1"); st.e(f"v_lshlrev_b32 v{t+4}, 10, v{t+4}")
    st.e(f"v_lshrrev_b32 v{t+5}, 5, v1"); st.e(f"v_lshl_or_b32 v{t+4}, v{t+5}, 8, v{t+4}")
    st.e(f"v_and_b32 v{t+5}, 15, v1"); st.e(f"v_lshl_or_b32 v{t+4}, v{t+5}, 4, v{t+4}")
    st.e(f"v_max_f32 v{t}, v{LA}, v{LB}")
    st.e(f"v_mul_f32 v{t+2}, 0, v{LA}"); st.e(f"v_mul_f32 v{t+3}, 0, v{LB}")
    for r in range(OA, OA + 32, 2): st.e(f"v_pk_fma_f32 {vr(t+2,2)}, {vr(r,2)}, 0, {vr(t+2,2)}")
    st.e(f"v_add_f32 v{t}, v{t}, v{t+2}")
    st.e(f"v_add_f32 v{t}, v{t}, v{t+3}")
    st.e(f"v_cmp_nge_f32 vcc, {f2u(2.0**30)}, v{t}")
    ok = st.newlabel("ATT_OK")
    st.e(f"s_cbranch_vccz {ok}")
    att_fallback(st)
    st.flush_hazards()
    st.label(ok, soft=True)
    st.e(f"v_rcp_f32 v{t}, v{LA}"); st.e(f"v_rcp_f32 v{t+2}, v{LB}")
    for q, (O, rr) in enumerate(((OA, t), (OB, t + 2))):
        for r in range(0, 16, 2): st.e(f"v_pk_mul_f32 {vr(O+r,2)}, {vr(O+r,2)}, {vr(rr,2)} op_sel_hi:[1,0]")
        P = PA + 8 * q
        for c in range(8): st.e(f"v_cvt_pk_bf16_f32 v{P+c}, v{O+2*c}, v{O+2*c+1}")
        for a in (0, 4):
            st.e(f"v_permlane32_swap_b32 v{P+a}, v{P+a+2}"); st.e(f"v_permlane32_swap_b32 v{P+a+1}, v{P+a+3}")
        for a in (0, 4):
            st.e(f"buffer_store_dwordx4 {vr(P+a,4)}, v{t+4}, {SRD_WS}, s56 offen offset:{q*2048 + a*128}{SC}", tag='o')

def att_fallback(st):
    t = AT
    MA, MB_ = t + 8, t + 9
    st.e("s_waitcnt vmcnt(0)")
    st.e(f"v_mov_b32 v{MA}, {f2u(-3.0e38)}"); st.e(f"v_mov_b32 v{MB_}, {f2u(-3.0e38)}")
    for r in list(range(OA, OA + 32)) + list(range(LA, LA + 8)): st.e(f"v_mov_b32 v{r}, 0")
    st.e(f"s_add_u32 s58, {S_HB}, {63*4096}")
    st.e(f"s_mov_b32 {S_KV}, {S_HB}")
    st.e("s_mov_b32 s59, 64")
    lp = st.newlabel("ATT_FB")
    st.flush_hazards()
    st.label(lp)
    for k in range(2):
        st.e(f"buffer_load_dwordx4 {ar(4*k,4)}, v{V_L16}, {SRD_WS}, s58 offen offset:{2048+1024*k}{SC}", count=False)
        st.e(f"buffer_load_dwordx4 {ar(8+4*k,4)}, v{V_L16}, {SRD_WS}, {S_KV} offen offset:{1024*k}{SC}", count=False)
    st.e(f"s_mov_b32 s58, {S_KV}")
    st.e(f"s_add_u32 {S_KV}, {S_KV}, 4096")
    st.e("s_waitcnt vmcnt(0)")
    for q, (S, O, P, L, M) in enumerate(((SA, OA, PA, LA, MA), (SB, OB, PB, LB, MB_))):
        st.e(m32(S, ar(0, 4), Qf(q, 0), '0')); st.e(m32(S, ar(4, 4), Qf(q, 1), S))
        rowmax(st, S, t, t + 1)
        st.e(f"v_max_f32 v{t}, v{t}, v{M}")
        st.e(f"v_sub_f32 v{t+1}, v{M}, v{t}")
        st.e(f"v_exp_f32 v{t+1}, v{t+1}")
        st.e(f"v_mov_b32 v{M}, v{t}")
        for r in range(16): st.e(f"v_mul_f32 v{O+r}, v{t+1}, v{O+r}")
        st.e(f"v_mul_f32 v{L}, v{t+1}, v{L}")
        for r in range(16): st.e(f"v_sub_f32 v{S+r}, v{S+r}, v{M}")
        for r in range(16): st.e(f"v_exp_f32 v{S+r}, v{S+r}")
        for c in range(8): st.e(f"v_cvt_pk_bf16_f32 v{P+c}, v{S+2*c}, v{S+2*c+1}")
        st.e(m32(O, ar(8, 4), vr(P, 4), O)); st.e(m16s(L, P)); st.e(m32(O, ar(12, 4), vr(P + 4, 4), O)); st.e(m16s(L, P + 4))
    st.flush_hazards()
    st.e("s_sub_u32 s59, s59, 1")
    st.e("s_cmp_lg_u32 s59, 0")
    st.e(f"s_cbranch_scc1 {lp}")

ACC = 88
def accr(n, i, base=ACC): return base + (n * 4 + i) * 4
def ldsaddr(base3, off): return f"v{base3 + (off >> 16)}", off & 0xffff
def copies(st, b):
    st.e(f"v_add_u32 v{b+1}, 0x10000, v{b}"); st.e(f"v_add_u32 v{b+2}, 0x20000, v{b}")
NXT_CAP = env('NXT_CAP', 5); CATCH = env('CATCH', 2)
def gemm(st, name, nst, NB, slotsz, dma, xread, wread, mf, MT, NT, first_stamp=None,
         grp=None, publish=None, at=None, nxt=None, rot=0, PF=1, hold=None, vbg=None, vper=24):
    at = at or {}
    SETS = PF + 1
    SSZ = 48 if PF == 1 else 32
    XF = lambda p, i: ar(p * SSZ + i * 4, 4)
    WFb = lambda p, n: p * SSZ + 16 + n * 4
    def reads(t):
        if t >= 2 * nst: return []
        s, hh, p = t // 2, t % 2, t % SETS
        slot = ((s + rot) % NB) * slotsz
        wl = [wread(slot, n, hh, WFb(p, n)) for n in range(NT)]
        return wl[0] + [xread(slot, i, hh, XF(p, i)) for i in range(MT)] + flat(wl[1:])
    def mfs(t):
        s, hh, p = t // 2, t % 2, t % SETS
        return [mf(s, hh, n, i, ar(WFb(p, n), 4), XF(p, i)) for n in range(NT) for i in range(MT)]
    q = list(st.bg); st.bg = []
    def issued(s):
        def tg(x):
            if isinstance(x, list): return any(tg(y) for y in x)
            return isinstance(x, tuple) and x[1] == ('st', name, s)
        return not any(tg(x) for x in q)
    while not issued(PF - 1): emit_filler(st, q.pop(0))
    st.wait(tag=('st', name, PF - 1))
    st.e("s_barrier")
    if first_stamp is not None: stamp(st, first_stamp)
    for t in range(PF):
        for r in reads(t): st.e(r)
    G = MT * NT
    D = ndma(dma(0))
    lg = lambda t: sum(len(reads(u)) for u in range(t + 1, t + PF))
    st.wait(lgkm=lg(0))
    def take(n, must=None):
        out = []; c = 0
        while q and (c < n or (must is not None and not issued(must))):
            x = q.pop(0); out.append(x)
            if isdma(x): c += 1
        while q and not isdma(q[0]) and 'm0' not in q[0]: out.append(q.pop(0))
        return out
    vbg = list(vbg or [])
    def addv(gaps):
        n = min(vper, len(vbg))
        if n == 0: return gaps
        idx = sorted(sorted(range(len(gaps)), key=lambda g: (len(gaps[g]), g))[:n])
        for g in idx: gaps[g] = gaps[g] + [vbg.pop(0)]
        return gaps
    nq = NB
    for s in range(nst):
        st.mark(('chunk', grp or name, NB))
        if os.environ.get('GST') == name and s in XST: stamp(st, f'x{s}')
        if (s, 'A') in at: at[(s, 'A')](st)
        extra = CATCH if ndma(q) > D // 2 else 0
        cap = D // 2 + extra if s + NB <= nst else NXT_CAP
        interleave(st, mfs(2 * s), addv(merge(reads(2 * s + PF), take(cap, s + PF), G)))
        pub = publish and s == publish[2]
        tags = ([('st', name, s + PF)] if s + PF < nst else []) + (publish[1] if pub else [])
        st.wait(tag=tags or None, lgkm=lg(2 * s + 1))
        st.e("s_barrier")
        if pub: do_publish(st, publish[0])
        if (s, 'B') in at: at[(s, 'B')](st)
        extra = CATCH if ndma(q) > 0 else 0
        while nq <= s + NB and nq < nst and not (hold and nq >= hold[0] and s < hold[1]):
            q += dma(nq); nq += 1
        if nxt and s in nxt:
            assert s + NB >= nst
            it = nxt[s]()
            if it and not isdma(it[0]) and 'm0' not in it[0]:
                assert ndma(q) == 0, "next phase's address registers would clobber pending DMA"
                while q: emit_filler(st, q.pop(0))
                while not isdma(it[0]) and 'm0' not in it[0]: emit_filler(st, it.pop(0))
            q += it
        cap = (D + 1) // 2 + extra if s + NB < nst else NXT_CAP
        interleave(st, mfs(2 * s + 1), addv(merge(reads(2 * s + 1 + PF), take(cap), G)))
        if s + 1 < nst: st.wait(lgkm=lg(2 * s + 2))
    st.mark(('endchunks',))
    assert not vbg
    st.bg = q

P3_SLOT = 30720; P3_NB = 5
V_B = 248; V_G = 8; UO = 152; TMP = 184
P3X = env('P3X', 2)
def p3_x(s, n=4):
    tag = ('st', 'p3', s)
    return [f"s_add_u32 m0, {S_MX}, {(s % P3_NB) * P3_SLOT}"] + \
        [(f"buffer_load_dwordx4 v{V_XD+q}, {SRD_WSP}, {S_SOX} offen offset:{1024*q} lds", tag) for q in range(n)] + \
        [f"s_add_u32 {S_SOX}, {S_SOX}, {0 if NOINC else 128}"] + ([f"s_and_b32 {S_SOX}, {S_SOX}, 4095"] if ROT3 else [])
def p3_wadv(so):
    return [f"s_add_u32 {so}, {so}, {0 if NOINC else 14336}"] + ([f"s_cmp_eq_u32 {so}, 458752\ns_cselect_b32 {so}, 0, {so}"] if ROT3 else [])
def p3_w_pro(s):
    tag = ('st', 'p3', s)
    b = [f"s_add_u32 m0, {S_MW}, {(s % P3_NB) * P3_SLOT + 16384}"]
    b += [(f"buffer_load_dwordx4 v{V_WD}, {SRD_WS}, {S_SOW} offen offset:{1024*j}{SC} lds", tag) for j in range(3)]
    b.append(["s_mov_b32 exec_hi, 0", (f"buffer_load_dwordx4 v{V_WD}, {SRD_WS}, {S_SOW} offen offset:3072{SC} lds", tag), "s_mov_b32 exec_hi, -1"])
    return b + p3_wadv(S_SOW)
def p3_dma_wc1(s):
    slot = (s % P3_NB) * P3_SLOT
    tag = ('st', 'p3', s)
    b = p3_x(s)
    if P3X < 4:
        k = 5
        b[k:k] = [f"s_add_u32 m0, s68, {slot}"] + [(f"buffer_load_dwordx4 v{V_WD+2+q}, {SRD_WSP}, {S_SOX} offen offset:{1024*q} lds", tag) for q in range(P3X, 4)]
    for h in range(2):
        b.append(f"s_add_u32 m0, {S_MW}, {slot + 16384 + 4096 * h}")
        b += [(f"buffer_load_dwordx4 v{V_WD+h}, {SRD_WS}, {S_SOW} offen offset:{1024*q}{SC} lds", tag) for q in range(4 - h)]
    return b + p3_wadv(S_SOW)
def p3_setup_w(st):
    st.e(f"s_mul_i32 {S_MW}, {S_WAVE}, 3584")
    st.e(f"s_mul_i32 s56, {S_CB}, 458752"); st.e(f"s_add_u32 s56, s56, {WS_ZN}")
    st.e(f"v_lshlrev_b32 v{V_WD}, 4, v1"); st.e(f"v_add_u32 v{V_WD}, s56, v{V_WD}")
    st.e(f"v_add_u32 v{V_WD}, {S_MW}, v{V_WD}")
    st.e(f"s_lshl_b32 s56, {S_WC}, 12")
    st.e(f"v_lshlrev_b32 v{V_WR+3}, 3, v1"); st.e(f"v_add_u32 v{V_WR+3}, s56, v{V_WR+3}")
    copies(st, V_WR + 3)
    st.e(f"s_mul_i32 {S_SOW}, {S_OFF}, {2 * 14336 * ROT3}")
    st.e(f"s_lshl_b32 s56, {S_RB}, 8"); st.e(f"s_lshl_b32 s57, {S_WR}, 7"); st.e("s_add_u32 s56, s56, s57")
    st.e(f"v_and_b32 v{V_T}, 15, v1"); st.e(f"v_lshlrev_b32 v{V_T}, 1, v{V_T}")
    for i in range(4): st.e(f"buffer_load_ushort v{V_B+i}, v{V_T}, {SRD_BSP}, s56 offen offset:{32*i}", tag='bsp')
def xread_natural(slot, i, hh, dst):
    r, imm = ldsaddr(V_XR + 3 * hh, slot + i * 2048)
    return f"ds_read_b128 {dst}, {r} offset:{imm}"
def p3_wread(slot, n, hh, db):
    out = []
    for sec in range(2):
        r, imm = ldsaddr(V_WR + 3, slot + 16384 + hh * 7168 + n * 1024 + sec * 512)
        out.append(f"ds_read_b64_tr_b16 {ar(db + 2*sec, 2)}, {r} offset:{imm}")
    return out
def p3_mf(s, hh, n, i, wf, xf):
    a = vr(accr(n, i), 4)
    return f"v_mfma_f32_16x16x32_bf16 {a}, {wf}, {xf}, {'0' if (s == 0 and hh == 0) else a}"
def p3_epilogue(st, NT):
    T = V_T
    st.wait(tag='bsp')
    for i in range(4): st.e(f"v_lshlrev_b32 v{V_B+i}, 16, v{V_B+i}")
    st.e(f"v_bfe_u32 v{T}, v1, 4, 1"); st.e(f"v_lshlrev_b32 v{T}, 10, v{T}")
    st.e(f"v_lshrrev_b32 v{T+1}, 5, v1"); st.e(f"v_lshl_or_b32 v{T}, v{T+1}, 8, v{T}")
    st.e(f"v_and_b32 v{T+1}, 15, v1"); st.e(f"v_lshl_or_b32 v{T}, v{T+1}, 4, v{T}")
    st.e(f"s_mul_i32 s61, {S_RB}, {88*8192}")
    st.e(f"s_lshl_b32 s57, {S_WR}, 12"); st.e("s_add_u32 s61, s61, s57")
    st.e(f"s_add_u32 s61, s61, {WS_XF + 32*8192}")
    st.e(f"s_mul_i32 s60, {S_CB}, 7")
    if NT == 3: st.e("s_add_u32 s60, s60, 4")
    for n in range(4):
        if n >= NT:
            st.e(f"s_mov_b32 s{56+n}, {WS_SIZE}")
            continue
        st.e(f"s_add_u32 s{56+n}, s60, {n}")
        st.e(f"s_lshr_b32 s62, s{56+n}, 1"); st.e("s_lshl_b32 s62, s62, 13")
        st.e(f"s_and_b32 s{56+n}, s{56+n}, 1"); st.e(f"s_lshl_b32 s{56+n}, s{56+n}, 9")
        st.e(f"s_add_u32 s{56+n}, s{56+n}, s62"); st.e(f"s_add_u32 s{56+n}, s{56+n}, s61")
    st.e("s_mov_b32 s60, 0xffff0000")
    k = 0
    for n in range(NT):
        for ip in (0, 2):
            u = TMP + 8 * (k % 2); o = UO + 4 * k; k += 1
            for d in range(2):
                i = ip + d; a = accr(n, i); z = ZP + (n * 4 + i) * 2
                for h in range(2):
                    st.e(f"v_lshlrev_b32 v{u+4*d+2*h}, 16, v{z+h}")
                    st.e(f"v_and_b32 v{u+4*d+2*h+1}, s60, v{z+h}")
                bp = V_B + (i // 2) * 2
                sel = "op_sel_hi:[1,0]" if i % 2 == 0 else "op_sel:[0,1] op_sel_hi:[1,1]"
                for h in range(2): st.e(f"v_pk_add_f32 {vr(a+2*h,2)}, {vr(a+2*h,2)}, {vr(bp,2)} {sel}")
                for h in range(2): st.e(f"v_pk_mul_f32 {vr(a+2*h,2)}, {vr(a+2*h,2)}, {vr(u+4*d+2*h,2)}")
                for h in range(2): st.e(f"v_cvt_pk_bf16_f32 v{o+2*d+h}, v{a+2*h}, v{a+2*h+1}")
            st.e(f"v_permlane16_swap_b32 v{o}, v{o+2}"); st.e(f"v_permlane16_swap_b32 v{o+1}, v{o+3}")
            if UEARLY: st.e(u_store(k - 1)[0], tag='u', count=False)
    emit_all(st, st.bg); st.bg = []
UEARLY = env('UEARLY', 1)
def u_store(k): return (f"buffer_store_dwordx4 {vr(UO+4*k,4)}, v{V_T}, {SRD_WS}, s{56+k//2} offen offset:{(k%2)*2048}{SC}", 'u')
def p3_all(st, **kw):
    l1 = st.newlabel("P3_WC1"); le = st.newlabel("P3_END")
    assert not st.bg
    st.e(f"s_cmp_eq_u32 {S_WC}, 1")
    st.e(f"s_cbranch_scc1 {l1}")
    vm0 = list(st.vm); res = []
    for NT in (4, 3):
        st.vm = list(vm0)
        if NT == 4:
            dm = lambda s: p3_x(s, P3X)
        else:
            st.label(l1)
            st.e(f"s_mul_i32 s56, {S_WR}, 7168")
            st.e(f"v_subrev_u32 v{V_WD}, {S_MW}, v{V_WD}"); st.e(f"v_add_u32 v{V_WD}, s56, v{V_WD}")
            st.e(f"v_add_u32 v{V_WD+1}, 4096, v{V_WD}")
            st.e(f"s_mov_b32 {S_MW}, s56")
            st.e(f"s_sub_u32 s68, {S_MX}, 4096")
            for q in range(P3X, 4): st.e(f"v_subrev_u32 v{V_WD+2+q}, {32*4096}, v{V_XD+q}")
            dm = p3_dma_wc1
        gemm(st, 'p3', 32, P3_NB, P3_SLOT, dm, xread_natural, p3_wread, p3_mf, 4, NT, grp=f"p3_{NT}", **kw)
        st.bg_every = 10 if NT == 4 else 8; st._bgc = 0
        p3_epilogue(st, NT)
        res.append(list(st.vm))
        if NT == 4:
            st.flush_hazards(); st.e(f"s_branch {le}")
    assert res[0] == res[1]
    if UEARLY: st.vm_mark('u')
    st.flush_hazards()
    st.label(le)

P4_SLOT = 24576; P4_NB = 6; P4_ROT = 3
XROT = env('XROT', 1)
def p4_setup_s(st):
    st.e(f"v_lshlrev_b32 v{V_XD}, 4, v1")
    st.e(f"s_mul_i32 s67, {S_RB}, {88*8192}")
    st.e(f"s_add_u32 s67, s67, {S_MX}"); st.e(f"s_add_u32 s67, s67, {WS_XF}")
    st.e(f"s_add_u32 s68, s67, {16*16384}")
    st.e(f"s_lshl_b32 {S_MW}, {S_WAVE}, 11")
    st.e(f"s_and_b32 {S_SOW}, {S_OFF}, {max(ROT4 - 1, 0)}")
    st.e(f"s_mov_b32 s66, {S_SOW}")
    st.e(f"s_lshl_b32 {S_SOX}, {S_SOW}, 14"); st.e(f"s_add_u32 {S_SOX}, {S_SOX}, s67")
    st.e(f"s_lshl_b32 {S_SOW}, {S_SOW}, 17")
def p4_dma(s):
    slot = ((s + P4_ROT) % P4_NB) * P4_SLOT
    tag = ('st', 'p4', s)
    b = [f"s_add_u32 m0, {S_MX}, {slot}"]
    b += [(f"buffer_load_dwordx4 v{V_XD}, {SRD_WS}, {S_SOX} offen offset:{1024*q}{SC} lds", tag) for q in range(4)]
    if s == 15:
        b.append(f"s_mov_b32 s67, s68\ns_add_u32 s68, s68, {28*16384}\ns_lshl_b32 {S_SOX}, s66, 14\ns_add_u32 {S_SOX}, {S_SOX}, s67")
    else:
        b.append(f"s_add_u32 {S_SOX}, {S_SOX}, {0 if NOINC else 16384}")
        b.append(f"s_cmp_eq_u32 {S_SOX}, s68\ns_cselect_b32 {S_SOX}, s67, {S_SOX}")
    b.append(f"s_add_u32 m0, {S_MW}, {slot + 16384}")
    b += [(f"buffer_load_dwordx4 v{V_WD+j}, {SRD_WO if s < 16 else SRD_WOUT}, {S_SOW} offen offset:{1024*j} lds", tag) for j in range(2)]
    if s == 15:
        b.append(f"s_lshl_b32 {S_SOW}, s66, 17")
    else:
        b.append(f"s_add_u32 {S_SOW}, {S_SOW}, {0 if NOINC else 64*2048}")
        b.append(f"s_cmp_eq_u32 {S_SOW}, {(16 if s < 16 else 28) * 64 * 2048}\ns_cselect_b32 {S_SOW}, 0, {S_SOW}")
    return b
def p4_xread(slot, i, hh, dst):
    r, imm = ldsaddr(V_XR, slot + hh * 8192 + i * 1024)
    return f"ds_read_b128 {dst}, {r} offset:{imm}"
def p4_wread(slot, n, hh, db):
    out = []
    for sec in range(2):
        r, imm = ldsaddr(V_WR + 3 * n, slot + 16384 + hh * 4096 + sec * 512)
        out.append(f"ds_read_b64_tr_b16 {ar(db + 2*sec, 2)}, {r} offset:{imm}")
    return out
def p4_mf(s, hh, n, i, wf, xf):
    a = vr(accr(n, i, ACC if s < 16 else ACC + 32), 4)
    return f"v_mfma_f32_16x16x32_bf16 {a}, {wf}, {xf}, {'0' if (s in (0, 16) and hh == 0) else a}"
def p4_gate_load(st):
    st.e(f"s_lshl_b32 s56, {S_RB}, 9"); st.e(f"s_lshl_b32 s57, {S_WR}, 8"); st.e("s_add_u32 s56, s56, s57")
    st.e(f"s_add_u32 s56, s56, {WS_G}")
    st.e(f"v_and_b32 v{V_T+6}, 15, v1"); st.e(f"v_lshlrev_b32 v{V_T+6}, 2, v{V_T+6}")
    for i in range(4): st.e(f"buffer_load_dword v{V_G+i}, v{V_T+6}, {SRD_WS}, s56 offen offset:{64*i}{SC}", tag='gld')
    T = V_T
    st.e(f"v_and_b32 v{T}, 15, v1"); st.e(f"v_lshlrev_b32 v{T}, 11, v{T}")
    st.e(f"v_bfe_u32 v{T+1}, v1, 4, 1"); st.e(f"v_lshl_or_b32 v{T}, v{T+1}, 5, v{T}")
    st.e(f"v_lshrrev_b32 v{T+1}, 5, v1"); st.e(f"v_lshl_or_b32 v{T}, v{T+1}, 4, v{T}")
    st.e(f"s_lshl_b32 s56, {S_RB}, 18"); st.e(f"s_lshl_b32 s57, {S_WR}, 17"); st.e("s_add_u32 s56, s56, s57")
    st.e(f"s_lshl_b32 s57, {S_CB}, 7"); st.e("s_add_u32 s56, s56, s57")
    st.e(f"s_lshl_b32 s57, {S_WC}, 6"); st.e("s_add_u32 s56, s56, s57")
def p4_epilogue(st):
    st.wait(tag='gld')
    for i in range(4):
        u = TMP + 4 * i
        bp = V_G + (i // 2) * 2
        sel = "op_sel_hi:[1,0,1]" if i % 2 == 0 else "op_sel:[0,1,0] op_sel_hi:[1,1,1]"
        for n in range(2):
            a = accr(n, i); b = a + 32
            for h in range(2): st.e(f"v_pk_add_f32 {vr(a+2*h,2)}, {vr(a+2*h,2)}, {vr(b+2*h,2)} neg_lo:[0,1] neg_hi:[0,1]")
            for h in range(2): st.e(f"v_pk_fma_f32 {vr(a+2*h,2)}, {vr(a+2*h,2)}, {vr(bp,2)}, {vr(b+2*h,2)} {sel}")
            for h in range(2): st.e(f"v_cvt_pk_bf16_f32 v{u+2*n+h}, v{a+2*h}, v{a+2*h+1}")
        st.e(f"v_permlane16_swap_b32 v{u}, v{u+2}"); st.e(f"v_permlane16_swap_b32 v{u+1}, v{u+3}")
        st.e(f"buffer_store_dwordx4 {vr(u,4)}, v{V_T}, {SRD_OUT}, s56 offen", tag='out')
        if i < 3: st.e("s_add_u32 s56, s56, 32768")

def stash(st, vregs, a0):
    for k, v in enumerate(vregs): st.e(f"v_accvgpr_write_b32 a{a0+k}, v{v}")
def unstash(vregs, a0): return [f"v_accvgpr_read_b32 v{v}, a{a0+k}" for k, v in enumerate(vregs)]
KVCHK = env('KVCHK', 0); UCHK = env('UCHK', 11); UPUB = env('UPUB', 3); LN0 = env('LN0', 17)

def chk_retired(st, tag):
    assert st.vmcnt_for(tag)[0] is None, tag
def tlb_warm(st):
    st.e("v_mov_b32 v244, 0"); st.e("v_mov_b32 v245, 0")
    st.e("s_mov_b64 exec, 1")
    st.e(f"s_lshl_b32 s56, {S_CB}, 1"); st.e(f"s_add_u32 s56, s56, {S_WC}"); st.e("s_lshl_b32 s56, s56, 18")
    st.e(f"s_lshl_b32 s57, {S_RB}, 14"); st.e("s_add_u32 s56, s56, s57"); st.e(f"s_lshl_b32 s57, {S_WR}, 13"); st.e("s_add_u32 s56, s56, s57")
    st.e(f"buffer_store_dword v244, v245, {SRD_WS}, s56 offen sc1", tag='tlb')
    st.e(f"s_mul_i32 s56, {S_CB}, 458752"); st.e(f"s_lshl_b32 s57, {S_RB}, 1"); st.e(f"s_add_u32 s57, s57, {S_WR}"); st.e("s_mul_i32 s57, s57, 14336")
    st.e("s_add_u32 s56, s56, s57"); st.e(f"s_lshl_b32 s57, {S_WC}, 12"); st.e("s_add_u32 s56, s56, s57"); st.e(f"s_add_u32 s56, s56, {WS_ZN}")
    st.e(f"buffer_store_dword v244, v245, {SRD_WS}, s56 offen sc1", tag='tlb')
    st.e(f"s_mul_i32 s56, {S_RB}, {88*8192}"); st.e(f"s_lshl_b32 s57, {S_CB}, 14"); st.e("s_add_u32 s56, s56, s57")
    st.e(f"s_lshl_b32 s57, {S_WC}, 13"); st.e("s_add_u32 s56, s56, s57"); st.e(f"s_lshl_b32 s57, {S_WR}, 12"); st.e("s_add_u32 s56, s56, s57")
    st.e(f"s_add_u32 s56, s56, {WS_XF}")
    st.e(f"buffer_store_dword v244, v245, {SRD_WS}, s56 offen sc1", tag='tlb')
    st.e(f"s_lshl_b32 s56, {S_RB}, 18"); st.e(f"s_lshl_b32 s57, {S_WR}, 17"); st.e("s_add_u32 s56, s56, s57")
    st.e(f"s_lshl_b32 s57, {S_CB}, 7"); st.e("s_add_u32 s56, s56, s57"); st.e(f"s_lshl_b32 s57, {S_WC}, 6"); st.e("s_add_u32 s56, s56, s57")
    st.e(f"buffer_store_dword v244, v245, {SRD_OUT}, s56 offen sc1", tag='tlb')
    st.e(f"s_lshl_b32 s56, {S_G}, 13")
    st.e(f"buffer_load_dword v244, v245, {SRD_WSP}, s56 offen", tag='tlb')
    st.e(f"s_lshl_b32 s56, {S_G}, 11")
    st.e(f"buffer_load_dword v244, v245, {SRD_WO}, s56 offen", tag='tlb')
    st.e(f"s_mul_i32 s56, {S_G}, 3584")
    st.e(f"buffer_load_dword v244, v245, {SRD_WOUT}, s56 offen", tag='tlb')
    st.e(f"s_mul_i32 s56, {S_G}, 7168")
    st.e(f"buffer_load_dword v244, v245, {SRD_WIN}, s56 offen", tag='tlb')
    st.e("s_mov_b64 exec, -1")
def precompute(st):
    R = 170; T = 182
    stash(st, [V_XR], A_XR); stash(st, [V_WR], A_4WR)
    p1b_regs(st, R, T); stash(st, range(R, R + 10), A_1BWD)
    flags_setup(st)
    xd_natural(st, 4096, R, T); stash(st, range(R, R + 4), A_3XD)
    wd128_lane(st, R, T, 2048)
    st.e(f"s_lshl_b32 s56, {S_WAVE}, 15"); st.e(f"s_lshl_b32 s57, {S_CB}, 7"); st.e("s_add_u32 s56, s56, s57")
    st.e(f"v_xor_b32 v{R+1}, 64, v{R}")
    st.e(f"v_add_u32 v{R}, s56, v{R}")
    st.e(f"s_add_u32 s56, s56, {8*2048 - 1024}")
    st.e(f"v_add_u32 v{R+1}, s56, v{R+1}")
    stash(st, [R, R + 1], A_4WD)
    gate_finish(st)
def fused(st):
    stamp(st, 'setup')
    gate_issue(st)
    st.bg = flat(p1a_dma(k) for k in range(1, 4)); st.bg_every = BG0
    p1a_setup_reads(st)
    precompute(st)
    stamp(st, 'pre')
    win = lambda p: (lambda st: emit_all(st, sweep_items(SRD_WIN, 1024 * 3584 * 2, p, 4, V_S16, V_TD)))
    at = {}
    def add(key, f):
        g = at.get(key)
        at[key] = (lambda st: (g(st), f(st))) if g else f
    for e in range(SW0, 8 if SW1A else 0): add((2 * (e - SW0), 'B'), lambda st, e=e: sweep_1a(st, e))
    if SWW:
        for s_ in range(0, 12): add((s_, 'B'), lambda st, s_=s_: st.wait(tag=('sw', min(7, (s_ + 4 + ROT - 1) // 2))))
    if env('TLBW', 0): add((1, 'A'), tlb_warm)
    w0 = env('WIN0', 7); wd = env('WIND', 2)
    for p in range(4): add((w0 + wd * p, 'A'), win(p))
    add((12, 'A'), lambda st: stamp(st, '1a_s12'))
    pre1b = lambda: unstash(range(V_WD, V_WD + 7), A_1BWD) + p1_soff(7168, 7168)
    gemm(st, 'p1a', 16, P1A_NB, P1A_SLOT, p1a_dma, xread_natural, p1a_wread, p1a_mf, 4, 6, first_stamp='1a_first', at=at,
         nxt={13: lambda: pre1b() + p1b_dma(0), 14: lambda: p1b_dma(1), 15: lambda: p1b_dma(2)})
    stamp(st, '1a_main')
    tag_setup(st)
    st.bg_every = EPIBG
    p1_epi_qkv(st)
    for t in unstash([V_WR, V_WR + 3, V_W3], A_1BWR): st.e(t)
    copies(st, V_WR); copies(st, V_WR + 3); copies(st, V_W3)
    stamp(st, '1a_epi')
    pre2 = lambda: [f"v_lshlrev_b32 v{V_L16}, 4, v1"] + rec(kv_start) + flat(unit_loads(u) for u in range(-1, RING - 1))
    gemm(st, 'p1b', 16, P1B_NB, P1B_SLOT, p1b_dma, xread_natural, p1b_wread, p1b_mf, 4, 7, first_stamp='y_' + '1b_first',
         publish=(1, ['kv', 'gst'], 2), nxt={15: pre2},
         at={(4, 'A'): lambda st: stamp(st, 'y_' + '1b_s4'),
             (13, 'A'): lambda st: poll_issue(st, 'cb', 'pkv'), (15, 'A'): lambda st: poll_check(st, 'cb', 'pkv', 1)})
    stamp(st, '1b_main')
    st.bg_every = 16
    p1_epi_z(st, {})
    emit_all(st, st.bg); st.bg = []
    stamp(st, '1b_epi')
    VS = 21
    def sweep2_setup(st):
        st.e(f"v_and_b32 v{VS}, 15, v1"); st.e(f"v_lshlrev_b32 v{VS}, 7, v{VS}")
        for t in unstash(range(V_XD, V_XD + 4), A_3XD): st.e(t)
        st.e(f"s_mul_i32 {S_SOX}, {S_OFF}, {256 * ROT3}")
    hooks = {
        1: lambda st: (stamp(st, 'att1'), sweep2_setup(st)),
        5: lambda st: drain_publish(st, 2, 'stat'),
        LN0 - 3: lambda st: poll_issue(st, 'rb', 'pst'),
        LN0: lambda st: (poll_check(st, 'rb', 'pst', 2), ln_load(st, 0)),
        LN0 + 3: lambda st: (stamp(st, 'att20'), ln_accum(st, 0), ln_load(st, 1)),
        LN0 + 6: lambda st: (ln_accum(st, 1), ln_final(st)),
        LN0 + 18: lambda st: drain_publish(st, 3, 'zn'),
        40: lambda st: stamp(st, 'y_' + 'att40'),
        49: lambda st: poll_issue(st, 'cb', 'pzn'),
        52: lambda st: (poll_check(st, 'cb', 'pzn', 3), p3_setup_w(st)),
    }
    extras = {}
    for p in range(4): extras[4 + 4 * p] = [sweep_items(SRD_WSP, 2048 * 2048 * 2, p, 4, VS, 19)]
    zs = zn_stores()
    for k in range(8): extras[LN0 + 7 + k] = zs[2 * k:2 * k + 2]
    for p in range(2): extras[LN0 + 2 + 14 * p] = [sweep_items(SRD_WOUT, 1792 * 1024 * 2, p, 2, VS, 19)]
    extras[37] = [sweep_items(SRD_WO, 1024 * 1024 * 2, 0, 1, VS, 19)]
    for s_ in range(P3_NB):
        d = p3_x(s_)
        extras[39 + 2 * s_] = [d[0:2], d[2]]; extras[40 + 2 * s_] = [d[3], d[4:]]
        d = p3_w_pro(s_)
        extras[53 + 2 * s_] = [d[0:2], d[2]]; extras[54 + 2 * s_] = [d[3], d[4:]]
    if env('ATT_TEST', 0):
        hooks = {8: lambda st: stamp(st, 'att8'), 49: lambda st: stamp(st, 'att49')}; extras = {}
        if env('ATT_TEST', 0) == 2:
            for j in range(9, 49): hooks[j] = (lambda st, j=j: st.e(f"; tile {j}"))
        att_main(st, hooks, extras, RING - 1)
        return
    att_main(st, hooks, extras, RING - 1)
    for t in unstash([V_XR], A_XR): st.e(t)
    st.e(f"v_xor_b32 v{V_XR+3}, 64, v{V_XR}")
    copies(st, V_XR); copies(st, V_XR + 3)
    stamp(st, 'att_epi')
    pre4 = lambda: unstash([V_WD, V_WD + 1], A_4WD) + rec(p4_setup_s)
    p3_all(st, publish=(4, ['o'], 3), first_stamp='y_' + '3_first',
           nxt={28: lambda: pre4() + p4_dma(0) + p4_dma(1), 29: lambda: p4_dma(2), 30: lambda: p4_dma(3), 31: lambda: p4_dma(4) + p4_dma(5)},
           at={(6, 'A'): lambda st: stamp(st, '3_s6'), (26, 'A'): lambda st: stamp(st, '3_s26'),
               (26, 'B'): lambda st: poll_issue(st, 'rb', 'po'), (28, 'A'): lambda st: poll_check(st, 'rb', 'po', 4)})
    stamp(st, '3_epi')
    for t in unstash([V_WR], A_4WR): st.e(t)
    st.e(f"v_xor_b32 v{V_WR+3}, 32, v{V_WR}")
    copies(st, V_WR); copies(st, V_WR + 3)
    st.e(f"s_lshl_b32 s60, {S_WR}, 12")
    st.e(f"v_add_u32 v{V_XR}, s60, v{V_XD}")
    copies(st, V_XR)
    at = {(UCHK - 2, 'B'): lambda st: poll_issue(st, 'rb', 'pu'), (10, 'A'): lambda st: stamp(st, '4_s10'),
          (UCHK, 'B'): lambda st: poll_check(st, 'rb', 'pu', 5), (17, 'A'): lambda st: stamp(st, '4_s17'),
          (36, 'A'): p4_gate_load}
    if not UEARLY:
        emit_all(st, [u_store(0), u_store(1)])
        for k in range(2, 8): at[((k - 2) // 2, 'AB'[k % 2])] = (lambda st, k=k: emit_filler(st, u_store(k)))
    gemm(st, 'p4', 44, P4_NB, P4_SLOT, p4_dma, p4_xread, p4_wread, p4_mf, 4, 2, rot=P4_ROT, PF=2,
         publish=(5, ['u'], UPUB), first_stamp='4_first', at=at, hold=(16, UCHK))
    p4_epilogue(st)
    gen_advance(st)
SWD = env('SWD', 2); KVPUB = env('KVPUB', 7)

def build():
    kname = NAME + "_kernel"
    ref = open(os.path.join(os.path.dirname(os.path.abspath(__file__)), "..", "cdna_kernels", NAME + ".s.ref")).read()
    head = [l for l in ref.splitlines() if l.startswith(";") and "@launch" not in l]
    out = "\n".join(head) + "\n"
    if env('LIST', 0): out += f"; @launch kernel={kname} grid=(256,1,1) block=(256,1,1) lds=163840\n"
    else: out += "; @launch grid=(256,1,1) block=(256,1,1) lds=163840\n"
    out += '.amdgcn_target "amdgcn-amd-amdhsa--gfx950"\n.text\n'
    st = Stream()
    st.endlabel = "KERNEL_END"
    st.stamp_names = ['start']
    if STAMPS: st.e("s_memtime s[98:99]" if CYC else "s_memrealtime s[98:99]")
    setup(st)
    if STAMPS: st.e("s_mov_b32 s70, s98")
    fused(st)
    write_stamps(st)
    st.label(st.endlabel)
    st.e("s_endpgm")
    sys.stderr.write(f"{len(st.ins)} instrs (unrolled), nops added {st.nops_added}\n")
    out += f".globl {kname}\n.p2align 8\n.type {kname},@function\n{kname}:\n" + st.text()
    out += f"\n.set CODE_BYTES, ({st.endlabel} - {kname} - 512) & 0xffffff00\n"
    out += f""".section .rodata,"a"
.p2align 6
.amdhsa_kernel {kname}
  .amdhsa_next_free_vgpr 512
  .amdhsa_next_free_sgpr 102
  .amdhsa_accum_offset 256
  .amdhsa_group_segment_fixed_size 0
  .amdhsa_kernarg_size 96
  .amdhsa_user_sgpr_count 2
  .amdhsa_user_sgpr_kernarg_segment_ptr 1
  .amdhsa_system_sgpr_workgroup_id_x 1
  .amdhsa_float_denorm_mode_32 3
.end_amdhsa_kernel
"""
    return out

if __name__ == "__main__":
    open(sys.argv[1], "w").write(build())
```

```python
import sys, os, math, struct
sys.path.insert(0, os.path.dirname(os.path.abspath(__file__)))
from asmlib import *

NAME = "gated_mix__mha_block__mixer_gmlp__prompt"
MB = 1 << 20
WS_KV = 0
WS_ZN = 16 * MB
WS_XF = 24 * MB
WS_ST = 36 * MB
WS_G = 37 * MB
WS_TS = 38 * MB
WS_SIZE = 40 * MB
env = lambda k, d: int(os.environ.get(k, d))
STAMPS = env('STAMPS', 0); CYC = env('CYC', 0); NOINC = env('NOINC', 0); NOTOUCH = env('NOTOUCH', 0)
ROT = env('ROT', 2); ROT3 = 0; ROT4 = env('ROT4', 4)
SC = ' sc1'

def f2u(x): return struct.unpack('<I', struct.pack('<f', x))[0]
def vr(b, n): return f"v[{b}:{b+n-1}]"
def ar(b, n): return f"a[{b}:{b+n-1}]"

S_WAVE, S_WR, S_WC, S_RB, S_CB = 's3', 's4', 's5', 's6', 's7'
SRD_X, SRD_WQKV, SRD_WIN, SRD_WSP, SRD_WO, SRD_WOUT, SRD_WS, SRD_OUT, SRD_BSP, SRD_GATE, SRD_DBG = [f"s[{8+4*i}:{11+4*i}]" for i in range(11)]
S_SOX, S_SOW, S_MX, S_MW = 's52', 's53', 's54', 's55'
S_KV, S_HB, S_OFF, S_G = 's64', 's65', 's69', 's100'

def isdma(d): return not (isinstance(d, str) and d.startswith(("s_", "v_")))
def ndma(items): return sum(1 for x in items if isdma(x))
def emit_all(st, items):
    for x in items: emit_filler(st, x)
def flat(items):
    out = []
    for s_ in items: out += s_
    return out
class Rec:
    def __init__(self): self.l = []
    def e(self, text, tag=None, count=True): self.l.append((text, tag) if tag is not None else text)
def rec(fn, *a, main=None):
    r = Rec(); r.main = main; fn(r, *a); return r.l

NSTAMP = 21
def stamp(st, name):
    if not STAMPS: return
    sel = os.environ.get('STAMPSET')
    if sel and not (name.startswith(tuple(sel.split(','))) or name == 'end'): return
    if not sel and name.startswith(('x', 'y')): return
    names = st.stamp_names
    if name not in names: names.append(name)
    idx = names.index(name)
    assert idx < NSTAMP
    st.nobg(True)
    st.e("s_memtime s[96:97]" if CYC else "s_memrealtime s[96:97]")
    st.e("s_waitcnt lgkmcnt(0)")
    st.e(f"s_mov_b32 s{70+idx}, s96")
    st.nobg(False)
def write_stamps(st):
    if not STAMPS: return
    st.e("s_waitcnt vmcnt(0)")
    stamp(st, 'end')
    if env('DBGOUT', 0):
        st.e("s_load_dwordx2 s[56:57], s[0:1], 80")
        st.e("s_waitcnt lgkmcnt(0)")
        st.e("s_mov_b32 s48, s56"); st.e("s_and_b32 s49, s57, 0xffff"); st.e("s_mov_b32 s50, 256"); st.e("s_mov_b32 s51, 0x20000")
        st.e("s_mov_b64 exec, 1")
        st.e("v_mov_b32 v2, 0")
        st.e("s_not_b32 s70, s70")
        for i in range(len(st.stamp_names)):
            st.e(f"v_mov_b32 v3, s{70+i}")
            st.e(f"buffer_atomic_umax v3, v2, {SRD_DBG}, 0 offen offset:{4*i}")
        sys.stderr.write(",".join(st.stamp_names) + "\n")
        return
    st.e(f"s_lshl_b32 s56, {S_G}, 7")
    st.e(f"s_add_u32 s56, s56, {WS_TS}")
    st.e("v_mov_b32 v2, 0")
    for i in range(len(st.stamp_names)):
        st.e(f"v_mov_b32 v3, s{70+i}")
        st.e(f"buffer_store_dword v3, v2, {SRD_WS}, s56 offen offset:{4*i}")
    open(sys.argv[1] + ".names", "w").write(",".join(st.stamp_names) + "\n")

def merge(reads, dm, G):
    gaps = [[] for _ in range(G)]
    nd = ndma(dm)
    pos = [min(G - 1, (2 * k + 1) * G // (2 * nd)) for k in range(nd)] if nd else []
    k = 0; last = 0
    dg = set(pos)
    post = [[] for _ in range(G)]
    for d in dm:
        if isdma(d):
            post[pos[k]].append(d); last = pos[k]; k += 1
        elif 'm0' in d:
            g = max(pos[k] - 1, last) if k < nd else G - 1
            post[g].append(d); last = g
        else:
            g = min(last + 1, G - 1) if (k < nd and last + 1 < pos[k]) or k >= nd else last
            post[g].append(d); last = g
    free = [g for g in range(G) if g not in dg]
    R = len(reads)
    if R <= len(free):
        for r, g in zip(reads, free): gaps[g].append(r)
    else:
        for j, r in enumerate(reads): gaps[j * G // R].append(r)
    return [gaps[g] + post[g] for g in range(G)]

def setup(st):
    st.e("s_cmp_ge_u32 s2, 256")
    st.e("s_cbranch_scc1 " + st.endlabel)
    st.e("s_load_dwordx16 s[64:79], s[0:1], 0")
    st.e("s_load_dwordx8 s[80:87], s[0:1], 64")
    st.e("v_lshrrev_b32 v2, 6, v0")
    st.e("v_and_b32 v1, 63, v0")
    st.e(f"v_readfirstlane_b32 {S_WAVE}, v2")
    st.e("s_and_b32 s56, s2, 1"); st.e("s_lshl_b32 s56, s56, 3")
    st.e("s_bfe_u32 s57, s2, 0x30003")
    st.e(f"s_or_b32 {S_RB}, s56, s57")
    st.e("s_bfe_u32 s56, s2, 0x20001"); st.e("s_lshl_b32 s56, s56, 2")
    st.e("s_lshr_b32 s58, s2, 6")
    st.e(f"s_or_b32 {S_CB}, s56, s58")
    st.e("s_add_u32 s101, s57, s58")
    st.e(f"s_lshr_b32 {S_WR}, {S_WAVE}, 1")
    st.e(f"s_and_b32 {S_WC}, {S_WAVE}, 1")
    st.e(f"s_lshl_b32 {S_G}, s2, 2"); st.e(f"s_add_u32 {S_G}, {S_G}, {S_WAVE}")
    st.e(f"s_lshl_b32 {S_MX}, {S_WAVE}, 12")
    sweep_setup(st)
    st.e("s_waitcnt lgkmcnt(0)")
    def srd(base, ptr, size):
        st.e(f"s_mov_b32 s{base}, s{ptr}")
        st.e(f"s_and_b32 s{base+1}, s{ptr+1}, 0xffff")
        st.e(f"s_mov_b32 s{base+2}, {size}")
        st.e(f"s_mov_b32 s{base+3}, 0x20000")
    srd(8, 64, 2048 * 1024 * 2)
    srd(12, 66, 1024 * 3072 * 2)
    st.e("s_mov_b32 s63, s69")
    st.e(f"s_mov_b32 {S_OFF}, s101")
    p1a_setup(st)
    emit_all(st, p1a_dma(0))
    for e in range(SW0): sweep_1a(st, e)
    touch_code(st)
    srd(16, 72, 1024 * 3584 * 2)
    srd(20, 74, 2048 * 2048 * 2)
    st.e("s_mov_b32 s24, s68"); st.e("s_and_b32 s25, s63, 0xffff"); st.e(f"s_mov_b32 s26, {1024*1024*2}"); st.e("s_mov_b32 s27, 0x20000")
    srd(28, 78, 1792 * 1024 * 2)
    srd(32, 86, WS_SIZE)
    srd(36, 82, 2048 * 1024 * 2)
    srd(40, 76, 4096)
    srd(44, 80, 2048)
    gen_load(st)
SWFIRST = env('SWFIRST', 0); VPER = env('VPER', 16); PRE1 = env('PRE1', 1); GLATE = env('GLATE', 1)

SW0 = env('SW0', 3); SWW = env('SWW', 0); BG0 = env('BG0', 12); EPIBG = env('EPIBG', 1000); SW1A = env('SW1A', 1)
V_S16, V_TX, V_TD = 240, 241, 242
def sweep_setup(st):
    st.e(f"v_and_b32 v{V_S16}, 15, v1"); st.e(f"v_lshlrev_b32 v{V_S16}, 7, v{V_S16}")
    st.e(f"v_bfe_u32 v{V_TX}, v1, 1, 1"); st.e(f"v_lshlrev_b32 v{V_TX}, 11, v{V_TX}")
    st.e(f"v_and_b32 v{V_TD}, 1, v1"); st.e(f"v_lshl_add_u32 v{V_TX}, v{V_TD}, 7, v{V_TX}")
    st.e(f"v_and_b32 v243, 7, v1"); st.e(f"v_min_u32 v243, 5, v243"); st.e(f"v_lshlrev_b32 v243, 7, v243")
def sweep_items(srd, nbytes, piece, npieces, va, vd):
    if NOTOUCH: return []
    pc = nbytes // npieces
    return [f"s_mul_i32 s62, {S_G}, {pc // 1024}", f"s_add_u32 s62, s62, {piece * pc}",
            (f"buffer_load_dword v{vd}, v{va}, {srd}, s62 offen", 'touch')]
def sweep_1a(st, e):
    if NOTOUCH: return
    st.e(f"s_lshl_b32 s62, {S_G}, 12")
    st.e(f"buffer_load_dword v{V_TD}, v{V_TX}, {SRD_X}, s62 offen offset:{e * 256}", tag=('sw', e))
    st.e(f"s_mul_i32 s62, {S_G}, 768"); st.e(f"s_add_u32 s62, s62, {e * 128 * 6144}")
    st.e(f"buffer_load_dword v{V_TD}, v243, {SRD_WQKV}, s62 offen", tag=('sw', e))
def touch_code(st):
    if NOTOUCH: return
    st.e("s_getpc_b64 s[58:59]")
    st.e("s_and_b32 s58, s58, 0xffffff00")
    st.e("s_lshr_b32 s56, s2, 3"); st.e("s_lshl_b32 s56, s56, 2")
    st.e(f"s_add_u32 s56, s56, {S_WAVE}")
    st.e("s_lshl_b32 s56, s56, 10")
    st.e("s_min_u32 s56, s56, CODE_BYTES - 1024")
    st.e("v_lshlrev_b32 v244, 4, v1")
    st.e("v_add_u32 v244, s56, v244")
    st.e(f"global_load_dword v{V_TD}, v244, s[58:59]", tag='touch')

WS_FL = 37 * MB + 65536
S_TAG, S_GEN = 's94', 's95'
def gen_load(st):
    st.e(f"s_add_u32 s86, s86, {WS_FL + 8192}"); st.e("s_addc_u32 s87, s87, 0")
    st.e(f"s_load_dword {S_GEN}, s[86:87], 0")
def flags_setup(st):
    st.e("v_and_b32 v252, 15, v1"); st.e("v_lshlrev_b32 v252, 2, v252")
    st.e(f"s_lshl_b32 s56, {S_RB}, 7"); st.e(f"s_add_u32 s56, s56, {WS_FL}")
    st.e("v_add_u32 v253, s56, v252")
    st.e(f"s_lshl_b32 s57, {S_CB}, 2"); st.e("s_add_u32 s92, s56, s57")
    st.e(f"s_lshl_b32 s56, {S_CB}, 7"); st.e(f"s_add_u32 s56, s56, {WS_FL + 4096}")
    st.e("v_add_u32 v254, s56, v252")
    st.e(f"s_lshl_b32 s57, {S_RB}, 2"); st.e("s_add_u32 s93, s56, s57")
    st.e("v_mov_b32 v255, 0")
def tag_setup(st):
    st.e(f"s_mul_i32 {S_TAG}, {S_GEN}, 0x9e3779b1"); st.e(f"s_add_u32 {S_TAG}, {S_TAG}, 0x7f4a7c15")
    st.e(f"s_and_b32 {S_TAG}, {S_TAG}, 0xfffffff8")
def do_publish(st, val):
    l = st.newlabel("PUB")
    st.nobg(True)
    st.e(f"s_cmp_lg_u32 {S_WAVE}, {PUBW}")
    st.e(f"s_cbranch_scc1 {l}")
    st.e(f"s_add_u32 s99, {S_TAG}, {val}")
    st.e("v_mov_b32 v0, s99")
    st.e("s_mov_b64 exec, 1")
    st.e(f"buffer_store_dword v0, v255, {SRD_WS}, {'s93' if val in (1, 3) else 's92'} offen sc1", count=False)
    st.e("s_mov_b64 exec, -1")
    st.label(l, soft=True)
    st.nobg(False)
PUBW = env('PUBW', 1)
def gen_advance(st):
    l = st.newlabel("GEN")
    st.e(f"s_cmp_lg_u32 {S_G}, 0")
    st.e(f"s_cbranch_scc1 {l}")
    st.e(f"s_add_u32 s99, {S_GEN}, 1")
    st.e("v_mov_b32 v0, s99")
    st.e(f"s_mov_b32 s99, {WS_FL + 8192}")
    st.e("s_mov_b64 exec, 1")
    st.e(f"buffer_store_dword v0, v255, {SRD_WS}, s99 offen sc1", count=False)
    st.e("s_mov_b64 exec, -1")
    st.label(l, soft=True)
def drain_publish(st, val, tag):
    st.wait(tag=tag)
    st.e("s_barrier")
    do_publish(st, val)
def poll_issue(st, grp, tag):
    st.e(f"buffer_load_dword v252, v{253 if grp == 'rb' else 254}, {SRD_WS}, 0 offen sc1", tag=tag)
def poll_check(st, grp, tag, val):
    st.wait(tag=tag)
    ok = st.newlabel("POK"); lp = st.newlabel("PSPIN")
    st.nobg(True)
    st.e(f"s_add_u32 s91, {S_TAG}, {val}")
    st.e("v_subrev_u32 v252, s91, v252")
    st.e(f"v_cmp_lt_u32 vcc, {7 - val}, v252")
    st.e(f"s_cbranch_vccz {ok}")
    st.e("s_mov_b32 s99, 0x8000")
    st.label(lp, soft=True)
    st.e("s_sleep 2")
    st.e(f"buffer_load_dword v252, v{253 if grp == 'rb' else 254}, {SRD_WS}, 0 offen sc1", count=False)
    st.e("s_sub_u32 s99, s99, 1")
    st.e(f"s_cbranch_scc1 {ok}")
    st.e("s_waitcnt vmcnt(0)")
    st.e("v_subrev_u32 v252, s91, v252")
    st.e(f"v_cmp_lt_u32 vcc, {7 - val}, v252")
    st.e(f"s_cbranch_vccnz {lp}")
    st.label(ok, soft=True)
    st.nobg(False)

def xd_natural(st, rowstride, D, T):
    st.e(f"s_lshl_b32 s56, {S_RB}, 7"); st.e(f"s_lshl_b32 s57, {S_WAVE}, 5"); st.e("s_add_u32 s56, s56, s57")
    st.e(f"v_lshrrev_b32 v{T}, 3, v1")
    st.e(f"v_add_u32 v{T}, s56, v{T}")
    st.e(f"v_lshlrev_b32 v{T}, {rowstride.bit_length() - 1}, v{T}")
    st.e(f"v_lshrrev_b32 v{T+1}, 4, v1")
    st.e(f"v_and_b32 v{T+2}, 7, v1")
    st.e(f"v_xor_b32 v{T+1}, v{T+1}, v{T+2}")
    st.e(f"v_lshlrev_b32 v{T+1}, 4, v{T+1}")
    st.e(f"v_add_u32 v{D}, v{T}, v{T+1}")
    st.e(f"v_xor_b32 v{T+1}, 64, v{T+1}")
    st.e(f"v_add_u32 v{T+1}, v{T}, v{T+1}")
    st.e(f"v_add_u32 v{D+1}, {8*rowstride - 1024}, v{T+1}")
    st.e(f"v_add_u32 v{D+2}, {16*rowstride - 2048}, v{D}")
    st.e(f"v_add_u32 v{D+3}, {24*rowstride - 3072}, v{T+1}")
def xr_natural(st, D, T):
    st.e(f"v_and_b32 v{T}, 15, v1")
    st.e(f"v_lshrrev_b32 v{T+1}, 1, v{T}")
    st.e(f"v_lshrrev_b32 v{T+2}, 4, v1")
    st.e(f"v_xor_b32 v{T+1}, v{T+1}, v{T+2}")
    st.e(f"v_lshlrev_b32 v{T+1}, 4, v{T+1}")
    st.e(f"v_lshl_add_u32 v{T+1}, v{T}, 7, v{T+1}")
    st.e(f"s_lshl_b32 s56, {S_WR}, 13")
    st.e(f"v_add_u32 v{D}, s56, v{T+1}")
def wr128(st, D, T, gstride, base):
    st.e(f"v_lshrrev_b32 v{T}, 4, v1")
    st.e(f"v_bfe_u32 v{T+1}, v1, 2, 2")
    st.e(f"v_mul_u32_u24 v{T+2}, {gstride}, v{T}")
    st.e(f"v_lshl_add_u32 v{T+2}, v{T+1}, 7, v{T+2}")
    st.e(f"v_and_b32 v{T+3}, 3, v1")
    st.e(f"v_lshl_add_u32 v{T+2}, v{T+3}, 3, v{T+2}")
    st.e(f"v_lshrrev_b32 v{T+1}, 1, v{T+1}")
    st.e(f"v_and_b32 v{T}, 1, v{T}")
    st.e(f"v_lshl_or_b32 v{T}, v{T}, 1, v{T+1}")
    st.e(f"s_lshl_b32 s56, {S_WC}, 1")
    st.e(f"v_xor_b32 v{T}, s56, v{T}")
    st.e(f"v_lshl_add_u32 v{D}, v{T}, 5, v{T+2}")
    if base: st.e(f"v_add_u32 v{D}, {base}, v{D}")
def wd128_lane(st, D, T, rowstride):
    st.e(f"v_lshrrev_b32 v{T}, 3, v1")
    st.e(f"v_mul_u32_u24 v{T}, {rowstride}, v{T}")
    st.e(f"v_bfe_u32 v{T+1}, v1, 1, 2")
    st.e(f"v_bfe_u32 v{T+2}, v1, 4, 1")
    st.e(f"v_xor_b32 v{T+1}, v{T+1}, v{T+2}")
    st.e(f"v_lshl_add_u32 v{T}, v{T+1}, 5, v{T}")
    st.e(f"v_and_b32 v{T+1}, 1, v1")
    st.e(f"v_lshl_add_u32 v{D}, v{T+1}, 4, v{T}")

V_XD, V_WD, V_XR, V_WR, V_T = 2, 6, 13, 19, 25
V_W3 = 28
P_T = V_T + 1
ACC1 = 32
def acc1(n, i): return ACC1 + (n * 4 + i) * 4
ZP = 32
AQ = 176
AST = 192
A_3XD, A_XR, A_4WD, A_4WR, A_1BWD, A_1BWR = AST, AST + 4, AST + 5, AST + 7, AST + 8, AST + 15
P1A_SLOT = 40960; P1A_NB = 4
P1B_SLOT = 45056; P1B_NB = 3

def adv(reg, inc, wrap):
    it = [f"s_add_u32 {reg}, {reg}, {0 if NOINC else inc}"]
    if wrap and ROT > 1:
        it.append(f"s_and_b32 {reg}, {reg}, {wrap-1}" if wrap & (wrap - 1) == 0 else f"s_cmp_eq_u32 {reg}, {wrap}\ns_cselect_b32 {reg}, 0, {reg}")
    return it
def p1_dma(name, NB, slotsz, srd, rowbytes, n):
    def f(s):
        slot = (s % NB) * slotsz; tag = ('st', name, s)
        b = [f"s_add_u32 m0, {S_MX}, {slot}"]
        b += [(f"buffer_load_dwordx4 v{V_XD+q}, {SRD_X}, {S_SOX} offen offset:{1024*q} lds", tag) for q in range(4)] + adv(S_SOX, 128, 2048)
        for j in range(n):
            if j % 4 == 0: b.append(f"s_add_u32 m0, {S_MW}, {slot + 16384 + 1024 * j}")
            b.append((f"buffer_load_dwordx4 v{V_WD+j}, {srd}, {S_SOW} offen offset:{1024*(j%4)} lds", tag))
        return b + adv(S_SOW, 64 * rowbytes, 1024 * rowbytes)
    return f
p1a_dma = p1_dma('p1a', P1A_NB, P1A_SLOT, SRD_WQKV, 6144, 6)
p1b_dma = p1_dma('p1b', P1B_NB, P1B_SLOT, SRD_WIN, 7168, 7)
def p1_soff(rowbytes, mw):
    return [f"s_and_b32 s56, {S_OFF}, {max(ROT - 1, 0)}", f"s_lshl_b32 {S_SOX}, s56, 7", f"s_mul_i32 {S_SOW}, s56, {64*rowbytes}", f"s_mul_i32 {S_MW}, {S_WAVE}, {mw}"]

def p1a_setup(st):
    T = V_T
    xd_natural(st, 2048, V_XD, T)
    wd128_lane(st, T + 3, T, 6144)
    st.e(f"v_xor_b32 v{T+4}, 64, v{T+3}")
    st.e(f"s_mul_i32 s56, {S_WAVE}, 6")
    st.e(f"s_lshl_b32 s58, {S_CB}, 7")
    for j in range(6):
        st.e(f"s_add_u32 s57, s56, {j}")
        st.e("s_lshr_b32 s59, s57, 3"); st.e("s_lshl_b32 s59, s59, 11")
        st.e("s_and_b32 s57, s57, 7"); st.e(f"s_mul_i32 s57, s57, {8*6144}")
        st.e("s_add_u32 s57, s57, s59"); st.e("s_add_u32 s57, s57, s58")
        if j % 4: st.e(f"s_sub_u32 s57, s57, {1024*(j%4)}")
        st.e(f"v_add_u32 v{V_WD+j}, s57, v{T + 3 + (j & 1)}")
    emit_all(st, p1_soff(6144, 6144))
def p1a_setup_reads(st):
    T = V_T
    xr_natural(st, V_XR, T)
    st.e(f"v_xor_b32 v{V_XR+3}, 64, v{V_XR}")
    copies(st, V_XR); copies(st, V_XR + 3)
    wr128(st, V_WR, T, 1024, 0)
    st.e(f"v_xor_b32 v{V_WR+3}, 32, v{V_WR}")
    copies(st, V_WR); copies(st, V_WR + 3)
def p1b_regs(st, D, T):
    st.e(f"s_mul_i32 s56, {S_WAVE}, {7*64}")
    st.e(f"s_mul_i32 s58, {S_CB}, 224")
    st.e("s_mov_b32 s59, 18725")
    st.e(f"v_mov_b32 v{T+5}, 3360")
    for j in range(7):
        d = D + j
        st.e(f"s_add_u32 s57, s56, {64*j}")
        st.e(f"v_add_u32 v{T}, s57, v1")
        st.e(f"v_mul_u32_u24 v{T+1}, s59, v{T}")
        st.e(f"v_lshrrev_b32 v{T+1}, 19, v{T+1}")
        st.e(f"v_mul_u32_u24 v{T+2}, 28, v{T+1}")
        st.e(f"v_sub_u32 v{T+2}, v{T}, v{T+2}")
        st.e(f"v_lshrrev_b32 v{T+3}, 1, v{T+2}")
        st.e(f"v_bfe_u32 v{T+4}, v{T+1}, 3, 1")
        st.e(f"v_xor_b32 v{T+3}, v{T+3}, v{T+4}")
        st.e(f"v_cmp_lt_u32 vcc, 6, v{T+3}")
        st.e(f"v_mul_u32_u24 v{d}, 7168, v{T+1}")
        st.e(f"v_lshl_add_u32 v{d}, v{T+3}, 5, v{d}")
        st.e(f"v_and_b32 v{T+2}, 1, v{T+2}")
        st.e(f"v_lshl_add_u32 v{d}, v{T+2}, 4, v{d}")
        st.e(f"v_cndmask_b32 v{T+4}, 0, v{T+5}, vcc")
        st.e(f"s_sub_u32 s57, s58, {1024*(j%4)}")
        st.e(f"v_add3_u32 v{d}, v{d}, v{T+4}, s57")
    st.e(f"v_lshrrev_b32 v{T}, 4, v1")
    st.e(f"v_bfe_u32 v{T+1}, v1, 2, 2")
    st.e(f"v_lshl_add_u32 v{T+2}, v{T}, 3, v{T+1}")
    st.e(f"v_mul_u32_u24 v{T+2}, 448, v{T+2}")
    st.e(f"v_and_b32 v{T+3}, 3, v1")
    st.e(f"v_lshl_add_u32 v{T+2}, v{T+3}, 3, v{T+2}")
    st.e(f"v_and_b32 v{T}, 1, v{T}")
    st.e(f"s_mul_i32 s57, {S_WC}, 7"); st.e("s_add_u32 s57, s57, 3")
    st.e(f"v_xor_b32 v{T+1}, s57, v{T}")
    st.e(f"v_lshl_add_u32 v{D+9}, v{T+1}, 5, v{T+2}")
    st.e(f"s_lshl_b32 s56, {S_WC}, 7")
    st.e(f"v_add_u32 v{T+2}, s56, v{T+2}")
    st.e(f"v_lshl_add_u32 v{D+7}, v{T}, 5, v{T+2}")
    st.e(f"v_lshlrev_b32 v{T+1}, 5, v{T}")
    st.e(f"v_sub_u32 v{D+8}, v{T+2}, v{T+1}")
    st.e(f"v_add_u32 v{D+8}, 32, v{D+8}")
def p1a_wread(slot, n, hh, db):
    out = []
    for sec in range(2):
        r, imm = ldsaddr(V_WR + 3 * (n % 2), slot + 16384 + (n // 2) * 8192 + hh * 4096 + sec * 512)
        out.append(f"ds_read_b64_tr_b16 {ar(db + 2*sec, 2)}, {r} offset:{imm}")
    return out
def p1b_wread(slot, n, hh, db):
    out = []
    u0 = [0, 1, 2, 3, 7, 8, 9][n]
    for sec in range(2):
        off = slot + 16384 + hh * 14336 + sec * 1792
        if n == 3: r, imm = ldsaddr(V_W3, off)
        elif u0 % 2 == 0: r, imm = ldsaddr(V_WR, off + u0 * 32)
        else: r, imm = ldsaddr(V_WR + 3, off + u0 * 32 - 32)
        out.append(f"ds_read_b64_tr_b16 {ar(db + 2*sec, 2)}, {r} offset:{imm}")
    return out
def p1a_mf(s, hh, n, i, wf, xf):
    a = vr(acc1(n, i), 4); c = "0" if (s == 0 and hh == 0) else a
    return f"v_mfma_f32_16x16x32_bf16 {a}, {xf}, {wf}, {c}" if n >= 4 else f"v_mfma_f32_16x16x32_bf16 {a}, {wf}, {xf}, {c}"
def p1b_mf(s, hh, n, i, wf, xf):
    a = vr(acc1(6 + n, i), 4)
    return f"v_mfma_f32_16x16x32_bf16 {a}, {wf}, {xf}, {'0' if (s == 0 and hh == 0) else a}"

QSCALE = math.log2(math.e) / math.sqrt(32.0)
def p1_epi_qkv(st):
    T = P_T
    st.e(f"s_lshl_b32 s56, {S_CB}, 1"); st.e(f"s_add_u32 s56, s56, {S_WC}")
    st.e(f"s_lshl_b32 {S_HB}, s56, 18")
    st.e(f"s_lshl_b32 s56, {S_RB}, 2"); st.e(f"s_lshl_b32 s57, {S_WR}, 1"); st.e("s_add_u32 s56, s56, s57")
    st.e("s_lshl_b32 s56, s56, 12")
    st.e("s_sub_u32 s58, s56, 4096"); st.e("s_and_b32 s58, s58, 0x3ffff")
    st.e(f"s_add_u32 s58, s58, {S_HB}")
    st.e(f"s_add_u32 s56, s56, {S_HB}")
    st.e("s_add_u32 s57, s56, 4096")
    st.e(f"v_lshlrev_b32 v{T}, 4, v1")
    st.e(f"v_and_b32 v{T+1}, 0x33, v1")
    st.e(f"v_bfe_u32 v{T+2}, v1, 2, 1"); st.e(f"v_lshl_or_b32 v{T+1}, v{T+2}, 3, v{T+1}")
    st.e(f"v_bfe_u32 v{T+2}, v1, 3, 1"); st.e(f"v_lshl_or_b32 v{T+1}, v{T+2}, 2, v{T+1}")
    st.e(f"v_lshlrev_b32 v{T+1}, 4, v{T+1}")
    def frag(t, x, y):
        st.e(f"v_cvt_pk_bf16_f32 v{t}, v{x}, v{x+1}"); st.e(f"v_cvt_pk_bf16_f32 v{t+1}, v{x+2}, v{x+3}")
        st.e(f"v_cvt_pk_bf16_f32 v{t+2}, v{y}, v{y+1}"); st.e(f"v_cvt_pk_bf16_f32 v{t+3}, v{y+2}, v{y+3}")
    def swaps(t):
        st.e(f"v_permlane16_swap_b32 v{t}, v{t+2}"); st.e(f"v_permlane16_swap_b32 v{t+1}, v{t+3}")
    K = [(128 + 4 * (a * 2 + ks), a, ks) for a in range(2) for ks in range(2)]
    for t, a, ks in K: frag(t, acc1(2 + ks, 2 * a), acc1(2 + ks, 2 * a + 1))
    for t, a, ks in K: swaps(t)
    for t, a, ks in K: st.e(f"buffer_store_dwordx4 {vr(t,4)}, v{T+1}, {SRD_WS}, {'s58' if a == 0 else 's56'} offen offset:{2048+1024*ks}{SC}", tag='kv')
    V = [(acc1(2, 0) + 4 * i, i) for i in range(4)]
    for t, i in V: frag(t, acc1(4, i), acc1(5, i))
    for t, i in V: swaps(t)
    for t, i in V: st.e(f"buffer_store_dwordx4 {vr(t,4)}, v{T}, {SRD_WS}, s{56+i//2} offen offset:{1024*(i%2)}{SC}", tag='kv')
    st.e(f"s_mov_b32 s58, {f2u(QSCALE)}"); st.e("s_mov_b32 s59, s58")
    for r in range(ACC1, ACC1 + 32, 2): st.e(f"v_pk_mul_f32 {vr(r,2)}, {vr(r,2)}, s[58:59]")
    Q = [(acc1(3, 0) + 4 * (a * 2 + ks), a, ks) for a in range(2) for ks in range(2)]
    for t, a, ks in Q: frag(t, acc1(ks, 2 * a), acc1(ks, 2 * a + 1))
    for t, a, ks in Q: swaps(t)
    for t, a, ks in Q:
        for j in range(4): st.e(f"v_accvgpr_write_b32 a{AQ + (a*2+ks)*4 + j}, v{t+j}")

GC1 = -2.0 * math.sqrt(2.0 / math.pi) * math.log2(math.e)
GC2 = GC1 * 0.044715
def xreduce(st, regs, temps):
    for w in (16, 32):
        for r, t in zip(regs, temps): st.e(f"v_mov_b32 v{t}, v{r}")
        for r, t in zip(regs, temps): st.e(f"v_permlane{w}_swap_b32 v{r}, v{t}")
        for r, t in zip(regs, temps): st.e(f"v_add_f32 v{r}, v{r}, v{t}")
def p1_epi_z(st, at):
    T = 26; TB = 96
    za = lambda j, i: acc1(6 + j, i)
    st.e(f"s_mov_b32 s56, {f2u(GC1)}")
    st.e(f"s_mov_b32 s58, {f2u(GC2)}"); st.e("s_mov_b32 s59, s58")
    st.e("s_mov_b32 s60, 1.0"); st.e("s_mov_b32 s61, 1.0")
    st.e(f"v_mov_b32 v{T}, s56"); st.e(f"v_mov_b32 v{T+1}, s56")
    pairs = [za(j, i) + 2 * h for j in range(7) for i in range(4) for h in range(2)]
    G = 4
    for gi, g0 in enumerate(range(0, len(pairs), G)):
        if gi in at: at[gi](st)
        grp = pairs[g0:g0 + G]
        tb = TB + (gi % 2) * 8
        for k, p in enumerate(grp): st.e(f"v_pk_mul_f32 {vr(tb+2*k,2)}, {vr(p,2)}, {vr(p,2)}")
        for k, p in enumerate(grp): st.e(f"v_pk_fma_f32 {vr(tb+2*k,2)}, {vr(tb+2*k,2)}, s[58:59], {vr(T,2)}")
        for k, p in enumerate(grp): st.e(f"v_pk_mul_f32 {vr(tb+2*k,2)}, {vr(tb+2*k,2)}, {vr(p,2)}")
        for k in range(2 * G): st.e(f"v_exp_f32 v{tb+k}, v{tb+k}")
        for k, p in enumerate(grp): st.e(f"v_pk_add_f32 {vr(tb+2*k,2)}, {vr(tb+2*k,2)}, s[60:61]")
        for k in range(2 * G): st.e(f"v_rcp_f32 v{tb+k}, v{tb+k}")
        for k, p in enumerate(grp): st.e(f"v_pk_mul_f32 {vr(p,2)}, {vr(tb+2*k,2)}, {vr(p,2)}")
        for k, p in enumerate(grp): st.e(f"v_cvt_pk_bf16_f32 v{ZP + (p - za(0, 0))//2}, v{p}, v{p+1}")
    st.e(f"s_mov_b32 s59, {f2u(-1.0/48)}")
    st.e(f"s_cmp_eq_u32 {S_WC}, 1")
    st.e("s_cselect_b32 s56, 1.0, 0"); st.e("s_mov_b32 s57, s56")
    st.e(f"s_cselect_b32 s58, {f2u(-1.0/64)}, s59")
    MEAN = TB; M2 = TB + 4; A = TB + 8; D = TB + 16
    ps = lambda i: [za(j, i) + 2 * h for j in (4, 5, 6) for h in range(2)]
    for i in range(4): st.e(f"v_pk_add_f32 {vr(A+2*i,2)}, {vr(za(3,i),2)}, {vr(za(3,i)+2,2)}")
    for i in range(4): st.e(f"v_pk_fma_f32 {vr(A+2*i,2)}, {vr(A+2*i,2)}, s[56:57], {vr(ps(i)[0],2)}")
    for k in range(1, 6):
        for i in range(4): st.e(f"v_pk_add_f32 {vr(A+2*i,2)}, {vr(A+2*i,2)}, {vr(ps(i)[k],2)}")
    for i in range(4): st.e(f"v_add_f32 v{MEAN+i}, v{A+2*i}, v{A+2*i+1}")
    xreduce(st, [MEAN + i for i in range(4)], [D + i for i in range(4)])
    for i in range(4): st.e(f"v_mul_f32 v{D+2*i}, s58, v{MEAN+i}")
    for i in range(4): st.e(f"v_sub_f32 v{MEAN+i}, 0, v{D+2*i}")
    for i in range(4):
        for p in [za(3, i), za(3, i) + 2] + ps(i): st.e(f"v_pk_add_f32 {vr(p,2)}, {vr(p,2)}, {vr(D+2*i,2)} op_sel_hi:[1,0]")
    for i in range(4): st.e(f"v_pk_mul_f32 {vr(A+2*i,2)}, {vr(za(3,i),2)}, {vr(za(3,i),2)}")
    for i in range(4): st.e(f"v_pk_fma_f32 {vr(A+2*i,2)}, {vr(za(3,i)+2,2)}, {vr(za(3,i)+2,2)}, {vr(A+2*i,2)}")
    for i in range(4): st.e(f"v_pk_mul_f32 {vr(A+2*i,2)}, {vr(A+2*i,2)}, s[56:57]")
    for k in range(6):
        for i in range(4): st.e(f"v_pk_fma_f32 {vr(A+2*i,2)}, {vr(ps(i)[k],2)}, {vr(ps(i)[k],2)}, {vr(A+2*i,2)}")
    for i in range(4): st.e(f"v_add_f32 v{M2+i}, v{A+2*i}, v{A+2*i+1}")
    xreduce(st, [M2 + i for i in range(4)], [D + i for i in range(4)])
    st.e(f"v_lshrrev_b32 v{T}, 4, v1")
    for i in range(1, 4):
        st.e(f"v_cmp_eq_u32 vcc, {i}, v{T}")
        st.e(f"v_cndmask_b32 v{MEAN}, v{MEAN}, v{MEAN+i}, vcc")
        st.e(f"v_cndmask_b32 v{M2}, v{M2}, v{M2+i}, vcc")
    st.e(f"s_lshl_b32 s56, {S_RB}, 4"); st.e(f"s_add_u32 s56, s56, {S_CB}"); st.e("s_lshl_b32 s56, s56, 11")
    st.e(f"s_lshl_b32 s57, {S_WR}, 10"); st.e("s_add_u32 s56, s56, s57")
    st.e(f"s_lshl_b32 s57, {S_WC}, 2"); st.e("s_add_u32 s56, s56, s57")
    st.e(f"s_add_u32 s56, s56, {WS_ST}")
    st.e(f"buffer_store_dword v{MEAN}, v{V_L16}, {SRD_WS}, s56 offen{SC}", tag='stat')
    st.e(f"buffer_store_dword v{M2}, v{V_L16}, {SRD_WS}, s56 offen offset:8{SC}", tag='stat')

LOG2E = math.log2(math.e)
def gate_issue(st):
    T = 128
    st.e(f"s_lshl_b32 s60, {S_RB}, 7"); st.e(f"s_lshl_b32 s61, {S_CB}, 3"); st.e("s_add_u32 s60, s60, s61")
    st.e(f"s_lshl_b32 s61, {S_WAVE}, 1"); st.e("s_add_u32 s66, s60, s61")
    st.e("s_lshl_b32 s60, s66, 11")
    st.e(f"v_lshlrev_b32 v{T+32}, 6, v1")
    st.e(f"v_and_b32 v{T+33}, 0x7ff, v{T+32}")
    for k in range(4):
        st.e(f"buffer_load_dwordx4 {vr(T+4*k,4)}, v{T+32}, {SRD_X}, s60 offen offset:{16*k}", tag='gate')
        st.e(f"buffer_load_dwordx4 {vr(T+16+4*k,4)}, v{T+33}, {SRD_GATE}, 0 offen offset:{16*k}", tag='gate')
def gate_finish(st):
    T = 128
    st.wait(tag='gate')
    a = T + 34
    st.e(f"v_mov_b32 v{a}, 0"); st.e(f"v_mov_b32 v{a+1}, 0")
    for k in range(16): st.e(f"v_dot2_f32_bf16 v{a + k % 2}, v{T+k}, v{T+16+k}, v{a + k % 2}")
    st.e(f"v_add_f32 v{a}, v{a}, v{a+1}")
    for m in ("quad_perm:[1,0,3,2]", "quad_perm:[2,3,0,1]", "row_half_mirror", "row_mirror"):
        st.e(f"v_add_f32_dpp v{a}, v{a}, v{a} {m} row_mask:0xf bank_mask:0xf")
    st.e(f"v_mov_b32 v{a+1}, v{a}")
    st.e(f"v_permlane16_swap_b32 v{a}, v{a+1}")
    st.e(f"v_add_f32 v{a}, v{a}, v{a+1}")
    st.e(f"v_mul_f32 v{a}, {f2u(-LOG2E)}, v{a}")
    st.e(f"v_exp_f32 v{a}, v{a}")
    st.e(f"v_add_f32 v{a}, 1.0, v{a}")
    st.e(f"v_rcp_f32 v{a}, v{a}")
    st.e(f"v_lshrrev_b32 v{a+1}, 5, v1"); st.e(f"v_lshlrev_b32 v{a+1}, 2, v{a+1}")
    st.e("s_lshl_b32 s56, s66, 2"); st.e(f"s_add_u32 s56, s56, {WS_G}")
    st.e(f"buffer_store_dword v{a}, v{a+1}, {SRD_WS}, s56 offen{SC}", tag='gst')

SA, SB, CA, CB, OA, OB, PA, PB, LA, LB, SEL, AT = 88, 104, 120, 136, 152, 168, 184, 192, 200, 204, 208, 212
V_L16 = 20
RING = 8
def m32(d, a, b, c): return f"v_mfma_f32_32x32x16_bf16 {vr(d,16)}, {a}, {b}, {c if c == '0' else vr(c,16)}"
def m16s(l, p, first=False): return f"v_mfma_f32_16x16x32_bf16 {vr(l,4)}, {vr(SEL,4)}, {vr(p,4)}, {'0' if first else vr(l,4)}"
def ubase(u):
    u %= RING
    return 16 * u if u < 3 else 96 + 16 * (u - 3)
def uK(u, ks): return ar(ubase(u) + 8 + 4 * ks, 4)
def uV(u, kk): return ar(ubase(u) + 4 * kk, 4)
def Qf(t, ks): return ar(AQ + (t * 2 + ks) * 4, 4)
V_KV = 18
KVSC = SC if env('KVSC', 0) else ''
KV_ADV = f"s_add_u32 {S_KV}, {S_KV}, 4096\ns_and_b32 {S_KV}, {S_KV}, 0x3ffff" if env("KVROT", 1) else f"s_add_u32 {S_KV}, {S_KV}, 4096"
def unit_loads(u):
    ks = range(2, 4) if u < 0 else range(4 if u < 63 else 2)
    return [(f"buffer_load_dwordx4 {ar(ubase(u)+4*k,4)}, v{V_KV}, {SRD_WS}, {S_KV} offen offset:{1024*k}{KVSC}", ('u', u)) for k in ks] + [KV_ADV]
def kv_start(st):
    st.e(f"s_lshl_b32 {S_KV}, {S_RB}, 14"); st.e(f"s_sub_u32 {S_KV}, {S_KV}, 4096"); st.e(f"s_and_b32 {S_KV}, {S_KV}, 0x3ffff")
    st.e(f"v_add_u32 v{V_KV}, {S_HB}, v{V_L16}")
def softmax_valu(S, P):
    out = []
    for i in range(16):
        out.append(f"v_exp_f32 v{S+i}, v{S+i}")
        if i >= 3 and i % 2 == 1:
            c = (i - 3) // 2
            out.append(f"v_cvt_pk_bf16_f32 v{P+c}, v{S+2*c}, v{S+2*c+1}")
    out.append(f"v_cvt_pk_bf16_f32 v{P+7}, v{S+14}, v{S+15}")
    return out
def att_phase(st, mf, valu, extra):
    extra = list(extra)
    nv = len(valu); G = len(mf)
    pos = [k * nv // G for k in range(G)]
    k = 0
    for c, v in enumerate(valu):
        while k < G and pos[k] <= c:
            st.e(mf[k]); k += 1
            if extra: emit_filler(st, extra.pop(0))
        st.e(v)
    for x in extra: emit_filler(st, x)
def rowmax(st, S, d, t):
    st.e(f"v_max3_f32 v{d}, v{S}, v{S+1}, v{S+2}")
    for i in range(3, 15, 2): st.e(f"v_max3_f32 v{d}, v{S+i}, v{S+i+1}, v{d}")
    st.e(f"v_max_f32 v{d}, v{S+15}, v{d}")
    st.e(f"v_mov_b32 v{t}, v{d}")
    st.e(f"v_permlane32_swap_b32 v{d}, v{t}")
    st.e(f"v_max_f32 v{d}, v{d}, v{t}")

def ln_load(st, batch):
    st.e(f"s_lshl_b32 s56, {S_RB}, 15"); st.e(f"s_lshl_b32 s57, {S_WR}, 10"); st.e("s_add_u32 s56, s56, s57")
    st.e(f"s_add_u32 s56, s56, {WS_ST + batch * 8 * 2048}")
    for k in range(8):
        if k in (2, 4, 6): st.e("s_add_u32 s56, s56, 4096")
        st.e(f"buffer_load_dwordx4 {vr(AT+4*k,4)}, v{V_L16}, {SRD_WS}, s56 offen offset:{2048*(k%2)}{SC}", tag=('ln', batch))
LNA = 26
def ln_accum(st, batch):
    st.wait(tag=('ln', batch))
    if batch == 0:
        st.e(f"v_sub_f32 v24, 0, v{AT}")
        for r in range(LNA, LNA + 6): st.e(f"v_mov_b32 v{r}, 0")
    for k in range(8): st.e(f"v_pk_add_f32 {vr(AT+4*k,2)}, {vr(AT+4*k,2)}, v[24:25] op_sel_hi:[1,0]")
    for k in range(8):
        st.e(f"v_pk_add_f32 {vr(LNA,2)}, {vr(LNA,2)}, {vr(AT+4*k,2)}")
        st.e(f"v_pk_fma_f32 {vr(LNA+2,2)}, {vr(AT+4*k,2)}, {vr(AT+4*k,2)}, {vr(LNA+2,2)}")
        st.e(f"v_pk_add_f32 {vr(LNA+4,2)}, {vr(LNA+4,2)}, {vr(AT+4*k+2,2)}")
def ln_final(st):
    A, B, M = LNA, LNA + 2, LNA + 4
    t = AT
    st.e(f"v_mul_f32 v{A}, {f2u(48.0)}, v{A}"); st.e(f"v_fmac_f32 v{A}, {f2u(64.0)}, v{A+1}")
    st.e(f"v_mul_f32 v{B}, {f2u(48.0)}, v{B}"); st.e(f"v_fmac_f32 v{B}, {f2u(64.0)}, v{B+1}")
    st.e(f"v_add_f32 v{M}, v{M}, v{M+1}")
    st.e(f"v_add_f32 v{M}, v{M}, v{B}")
    st.e(f"v_mul_f32 v{A+1}, {f2u(1.0/1792)}, v{A}")
    st.e(f"v_fma_f32 v{M}, -v{A}, v{A+1}, v{M}")
    st.e(f"v_mul_f32 v{M}, {f2u(1.0/1792)}, v{M}")
    st.e(f"v_max_f32 v{M}, 0, v{M}")
    st.e(f"v_add_f32 v{M}, {f2u(1e-5)}, v{M}")
    st.e(f"v_rsq_f32 v{M}, v{M}")
    st.e(f"v_sub_f32 v{A}, v24, v{A+1}")
    st.e(f"v_mul_f32 v{A}, v{A}, v{M}")
    st.e(f"v_and_b32 v{B}, 15, v1"); st.e(f"v_lshlrev_b32 v{B}, 2, v{B}")
    for i in range(4):
        st.e(f"ds_bpermute_b32 v{t+2*i}, v{B}, v{M} offset:{64*i}")
        st.e(f"ds_bpermute_b32 v{t+2*i+1}, v{B}, v{A} offset:{64*i}")
    st.e(f"v_bfe_u32 v{B}, v1, 2, 1"); st.e(f"v_lshlrev_b32 v{B}, 9, v{B}")
    st.e(f"v_bfe_u32 v{B+1}, v1, 3, 1"); st.e(f"v_lshl_or_b32 v{B}, v{B+1}, 7, v{B}")
    st.e(f"v_and_b32 v{B+1}, 3, v1"); st.e(f"v_lshl_or_b32 v{B}, v{B+1}, 5, v{B}")
    st.e(f"v_lshrrev_b32 v{B+1}, 4, v1"); st.e(f"v_lshl_or_b32 v{B}, v{B+1}, 3, v{B}")
    st.e(f"s_mul_i32 s60, {S_CB}, 458752")
    st.e(f"s_lshl_b32 s57, {S_RB}, 1"); st.e(f"s_add_u32 s57, s57, {S_WR}"); st.e("s_mul_i32 s57, s57, 14336")
    st.e("s_add_u32 s60, s60, s57")
    st.e(f"s_lshl_b32 s57, {S_WC}, 12"); st.e("s_add_u32 s60, s60, s57")
    st.e(f"s_add_u32 s60, s60, {WS_ZN}")
    st.e("s_add_u32 s61, s60, 7168")
    st.e("s_sub_u32 s62, s60, 1024"); st.e("s_sub_u32 s63, s61, 1024")
    st.e(f"s_cmp_eq_u32 {S_WC}, 1")
    st.e(f"s_cselect_b32 s62, s62, {WS_SIZE}"); st.e(f"s_cselect_b32 s63, s63, {WS_SIZE}")
    st.e("s_mov_b32 s59, 0xffff0000")
    st.wait(lgkm=0)
    k = 0
    for j in (4, 5, 6, 3):
        for i in range(4):
            u = t + 8 + 4 * (k % 4); k += 1
            z = ZP + (j * 4 + i) * 2
            for h in range(2):
                st.e(f"v_lshlrev_b32 v{u+2*h}, 16, v{z+h}")
                st.e(f"v_and_b32 v{u+2*h+1}, s59, v{z+h}")
            for h in range(2):
                st.e(f"v_pk_fma_f32 {vr(u+2*h,2)}, {vr(u+2*h,2)}, {vr(t+2*i,2)}, {vr(t+2*i,2)} op_sel:[0,0,1] op_sel_hi:[1,0,1]")
            for h in range(2):
                st.e(f"v_cvt_pk_bf16_f32 v{(z if j >= 4 else t + 24 + 2 * i) + h}, v{u+2*h}, v{u+2*h+1}")
def zn_stores():
    out = []
    for j in (4, 5, 6, 3):
        for i in range(4):
            src = ZP + (j * 4 + i) * 2 if j >= 4 else AT + 24 + 2 * i
            so = (60 if j >= 4 else 62) + i // 2
            off = (i % 2) * 256 + (j - 4) * 1024 if j >= 4 else (i % 2) * 256
            out.append((f"buffer_store_dwordx2 {vr(src,2)}, v{LNA+2}, {SRD_WS}, s{so} offen offset:{off}{SC}", 'zn'))
    return out

XST = [int(x) for x in os.environ.get('XST', '').split(',') if x]
def att_main(st, hooks, extras, first_unit):
    st.e(f"v_bfe_u32 v{AT}, v1, 4, 1"); st.e(f"v_lshlrev_b32 v{AT}, 2, v{AT}")
    st.e(f"v_and_b32 v{AT+1}, 7, v1")
    st.e(f"v_cmp_eq_u32 vcc, v{AT}, v{AT+1}")
    st.e(f"v_mov_b32 v{AT}, 0x3f803f80")
    st.e(f"v_cndmask_b32 v{SEL}, 0, v{AT}, vcc")
    for k in range(1, 4): st.e(f"v_mov_b32 v{SEL+k}, v{SEL}")
    st.wait(tag=('u', -1))
    st.e(m32(SA, uK(-1, 0), Qf(0, 0), '0')); st.e(m32(SA, uK(-1, 1), Qf(0, 1), SA))
    st.e(m32(SB, uK(-1, 0), Qf(1, 0), '0')); st.e(m32(SB, uK(-1, 1), Qf(1, 1), SB))
    rowmax(st, SA, AT, AT + 1)
    for i in range(16): st.e(f"v_sub_f32 v{CA+i}, 0, v{AT}")
    st.e(m32(SA, uK(-1, 0), Qf(0, 0), CA)); st.e(m32(SA, uK(-1, 1), Qf(0, 1), SA))
    rowmax(st, SB, AT + 2, AT + 3)
    for i in range(16): st.e(f"v_sub_f32 v{CB+i}, 0, v{AT+2}")
    nu = first_unit
    for j in range(64):
        st.mark(('chunk', 'att', RING))
        if j in XST and not os.environ.get('GST'): stamp(st, f'xa{j}')
        if j in hooks: hooks[j](st)
        if j in XST and j in hooks and not os.environ.get('GST'): stamp(st, f'xb{j}')
        ex = list(extras.get(j, []))
        ul = []
        lim = j + RING - 1
        if nu <= lim - 1 and nu < 64 and j >= KVCHK:
            ex = unit_loads(nu) + ex; nu += 1
        mf = [m32(SB, uK(j - 1, 0), Qf(1, 0), CB), m32(SB, uK(j - 1, 1), Qf(1, 1), SB)]
        if j > 0:
            f = (j == 1)
            mf += [m32(OB, uV(j - 1, 0), vr(PB, 4), '0' if f else OB), m16s(LB, PB, f), m32(OB, uV(j - 1, 1), vr(PB + 4, 4), OB), m16s(LB, PB + 4)]
        att_phase(st, mf, softmax_valu(SA, PA), ex)
        assert nu > j
        st.wait(tag=('u', j))
        mf = []
        if j < 63: mf += [m32(SA, uK(j, 0), Qf(0, 0), CA), m32(SA, uK(j, 1), Qf(0, 1), SA)]
        f = (j == 0)
        mf += [m32(OA, uV(j, 0), vr(PA, 4), '0' if f else OA), m16s(LA, PA, f), m32(OA, uV(j, 1), vr(PA + 4, 4), OA), m16s(LA, PA + 4)]
        if nu <= lim and nu < 64 and j >= KVCHK:
            ul = unit_loads(nu); nu += 1
        att_phase(st, mf, softmax_valu(SB, PB), ul)
    st.mark(('endchunks',))
    st.e(m32(OB, uV(63, 0), vr(PB, 4), OB)); st.e(m16s(LB, PB)); st.e(m32(OB, uV(63, 1), vr(PB + 4, 4), OB)); st.e(m16s(LB, PB + 4))
    stamp(st, 'att64')
    t = AT
    st.e(f"s_mul_i32 s56, {S_RB}, {88*8192}")
    st.e(f"s_lshr_b32 s57, {S_HB}, 5"); st.e("s_add_u32 s56, s56, s57")
    st.e(f"s_lshl_b32 s57, {S_WR}, 12"); st.e("s_add_u32 s56, s56, s57")
    st.e(f"s_add_u32 s56, s56, {WS_XF}")
    st.e(f"v_bfe_u32 v{t+4}, v1, 4, 1"); st.e(f"v_lshlrev_b32 v{t+4}, 10, v{t+4}")
    st.e(f"v_lshrrev_b32 v{t+5}, 5, v1"); st.e(f"v_lshl_or_b32 v{t+4}, v{t+5}, 8, v{t+4}")
    st.e(f"v_and_b32 v{t+5}, 15, v1"); st.e(f"v_lshl_or_b32 v{t+4}, v{t+5}, 4, v{t+4}")
    st.e(f"v_max_f32 v{t}, v{LA}, v{LB}")
    st.e(f"v_mul_f32 v{t+2}, 0, v{LA}"); st.e(f"v_mul_f32 v{t+3}, 0, v{LB}")
    for r in range(OA, OA + 32, 2): st.e(f"v_pk_fma_f32 {vr(t+2,2)}, {vr(r,2)}, 0, {vr(t+2,2)}")
    st.e(f"v_add_f32 v{t}, v{t}, v{t+2}")
    st.e(f"v_add_f32 v{t}, v{t}, v{t+3}")
    st.e(f"v_cmp_nge_f32 vcc, {f2u(2.0**30)}, v{t}")
    ok = st.newlabel("ATT_OK")
    st.e(f"s_cbranch_vccz {ok}")
    att_fallback(st)
    st.flush_hazards()
    st.label(ok, soft=True)
    st.e(f"v_rcp_f32 v{t}, v{LA}"); st.e(f"v_rcp_f32 v{t+2}, v{LB}")
    for q, (O, rr) in enumerate(((OA, t), (OB, t + 2))):
        for r in range(0, 16, 2): st.e(f"v_pk_mul_f32 {vr(O+r,2)}, {vr(O+r,2)}, {vr(rr,2)} op_sel_hi:[1,0]")
        P = PA + 8 * q
        for c in range(8): st.e(f"v_cvt_pk_bf16_f32 v{P+c}, v{O+2*c}, v{O+2*c+1}")
        for a in (0, 4):
            st.e(f"v_permlane32_swap_b32 v{P+a}, v{P+a+2}"); st.e(f"v_permlane32_swap_b32 v{P+a+1}, v{P+a+3}")
        for a in (0, 4):
            st.e(f"buffer_store_dwordx4 {vr(P+a,4)}, v{t+4}, {SRD_WS}, s56 offen offset:{q*2048 + a*128}{SC}", tag='o')

def att_fallback(st):
    t = AT
    MA, MB_ = t + 8, t + 9
    st.e("s_waitcnt vmcnt(0)")
    st.e(f"v_mov_b32 v{MA}, {f2u(-3.0e38)}"); st.e(f"v_mov_b32 v{MB_}, {f2u(-3.0e38)}")
    for r in list(range(OA, OA + 32)) + list(range(LA, LA + 8)): st.e(f"v_mov_b32 v{r}, 0")
    st.e(f"s_add_u32 s58, {S_HB}, {63*4096}")
    st.e(f"s_mov_b32 {S_KV}, {S_HB}")
    st.e("s_mov_b32 s59, 64")
    lp = st.newlabel("ATT_FB")
    st.flush_hazards()
    st.label(lp)
    for k in range(2):
        st.e(f"buffer_load_dwordx4 {ar(4*k,4)}, v{V_L16}, {SRD_WS}, s58 offen offset:{2048+1024*k}{SC}", count=False)
        st.e(f"buffer_load_dwordx4 {ar(8+4*k,4)}, v{V_L16}, {SRD_WS}, {S_KV} offen offset:{1024*k}{SC}", count=False)
    st.e(f"s_mov_b32 s58, {S_KV}")
    st.e(f"s_add_u32 {S_KV}, {S_KV}, 4096")
    st.e("s_waitcnt vmcnt(0)")
    for q, (S, O, P, L, M) in enumerate(((SA, OA, PA, LA, MA), (SB, OB, PB, LB, MB_))):
        st.e(m32(S, ar(0, 4), Qf(q, 0), '0')); st.e(m32(S, ar(4, 4), Qf(q, 1), S))
        rowmax(st, S, t, t + 1)
        st.e(f"v_max_f32 v{t}, v{t}, v{M}")
        st.e(f"v_sub_f32 v{t+1}, v{M}, v{t}")
        st.e(f"v_exp_f32 v{t+1}, v{t+1}")
        st.e(f"v_mov_b32 v{M}, v{t}")
        for r in range(16): st.e(f"v_mul_f32 v{O+r}, v{t+1}, v{O+r}")
        st.e(f"v_mul_f32 v{L}, v{t+1}, v{L}")
        for r in range(16): st.e(f"v_sub_f32 v{S+r}, v{S+r}, v{M}")
        for r in range(16): st.e(f"v_exp_f32 v{S+r}, v{S+r}")
        for c in range(8): st.e(f"v_cvt_pk_bf16_f32 v{P+c}, v{S+2*c}, v{S+2*c+1}")
        st.e(m32(O, ar(8, 4), vr(P, 4), O)); st.e(m16s(L, P)); st.e(m32(O, ar(12, 4), vr(P + 4, 4), O)); st.e(m16s(L, P + 4))
    st.flush_hazards()
    st.e("s_sub_u32 s59, s59, 1")
    st.e("s_cmp_lg_u32 s59, 0")
    st.e(f"s_cbranch_scc1 {lp}")

ACC = 88
def accr(n, i, base=ACC): return base + (n * 4 + i) * 4
def ldsaddr(base3, off): return f"v{base3 + (off >> 16)}", off & 0xffff
def copies(st, b):
    st.e(f"v_add_u32 v{b+1}, 0x10000, v{b}"); st.e(f"v_add_u32 v{b+2}, 0x20000, v{b}")
NXT_CAP = env('NXT_CAP', 5); CATCH = env('CATCH', 2)
def gemm(st, name, nst, NB, slotsz, dma, xread, wread, mf, MT, NT, first_stamp=None,
         grp=None, publish=None, at=None, nxt=None, rot=0, PF=1, hold=None, vbg=None, vper=24):
    at = at or {}
    SETS = PF + 1
    SSZ = 48 if PF == 1 else 32
    XF = lambda p, i: ar(p * SSZ + i * 4, 4)
    WFb = lambda p, n: p * SSZ + 16 + n * 4
    def reads(t):
        if t >= 2 * nst: return []
        s, hh, p = t // 2, t % 2, t % SETS
        slot = ((s + rot) % NB) * slotsz
        wl = [wread(slot, n, hh, WFb(p, n)) for n in range(NT)]
        return wl[0] + [xread(slot, i, hh, XF(p, i)) for i in range(MT)] + flat(wl[1:])
    def mfs(t):
        s, hh, p = t // 2, t % 2, t % SETS
        return [mf(s, hh, n, i, ar(WFb(p, n), 4), XF(p, i)) for n in range(NT) for i in range(MT)]
    q = list(st.bg); st.bg = []
    def issued(s):
        def tg(x):
            if isinstance(x, list): return any(tg(y) for y in x)
            return isinstance(x, tuple) and x[1] == ('st', name, s)
        return not any(tg(x) for x in q)
    while not issued(PF - 1): emit_filler(st, q.pop(0))
    st.wait(tag=('st', name, PF - 1))
    st.e("s_barrier")
    if first_stamp is not None: stamp(st, first_stamp)
    for t in range(PF):
        for r in reads(t): st.e(r)
    G = MT * NT
    D = ndma(dma(0))
    lg = lambda t: sum(len(reads(u)) for u in range(t + 1, t + PF))
    st.wait(lgkm=lg(0))
    def take(n, must=None):
        out = []; c = 0
        while q and (c < n or (must is not None and not issued(must))):
            x = q.pop(0); out.append(x)
            if isdma(x): c += 1
        while q and not isdma(q[0]) and 'm0' not in q[0]: out.append(q.pop(0))
        return out
    vbg = list(vbg or [])
    def addv(gaps):
        n = min(vper, len(vbg))
        if n == 0: return gaps
        idx = sorted(sorted(range(len(gaps)), key=lambda g: (len(gaps[g]), g))[:n])
        for g in idx: gaps[g] = gaps[g] + [vbg.pop(0)]
        return gaps
    nq = NB
    for s in range(nst):
        st.mark(('chunk', grp or name, NB))
        if os.environ.get('GST') == name and s in XST: stamp(st, f'x{s}')
        if (s, 'A') in at: at[(s, 'A')](st)
        extra = CATCH if ndma(q) > D // 2 else 0
        cap = D // 2 + extra if s + NB <= nst else NXT_CAP
        interleave(st, mfs(2 * s), addv(merge(reads(2 * s + PF), take(cap, s + PF), G)))
        pub = publish and s == publish[2]
        tags = ([('st', name, s + PF)] if s + PF < nst else []) + (publish[1] if pub else [])
        st.wait(tag=tags or None, lgkm=lg(2 * s + 1))
        st.e("s_barrier")
        if pub: do_publish(st, publish[0])
        if (s, 'B') in at: at[(s, 'B')](st)
        extra = CATCH if ndma(q) > 0 else 0
        while nq <= s + NB and nq < nst and not (hold and nq >= hold[0] and s < hold[1]):
            q += dma(nq); nq += 1
        if nxt and s in nxt:
            assert s + NB >= nst
            it = nxt[s]()
            if it and not isdma(it[0]) and 'm0' not in it[0]:
                assert ndma(q) == 0, "next phase's address registers would clobber pending DMA"
                while q: emit_filler(st, q.pop(0))
                while not isdma(it[0]) and 'm0' not in it[0]: emit_filler(st, it.pop(0))
            q += it
        cap = (D + 1) // 2 + extra if s + NB < nst else NXT_CAP
        interleave(st, mfs(2 * s + 1), addv(merge(reads(2 * s + 1 + PF), take(cap), G)))
        if s + 1 < nst: st.wait(lgkm=lg(2 * s + 2))
    st.mark(('endchunks',))
    assert not vbg
    st.bg = q

P3_SLOT = 30720; P3_NB = 5
V_B = 248; V_G = 8; UO = 152; TMP = 184
P3X = env('P3X', 2)
def p3_x(s, n=4):
    tag = ('st', 'p3', s)
    return [f"s_add_u32 m0, {S_MX}, {(s % P3_NB) * P3_SLOT}"] + \
        [(f"buffer_load_dwordx4 v{V_XD+q}, {SRD_WSP}, {S_SOX} offen offset:{1024*q} lds", tag) for q in range(n)] + \
        [f"s_add_u32 {S_SOX}, {S_SOX}, {0 if NOINC else 128}"] + ([f"s_and_b32 {S_SOX}, {S_SOX}, 4095"] if ROT3 else [])
def p3_wadv(so):
    return [f"s_add_u32 {so}, {so}, {0 if NOINC else 14336}"] + ([f"s_cmp_eq_u32 {so}, 458752\ns_cselect_b32 {so}, 0, {so}"] if ROT3 else [])
def p3_w_pro(s):
    tag = ('st', 'p3', s)
    b = [f"s_add_u32 m0, {S_MW}, {(s % P3_NB) * P3_SLOT + 16384}"]
    b += [(f"buffer_load_dwordx4 v{V_WD}, {SRD_WS}, {S_SOW} offen offset:{1024*j}{SC} lds", tag) for j in range(3)]
    b.append(["s_mov_b32 exec_hi, 0", (f"buffer_load_dwordx4 v{V_WD}, {SRD_WS}, {S_SOW} offen offset:3072{SC} lds", tag), "s_mov_b32 exec_hi, -1"])
    return b + p3_wadv(S_SOW)
def p3_dma_wc1(s):
    slot = (s % P3_NB) * P3_SLOT
    tag = ('st', 'p3', s)
    b = p3_x(s)
    if P3X < 4:
        k = 5
        b[k:k] = [f"s_add_u32 m0, s68, {slot}"] + [(f"buffer_load_dwordx4 v{V_WD+2+q}, {SRD_WSP}, {S_SOX} offen offset:{1024*q} lds", tag) for q in range(P3X, 4)]
    for h in range(2):
        b.append(f"s_add_u32 m0, {S_MW}, {slot + 16384 + 4096 * h}")
        b += [(f"buffer_load_dwordx4 v{V_WD+h}, {SRD_WS}, {S_SOW} offen offset:{1024*q}{SC} lds", tag) for q in range(4 - h)]
    return b + p3_wadv(S_SOW)
def p3_setup_w(st):
    st.e(f"s_mul_i32 {S_MW}, {S_WAVE}, 3584")
    st.e(f"s_mul_i32 s56, {S_CB}, 458752"); st.e(f"s_add_u32 s56, s56, {WS_ZN}")
    st.e(f"v_lshlrev_b32 v{V_WD}, 4, v1"); st.e(f"v_add_u32 v{V_WD}, s56, v{V_WD}")
    st.e(f"v_add_u32 v{V_WD}, {S_MW}, v{V_WD}")
    st.e(f"s_lshl_b32 s56, {S_WC}, 12")
    st.e(f"v_lshlrev_b32 v{V_WR+3}, 3, v1"); st.e(f"v_add_u32 v{V_WR+3}, s56, v{V_WR+3}")
    copies(st, V_WR + 3)
    st.e(f"s_mul_i32 {S_SOW}, {S_OFF}, {2 * 14336 * ROT3}")
    st.e(f"s_lshl_b32 s56, {S_RB}, 8"); st.e(f"s_lshl_b32 s57, {S_WR}, 7"); st.e("s_add_u32 s56, s56, s57")
    st.e(f"v_and_b32 v{V_T}, 15, v1"); st.e(f"v_lshlrev_b32 v{V_T}, 1, v{V_T}")
    for i in range(4): st.e(f"buffer_load_ushort v{V_B+i}, v{V_T}, {SRD_BSP}, s56 offen offset:{32*i}", tag='bsp')
def xread_natural(slot, i, hh, dst):
    r, imm = ldsaddr(V_XR + 3 * hh, slot + i * 2048)
    return f"ds_read_b128 {dst}, {r} offset:{imm}"
def p3_wread(slot, n, hh, db):
    out = []
    for sec in range(2):
        r, imm = ldsaddr(V_WR + 3, slot + 16384 + hh * 7168 + n * 1024 + sec * 512)
        out.append(f"ds_read_b64_tr_b16 {ar(db + 2*sec, 2)}, {r} offset:{imm}")
    return out
def p3_mf(s, hh, n, i, wf, xf):
    a = vr(accr(n, i), 4)
    return f"v_mfma_f32_16x16x32_bf16 {a}, {wf}, {xf}, {'0' if (s == 0 and hh == 0) else a}"
def p3_epilogue(st, NT):
    T = V_T
    st.wait(tag='bsp')
    for i in range(4): st.e(f"v_lshlrev_b32 v{V_B+i}, 16, v{V_B+i}")
    st.e(f"v_bfe_u32 v{T}, v1, 4, 1"); st.e(f"v_lshlrev_b32 v{T}, 10, v{T}")
    st.e(f"v_lshrrev_b32 v{T+1}, 5, v1"); st.e(f"v_lshl_or_b32 v{T}, v{T+1}, 8, v{T}")
    st.e(f"v_and_b32 v{T+1}, 15, v1"); st.e(f"v_lshl_or_b32 v{T}, v{T+1}, 4, v{T}")
    st.e(f"s_mul_i32 s61, {S_RB}, {88*8192}")
    st.e(f"s_lshl_b32 s57, {S_WR}, 12"); st.e("s_add_u32 s61, s61, s57")
    st.e(f"s_add_u32 s61, s61, {WS_XF + 32*8192}")
    st.e(f"s_mul_i32 s60, {S_CB}, 7")
    if NT == 3: st.e("s_add_u32 s60, s60, 4")
    for n in range(4):
        if n >= NT:
            st.e(f"s_mov_b32 s{56+n}, {WS_SIZE}")
            continue
        st.e(f"s_add_u32 s{56+n}, s60, {n}")
        st.e(f"s_lshr_b32 s62, s{56+n}, 1"); st.e("s_lshl_b32 s62, s62, 13")
        st.e(f"s_and_b32 s{56+n}, s{56+n}, 1"); st.e(f"s_lshl_b32 s{56+n}, s{56+n}, 9")
        st.e(f"s_add_u32 s{56+n}, s{56+n}, s62"); st.e(f"s_add_u32 s{56+n}, s{56+n}, s61")
    st.e("s_mov_b32 s60, 0xffff0000")
    k = 0
    for n in range(NT):
        for ip in (0, 2):
            u = TMP + 8 * (k % 2); o = UO + 4 * k; k += 1
            for d in range(2):
                i = ip + d; a = accr(n, i); z = ZP + (n * 4 + i) * 2
                for h in range(2):
                    st.e(f"v_lshlrev_b32 v{u+4*d+2*h}, 16, v{z+h}")
                    st.e(f"v_and_b32 v{u+4*d+2*h+1}, s60, v{z+h}")
                bp = V_B + (i // 2) * 2
                sel = "op_sel_hi:[1,0]" if i % 2 == 0 else "op_sel:[0,1] op_sel_hi:[1,1]"
                for h in range(2): st.e(f"v_pk_add_f32 {vr(a+2*h,2)}, {vr(a+2*h,2)}, {vr(bp,2)} {sel}")
                for h in range(2): st.e(f"v_pk_mul_f32 {vr(a+2*h,2)}, {vr(a+2*h,2)}, {vr(u+4*d+2*h,2)}")
                for h in range(2): st.e(f"v_cvt_pk_bf16_f32 v{o+2*d+h}, v{a+2*h}, v{a+2*h+1}")
            st.e(f"v_permlane16_swap_b32 v{o}, v{o+2}"); st.e(f"v_permlane16_swap_b32 v{o+1}, v{o+3}")
            if UEARLY: st.e(u_store(k - 1)[0], tag='u', count=False)
    emit_all(st, st.bg); st.bg = []
UEARLY = env('UEARLY', 1)
def u_store(k): return (f"buffer_store_dwordx4 {vr(UO+4*k,4)}, v{V_T}, {SRD_WS}, s{56+k//2} offen offset:{(k%2)*2048}{SC}", 'u')
def p3_all(st, **kw):
    l1 = st.newlabel("P3_WC1"); le = st.newlabel("P3_END")
    assert not st.bg
    st.e(f"s_cmp_eq_u32 {S_WC}, 1")
    st.e(f"s_cbranch_scc1 {l1}")
    vm0 = list(st.vm); res = []
    for NT in (4, 3):
        st.vm = list(vm0)
        if NT == 4:
            dm = lambda s: p3_x(s, P3X)
        else:
            st.label(l1)
            st.e(f"s_mul_i32 s56, {S_WR}, 7168")
            st.e(f"v_subrev_u32 v{V_WD}, {S_MW}, v{V_WD}"); st.e(f"v_add_u32 v{V_WD}, s56, v{V_WD}")
            st.e(f"v_add_u32 v{V_WD+1}, 4096, v{V_WD}")
            st.e(f"s_mov_b32 {S_MW}, s56")
            st.e(f"s_sub_u32 s68, {S_MX}, 4096")
            for q in range(P3X, 4): st.e(f"v_subrev_u32 v{V_WD+2+q}, {32*4096}, v{V_XD+q}")
            dm = p3_dma_wc1
        gemm(st, 'p3', 32, P3_NB, P3_SLOT, dm, xread_natural, p3_wread, p3_mf, 4, NT, grp=f"p3_{NT}", **kw)
        st.bg_every = 10 if NT == 4 else 8; st._bgc = 0
        p3_epilogue(st, NT)
        res.append(list(st.vm))
        if NT == 4:
            st.flush_hazards(); st.e(f"s_branch {le}")
    assert res[0] == res[1]
    if UEARLY: st.vm_mark('u')
    st.flush_hazards()
    st.label(le)

P4_SLOT = 24576; P4_NB = 6; P4_ROT = 3
XROT = env('XROT', 1)
def p4_setup_s(st):
    st.e(f"v_lshlrev_b32 v{V_XD}, 4, v1")
    st.e(f"s_mul_i32 s67, {S_RB}, {88*8192}")
    st.e(f"s_add_u32 s67, s67, {S_MX}"); st.e(f"s_add_u32 s67, s67, {WS_XF}")
    st.e(f"s_add_u32 s68, s67, {16*16384}")
    st.e(f"s_lshl_b32 {S_MW}, {S_WAVE}, 11")
    st.e(f"s_and_b32 {S_SOW}, {S_OFF}, {max(ROT4 - 1, 0)}")
    st.e(f"s_mov_b32 s66, {S_SOW}")
    st.e(f"s_lshl_b32 {S_SOX}, {S_SOW}, 14"); st.e(f"s_add_u32 {S_SOX}, {S_SOX}, s67")
    st.e(f"s_lshl_b32 {S_SOW}, {S_SOW}, 17")
def p4_dma(s):
    slot = ((s + P4_ROT) % P4_NB) * P4_SLOT
    tag = ('st', 'p4', s)
    b = [f"s_add_u32 m0, {S_MX}, {slot}"]
    b += [(f"buffer_load_dwordx4 v{V_XD}, {SRD_WS}, {S_SOX} offen offset:{1024*q}{SC} lds", tag) for q in range(4)]
    if s == 15:
        b.append(f"s_mov_b32 s67, s68\ns_add_u32 s68, s68, {28*16384}\ns_lshl_b32 {S_SOX}, s66, 14\ns_add_u32 {S_SOX}, {S_SOX}, s67")
    else:
        b.append(f"s_add_u32 {S_SOX}, {S_SOX}, {0 if NOINC else 16384}")
        b.append(f"s_cmp_eq_u32 {S_SOX}, s68\ns_cselect_b32 {S_SOX}, s67, {S_SOX}")
    b.append(f"s_add_u32 m0, {S_MW}, {slot + 16384}")
    b += [(f"buffer_load_dwordx4 v{V_WD+j}, {SRD_WO if s < 16 else SRD_WOUT}, {S_SOW} offen offset:{1024*j} lds", tag) for j in range(2)]
    if s == 15:
        b.append(f"s_lshl_b32 {S_SOW}, s66, 17")
    else:
        b.append(f"s_add_u32 {S_SOW}, {S_SOW}, {0 if NOINC else 64*2048}")
        b.append(f"s_cmp_eq_u32 {S_SOW}, {(16 if s < 16 else 28) * 64 * 2048}\ns_cselect_b32 {S_SOW}, 0, {S_SOW}")
    return b
def p4_xread(slot, i, hh, dst):
    r, imm = ldsaddr(V_XR, slot + hh * 8192 + i * 1024)
    return f"ds_read_b128 {dst}, {r} offset:{imm}"
def p4_wread(slot, n, hh, db):
    out = []
    for sec in range(2):
        r, imm = ldsaddr(V_WR + 3 * n, slot + 16384 + hh * 4096 + sec * 512)
        out.append(f"ds_read_b64_tr_b16 {ar(db + 2*sec, 2)}, {r} offset:{imm}")
    return out
def p4_mf(s, hh, n, i, wf, xf):
    a = vr(accr(n, i, ACC if s < 16 else ACC + 32), 4)
    return f"v_mfma_f32_16x16x32_bf16 {a}, {wf}, {xf}, {'0' if (s in (0, 16) and hh == 0) else a}"
def p4_gate_load(st):
    st.e(f"s_lshl_b32 s56, {S_RB}, 9"); st.e(f"s_lshl_b32 s57, {S_WR}, 8"); st.e("s_add_u32 s56, s56, s57")
    st.e(f"s_add_u32 s56, s56, {WS_G}")
    st.e(f"v_and_b32 v{V_T+6}, 15, v1"); st.e(f"v_lshlrev_b32 v{V_T+6}, 2, v{V_T+6}")
    for i in range(4): st.e(f"buffer_load_dword v{V_G+i}, v{V_T+6}, {SRD_WS}, s56 offen offset:{64*i}{SC}", tag='gld')
    T = V_T
    st.e(f"v_and_b32 v{T}, 15, v1"); st.e(f"v_lshlrev_b32 v{T}, 11, v{T}")
    st.e(f"v_bfe_u32 v{T+1}, v1, 4, 1"); st.e(f"v_lshl_or_b32 v{T}, v{T+1}, 5, v{T}")
    st.e(f"v_lshrrev_b32 v{T+1}, 5, v1"); st.e(f"v_lshl_or_b32 v{T}, v{T+1}, 4, v{T}")
    st.e(f"s_lshl_b32 s56, {S_RB}, 18"); st.e(f"s_lshl_b32 s57, {S_WR}, 17"); st.e("s_add_u32 s56, s56, s57")
    st.e(f"s_lshl_b32 s57, {S_CB}, 7"); st.e("s_add_u32 s56, s56, s57")
    st.e(f"s_lshl_b32 s57, {S_WC}, 6"); st.e("s_add_u32 s56, s56, s57")
def p4_epilogue(st):
    st.wait(tag='gld')
    for i in range(4):
        u = TMP + 4 * i
        bp = V_G + (i // 2) * 2
        sel = "op_sel_hi:[1,0,1]" if i % 2 == 0 else "op_sel:[0,1,0] op_sel_hi:[1,1,1]"
        for n in range(2):
            a = accr(n, i); b = a + 32
            for h in range(2): st.e(f"v_pk_add_f32 {vr(a+2*h,2)}, {vr(a+2*h,2)}, {vr(b+2*h,2)} neg_lo:[0,1] neg_hi:[0,1]")
            for h in range(2): st.e(f"v_pk_fma_f32 {vr(a+2*h,2)}, {vr(a+2*h,2)}, {vr(bp,2)}, {vr(b+2*h,2)} {sel}")
            for h in range(2): st.e(f"v_cvt_pk_bf16_f32 v{u+2*n+h}, v{a+2*h}, v{a+2*h+1}")
        st.e(f"v_permlane16_swap_b32 v{u}, v{u+2}"); st.e(f"v_permlane16_swap_b32 v{u+1}, v{u+3}")
        st.e(f"buffer_store_dwordx4 {vr(u,4)}, v{V_T}, {SRD_OUT}, s56 offen", tag='out')
        if i < 3: st.e("s_add_u32 s56, s56, 32768")

def stash(st, vregs, a0):
    for k, v in enumerate(vregs): st.e(f"v_accvgpr_write_b32 a{a0+k}, v{v}")
def unstash(vregs, a0): return [f"v_accvgpr_read_b32 v{v}, a{a0+k}" for k, v in enumerate(vregs)]
KVCHK = env('KVCHK', 0); UCHK = env('UCHK', 11); UPUB = env('UPUB', 3); LN0 = env('LN0', 17)

def chk_retired(st, tag):
    assert st.vmcnt_for(tag)[0] is None, tag
def tlb_warm(st):
    st.e("v_mov_b32 v244, 0"); st.e("v_mov_b32 v245, 0")
    st.e("s_mov_b64 exec, 1")
    st.e(f"s_lshl_b32 s56, {S_CB}, 1"); st.e(f"s_add_u32 s56, s56, {S_WC}"); st.e("s_lshl_b32 s56, s56, 18")
    st.e(f"s_lshl_b32 s57, {S_RB}, 14"); st.e("s_add_u32 s56, s56, s57"); st.e(f"s_lshl_b32 s57, {S_WR}, 13"); st.e("s_add_u32 s56, s56, s57")
    st.e(f"buffer_store_dword v244, v245, {SRD_WS}, s56 offen sc1", tag='tlb')
    st.e(f"s_mul_i32 s56, {S_CB}, 458752"); st.e(f"s_lshl_b32 s57, {S_RB}, 1"); st.e(f"s_add_u32 s57, s57, {S_WR}"); st.e("s_mul_i32 s57, s57, 14336")
    st.e("s_add_u32 s56, s56, s57"); st.e(f"s_lshl_b32 s57, {S_WC}, 12"); st.e("s_add_u32 s56, s56, s57"); st.e(f"s_add_u32 s56, s56, {WS_ZN}")
    st.e(f"buffer_store_dword v244, v245, {SRD_WS}, s56 offen sc1", tag='tlb')
    st.e(f"s_mul_i32 s56, {S_RB}, {88*8192}"); st.e(f"s_lshl_b32 s57, {S_CB}, 14"); st.e("s_add_u32 s56, s56, s57")
    st.e(f"s_lshl_b32 s57, {S_WC}, 13"); st.e("s_add_u32 s56, s56, s57"); st.e(f"s_lshl_b32 s57, {S_WR}, 12"); st.e("s_add_u32 s56, s56, s57")
    st.e(f"s_add_u32 s56, s56, {WS_XF}")
    st.e(f"buffer_store_dword v244, v245, {SRD_WS}, s56 offen sc1", tag='tlb')
    st.e(f"s_lshl_b32 s56, {S_RB}, 18"); st.e(f"s_lshl_b32 s57, {S_WR}, 17"); st.e("s_add_u32 s56, s56, s57")
    st.e(f"s_lshl_b32 s57, {S_CB}, 7"); st.e("s_add_u32 s56, s56, s57"); st.e(f"s_lshl_b32 s57, {S_WC}, 6"); st.e("s_add_u32 s56, s56, s57")
    st.e(f"buffer_store_dword v244, v245, {SRD_OUT}, s56 offen sc1", tag='tlb')
    st.e(f"s_lshl_b32 s56, {S_G}, 13")
    st.e(f"buffer_load_dword v244, v245, {SRD_WSP}, s56 offen", tag='tlb')
    st.e(f"s_lshl_b32 s56, {S_G}, 11")
    st.e(f"buffer_load_dword v244, v245, {SRD_WO}, s56 offen", tag='tlb')
    st.e(f"s_mul_i32 s56, {S_G}, 3584")
    st.e(f"buffer_load_dword v244, v245, {SRD_WOUT}, s56 offen", tag='tlb')
    st.e(f"s_mul_i32 s56, {S_G}, 7168")
    st.e(f"buffer_load_dword v244, v245, {SRD_WIN}, s56 offen", tag='tlb')
    st.e("s_mov_b64 exec, -1")
def precompute(st):
    R = 170; T = 182
    stash(st, [V_XR], A_XR); stash(st, [V_WR], A_4WR)
    p1b_regs(st, R, T); stash(st, range(R, R + 10), A_1BWD)
    flags_setup(st)
    xd_natural(st, 4096, R, T); stash(st, range(R, R + 4), A_3XD)
    wd128_lane(st, R, T, 2048)
    st.e(f"s_lshl_b32 s56, {S_WAVE}, 15"); st.e(f"s_lshl_b32 s57, {S_CB}, 7"); st.e("s_add_u32 s56, s56, s57")
    st.e(f"v_xor_b32 v{R+1}, 64, v{R}")
    st.e(f"v_add_u32 v{R}, s56, v{R}")
    st.e(f"s_add_u32 s56, s56, {8*2048 - 1024}")
    st.e(f"v_add_u32 v{R+1}, s56, v{R+1}")
    stash(st, [R, R + 1], A_4WD)
    gate_finish(st)
def fused(st):
    stamp(st, 'setup')
    gate_issue(st)
    st.bg = flat(p1a_dma(k) for k in range(1, 4)); st.bg_every = BG0
    p1a_setup_reads(st)
    precompute(st)
    stamp(st, 'pre')
    win = lambda p: (lambda st: emit_all(st, sweep_items(SRD_WIN, 1024 * 3584 * 2, p, 4, V_S16, V_TD)))
    at = {}
    def add(key, f):
        g = at.get(key)
        at[key] = (lambda st: (g(st), f(st))) if g else f
    for e in range(SW0, 8 if SW1A else 0): add((2 * (e - SW0), 'B'), lambda st, e=e: sweep_1a(st, e))
    if SWW:
        for s_ in range(0, 12): add((s_, 'B'), lambda st, s_=s_: st.wait(tag=('sw', min(7, (s_ + 4 + ROT - 1) // 2))))
    if env('TLBW', 0): add((1, 'A'), tlb_warm)
    w0 = env('WIN0', 7); wd = env('WIND', 2)
    for p in range(4): add((w0 + wd * p, 'A'), win(p))
    add((12, 'A'), lambda st: stamp(st, '1a_s12'))
    pre1b = lambda: unstash(range(V_WD, V_WD + 7), A_1BWD) + p1_soff(7168, 7168)
    gemm(st, 'p1a', 16, P1A_NB, P1A_SLOT, p1a_dma, xread_natural, p1a_wread, p1a_mf, 4, 6, first_stamp='1a_first', at=at,
         nxt={13: lambda: pre1b() + p1b_dma(0), 14: lambda: p1b_dma(1), 15: lambda: p1b_dma(2)})
    stamp(st, '1a_main')
    tag_setup(st)
    st.bg_every = EPIBG
    p1_epi_qkv(st)
    for t in unstash([V_WR, V_WR + 3, V_W3], A_1BWR): st.e(t)
    copies(st, V_WR); copies(st, V_WR + 3); copies(st, V_W3)
    stamp(st, '1a_epi')
    pre2 = lambda: [f"v_lshlrev_b32 v{V_L16}, 4, v1"] + rec(kv_start) + flat(unit_loads(u) for u in range(-1, RING - 1))
    gemm(st, 'p1b', 16, P1B_NB, P1B_SLOT, p1b_dma, xread_natural, p1b_wread, p1b_mf, 4, 7, first_stamp='y_' + '1b_first',
         publish=(1, ['kv', 'gst'], 2), nxt={15: pre2},
         at={(4, 'A'): lambda st: stamp(st, 'y_' + '1b_s4'),
             (13, 'A'): lambda st: poll_issue(st, 'cb', 'pkv'), (15, 'A'): lambda st: poll_check(st, 'cb', 'pkv', 1)})
    stamp(st, '1b_main')
    st.bg_every = 16
    p1_epi_z(st, {})
    emit_all(st, st.bg); st.bg = []
    stamp(st, '1b_epi')
    VS = 21
    def sweep2_setup(st):
        st.e(f"v_and_b32 v{VS}, 15, v1"); st.e(f"v_lshlrev_b32 v{VS}, 7, v{VS}")
        for t in unstash(range(V_XD, V_XD + 4), A_3XD): st.e(t)
        st.e(f"s_mul_i32 {S_SOX}, {S_OFF}, {256 * ROT3}")
    hooks = {
        1: lambda st: (stamp(st, 'att1'), sweep2_setup(st)),
        5: lambda st: drain_publish(st, 2, 'stat'),
        LN0 - 3: lambda st: poll_issue(st, 'rb', 'pst'),
        LN0: lambda st: (poll_check(st, 'rb', 'pst', 2), ln_load(st, 0)),
        LN0 + 3: lambda st: (stamp(st, 'att20'), ln_accum(st, 0), ln_load(st, 1)),
        LN0 + 6: lambda st: (ln_accum(st, 1), ln_final(st)),
        LN0 + 18: lambda st: drain_publish(st, 3, 'zn'),
        40: lambda st: stamp(st, 'y_' + 'att40'),
        49: lambda st: poll_issue(st, 'cb', 'pzn'),
        52: lambda st: (poll_check(st, 'cb', 'pzn', 3), p3_setup_w(st)),
    }
    extras = {}
    for p in range(4): extras[4 + 4 * p] = [sweep_items(SRD_WSP, 2048 * 2048 * 2, p, 4, VS, 19)]
    zs = zn_stores()
    for k in range(8): extras[LN0 + 7 + k] = zs[2 * k:2 * k + 2]
    for p in range(2): extras[LN0 + 2 + 14 * p] = [sweep_items(SRD_WOUT, 1792 * 1024 * 2, p, 2, VS, 19)]
    extras[37] = [sweep_items(SRD_WO, 1024 * 1024 * 2, 0, 1, VS, 19)]
    for s_ in range(P3_NB):
        d = p3_x(s_)
        extras[39 + 2 * s_] = [d[0:2], d[2]]; extras[40 + 2 * s_] = [d[3], d[4:]]
        d = p3_w_pro(s_)
        extras[53 + 2 * s_] = [d[0:2], d[2]]; extras[54 + 2 * s_] = [d[3], d[4:]]
    if env('ATT_TEST', 0):
        hooks = {8: lambda st: stamp(st, 'att8'), 49: lambda st: stamp(st, 'att49')}; extras = {}
        if env('ATT_TEST', 0) == 2:
            for j in range(9, 49): hooks[j] = (lambda st, j=j: st.e(f"; tile {j}"))
        att_main(st, hooks, extras, RING - 1)
        return
    att_main(st, hooks, extras, RING - 1)
    for t in unstash([V_XR], A_XR): st.e(t)
    st.e(f"v_xor_b32 v{V_XR+3}, 64, v{V_XR}")
    copies(st, V_XR); copies(st, V_XR + 3)
    stamp(st, 'att_epi')
    pre4 = lambda: unstash([V_WD, V_WD + 1], A_4WD) + rec(p4_setup_s)
    p3_all(st, publish=(4, ['o'], 3), first_stamp='y_' + '3_first',
           nxt={28: lambda: pre4() + p4_dma(0) + p4_dma(1), 29: lambda: p4_dma(2), 30: lambda: p4_dma(3), 31: lambda: p4_dma(4) + p4_dma(5)},
           at={(6, 'A'): lambda st: stamp(st, '3_s6'), (26, 'A'): lambda st: stamp(st, '3_s26'),
               (26, 'B'): lambda st: poll_issue(st, 'rb', 'po'), (28, 'A'): lambda st: poll_check(st, 'rb', 'po', 4)})
    stamp(st, '3_epi')
    for t in unstash([V_WR], A_4WR): st.e(t)
    st.e(f"v_xor_b32 v{V_WR+3}, 32, v{V_WR}")
    copies(st, V_WR); copies(st, V_WR + 3)
    st.e(f"s_lshl_b32 s60, {S_WR}, 12")
    st.e(f"v_add_u32 v{V_XR}, s60, v{V_XD}")
    copies(st, V_XR)
    at = {(UCHK - 2, 'B'): lambda st: poll_issue(st, 'rb', 'pu'), (10, 'A'): lambda st: stamp(st, '4_s10'),
          (UCHK, 'B'): lambda st: poll_check(st, 'rb', 'pu', 5), (17, 'A'): lambda st: stamp(st, '4_s17'),
          (36, 'A'): p4_gate_load}
    if not UEARLY:
        emit_all(st, [u_store(0), u_store(1)])
        for k in range(2, 8): at[((k - 2) // 2, 'AB'[k % 2])] = (lambda st, k=k: emit_filler(st, u_store(k)))
    gemm(st, 'p4', 44, P4_NB, P4_SLOT, p4_dma, p4_xread, p4_wread, p4_mf, 4, 2, rot=P4_ROT, PF=2,
         publish=(5, ['u'], UPUB), first_stamp='4_first', at=at, hold=(16, UCHK))
    p4_epilogue(st)
    gen_advance(st)
SWD = env('SWD', 2); KVPUB = env('KVPUB', 7)

def build():
    kname = NAME + "_kernel"
    ref = open(os.path.join(os.path.dirname(os.path.abspath(__file__)), "..", "cdna_kernels", NAME + ".s.ref")).read()
    head = [l for l in ref.splitlines() if l.startswith(";") and "@launch" not in l]
    out = "\n".join(head) + "\n"
    if env('LIST', 0): out += f"; @launch kernel={kname} grid=(256,1,1) block=(256,1,1) lds=163840\n"
    else: out += "; @launch grid=(256,1,1) block=(256,1,1) lds=163840\n"
    out += '.amdgcn_target "amdgcn-amd-amdhsa--gfx950"\n.text\n'
    st = Stream()
    st.endlabel = "KERNEL_END"
    st.stamp_names = ['start']
    if STAMPS: st.e("s_memtime s[98:99]" if CYC else "s_memrealtime s[98:99]")
    setup(st)
    if STAMPS: st.e("s_mov_b32 s70, s98")
    fused(st)
    write_stamps(st)
    st.label(st.endlabel)
    st.e("s_endpgm")
    sys.stderr.write(f"{len(st.ins)} instrs (unrolled), nops added {st.nops_added}\n")
    out += f".globl {kname}\n.p2align 8\n.type {kname},@function\n{kname}:\n" + st.text()
    out += f"\n.set CODE_BYTES, ({st.endlabel} - {kname} - 512) & 0xffffff00\n"
    out += f""".section .rodata,"a"
.p2align 6
.amdhsa_kernel {kname}
  .amdhsa_next_free_vgpr 512
  .amdhsa_next_free_sgpr 102
  .amdhsa_accum_offset 256
  .amdhsa_group_segment_fixed_size 0
  .amdhsa_kernarg_size 96
  .amdhsa_user_sgpr_count 2
  .amdhsa_user_sgpr_kernarg_segment_ptr 1
  .amdhsa_system_sgpr_workgroup_id_x 1
  .amdhsa_float_denorm_mode_32 3
.end_amdhsa_kernel
"""
    return out

if __name__ == "__main__":
    open(sys.argv[1], "w").write(build())
```
